```python
import torch

def _softmax(x, axis=-1):
    return torch.softmax(x, dim=axis)
def _gelu(x):
    return torch.nn.functional.gelu(x, approximate="tanh")
def _silu(x):
    return torch.nn.functional.silu(x)
def _sigmoid(x):
    return torch.sigmoid(x)
def _layernorm(x, axis=-1, eps=1e-5):
    m = x.mean(dim=axis, keepdim=True)
    v = x.var(dim=axis, keepdim=True, unbiased=False)
    return (x - m) / torch.sqrt(v + eps)
def _scatter_add(tgt, idx, src, axis=0):
    return tgt.clone().index_add_(axis, idx, src)
def _segment_sum(src, seg, n):
    out = torch.zeros((n,) + src.shape[1:], dtype=src.dtype)
    return out.index_add_(0, seg, src)
def _pad(x, pw):
    flat = tuple(v for pair in reversed(pw) for v in pair)
    return torch.nn.functional.pad(x, flat)

kernel_name = 'standalone__mha_block_cached__near_ridge'

def setup_inputs():

    _w = (lambda a: (lambda t: t.to(torch.bfloat16) if t.is_floating_point() else t)(torch.as_tensor(a)))
    B, Sq, D = 8, 288, 576
    H, Sk, Dh = 32, 2048, 128
    return {
        "x": _w((lambda *s: torch.randn(*s, dtype=torch.bfloat16) * 0.8)(B, Sq, D)),
        "k_cache": _w((lambda *s: torch.randn(*s, dtype=torch.bfloat16) * 0.8)(B, H, Sk, Dh)),
        "v_cache": _w((lambda *s: torch.randn(*s, dtype=torch.bfloat16) * 0.05)(B, H, Sk, Dh)),
        "wq": _w((lambda *s: torch.randn(*s, dtype=torch.bfloat16) * 0.8)(D, H * Dh) * (D ** -0.5)),
        "wo": _w((lambda *s: torch.randn(*s, dtype=torch.bfloat16) * 0.05)(H * Dh, D) * ((H * Dh) ** -0.5)),
    }

def reference(x, k_cache, v_cache, wq, wo):
    B, Sq, D = x.shape
    H, Dh = 32, 128
    q = (lambda x, *d: x.permute(*d))((x @ wq).reshape(B, Sq, H, Dh), 0, 2, 1, 3)
    scores = torch.einsum("bhqd,bhkd->bhqk", q, k_cache) * (Dh ** -0.5)
    p = _softmax(scores, axis=-1)
    o = torch.einsum("bhqk,bhkd->bhqd", p, v_cache)
    return (lambda x, *d: x.permute(*d))(o, 0, 2, 1, 3).reshape(B, Sq, H * Dh) @ wo
```

```python
import sys, math, struct

OPT = dict(stamp=0, kv_nt=1, force_fallback=0, k2_D=12, nodma=0, noexp=0)
for a in sys.argv[2:]:
    k, v = a.split('=')
    OPT[k] = int(v)

def f2u(x):
    return struct.unpack('<I', struct.pack('<f', x))[0]

class G:
    def __init__(self):
        self.L = []
    def __call__(self, s):
        self.L.append('    ' + s)
    def label(self, s):
        self.L.append(s + ':')
    def c(self, s):
        self.L.append('    ; ' + s)
    def raw(self, s):
        self.L.append(s)

def vr(b, n=1):
    return f'v{b}' if n == 1 else f'v[{b}:{b+n-1}]'
def ar(b, n=1):
    return f'a{b}' if n == 1 else f'a[{b}:{b+n-1}]'
def sr(b, n=1):
    return f's{b}' if n == 1 else f's[{b}:{b+n-1}]'

MFMA = 'v_mfma_f32_32x32x16_bf16'
STAMP_OFF = 32 << 20

sX, sWQ, sK, sV, sO = 8, 12, 16, 20, 24
sW = 38
sW8K = 39
sT0, sT1, sT2 = 40, 41, 42
sSlotK, sSlotV = 43, 44
sD = 45
sKoff, sKoff2, sVoff, sVoff2 = 48, 49, 50, 51
sCnt = 52
sPass = 53
sC = 54
sW1K = 56
sW4K = 57
sThr = 58
sST = 60
vKbase, vL16, vXvo, vWvo, vKvo, vVvo = 0, 1, 2, 3, 4, 8
vXa0, vXa1, vXc0, vXc1, vWa, vWc = 9, 10, 11, 12, 13, 14
vVbase = 15
vKa0, vKa1, vVa = 9, 10, 11
vQ = 16
vACC = 112
vNEG = 112
vS = 160
vLs = 208
vT = 212
aO = 0
aK = 192
aV = 224
QBUF = 53248
XB = 36864
SLOT = 32768
NT = ' nt' if OPT['kv_nt'] else ''

nstamp = [0]
def stamp(g):
    if OPT['stamp']:
        g(f's_memtime {sr(sST + 2*nstamp[0], 2)}')
        nstamp[0] += 1

def dma_kv(kind, j, soff, soff2):
    srd = sK if kind == 'K' else sV
    vo = vKvo + (j & 3) if kind == 'K' else vVvo
    so = soff if j < 4 else soff2
    off = f' offset:{(j & 3) * 1024}' if (j & 3) else ''
    return f'buffer_load_dwordx4 {vr(vo)}, {sr(srd,4)}, {sr(so)} offen{off}{NT} lds'

def issue_kv_const(g, kind, blk, slot):
    out = []
    out.append(f's_add_u32 m0, {sr(sW8K)}, {slot*SLOT}')
    out.append(f's_mov_b32 {sr(sT0)}, {blk*SLOT}')
    for j in range(4):
        out.append(dma_kv(kind, j, sT0, sT0))
    out.append(f's_add_u32 m0, {sr(sW8K)}, {slot*SLOT+4096}')
    out.append(f's_mov_b32 {sr(sT0)}, {blk*SLOT+4096}')
    for j in range(4, 8):
        out.append(dma_kv(kind, j, sT0, sT0))
    if g is not None:
        for s in out:
            g(s)
    return out

def qchunk_dma(c):
    out = []
    buf = (c % 3) * QBUF
    for j in range(4):
        out.append(f's_add_u32 m0, {sr(sW4K)}, {buf + XB + j*1024}')
        out.append(f's_mov_b32 {sr(sT0)}, {c*524288 + j*32768}')
        out.append(f'buffer_load_dwordx4 {vr(vWvo)}, {sr(sWQ,4)}, {sr(sT0)} offen lds')
    for j in range(9):
        out.append(f's_add_u32 m0, {sr(sW1K)}, {buf + j*4096}')
        out.append(f's_mov_b32 {sr(sT0)}, {j*36864 + c*128}')
        out.append(f'buffer_load_dwordx4 {vr(vXvo)}, {sr(sX,4)}, {sr(sT0)} offen lds')
    return out

def qreads(s):
    e = s & 1
    i = s & 3
    base = aK + 32 * e
    out = []
    xa = vXa1 if (i & 1) else vXa0
    xc = vXc1 if (i & 1) else vXc0
    def wread(t):
        return [f'ds_read_b64_tr_b16 {ar(base+4*t+2*jj,2)}, {vr(vWa)} offset:{i*4096+jj*1024+t*256}' for jj in range(2)]
    out.append(f'ds_read_b128 {ar(base+20,4)}, {vr(xa)} offset:{(i>>1)*512}')
    out += wread(0)
    out += wread(1)
    out += wread(2)
    out += wread(3)
    out.append(f'ds_read_b128 {ar(base+24,4)}, {vr(xa)} offset:{(i>>1)*512+4096}')
    out.append(f'ds_read_b128 {ar(base+28,4)}, {vr(xc)} offset:{(i>>1)*512}')
    out += [f'ds_read_b64_tr_b16 {ar(base+16+2*jj,2)}, {vr(vWc)} offset:{i*4096+jj*1024}' for jj in range(2)]
    return out

def kread(i, dst=aK, a0=vKa0, a1=vKa1):
    return f'ds_read_b128 {ar(dst+4*i,4)}, {vr(a1 if i & 1 else a0)} offset:{(i>>1)*256}'
def vread(p, jj):
    t, a = p >> 1, p & 1
    return f'ds_read_b64_tr_b16 {ar(aV+4*p+2*jj,2)}, {vr(vVa)} offset:{a*4096+jj*2048+t*256}'

def qk(X, sb, i, cinit, kreg=aK):
    d = vr(vS + 16*sb, 16)
    c = d if i else cinit
    return f'{MFMA} {d}, {ar(kreg+4*i,4)}, {vr(vQ+32*X+4*i,4)}, {c}'
def pv(X, sb, p):
    t, a = p >> 1, p & 1
    o = ar(aO + 64*X + 16*t, 16)
    return f'{MFMA} {o}, {ar(aV+4*p,4)}, {vr(vS+16*sb+4*a,4)}, {o}'

TILES = [2, 0, 1, 0, 1, 0, 1, 0, 1]

def build_loop():
    NG = 144
    mf = []
    for n in range(9):
        nx = (n + 1) % 9
        X = TILES[nx]
        for i in range(8):
            mf.append((qk(X, nx % 3, i, vr(vNEG + 16*X, 16)), ('K', i)))
        pvn = (n - 1) % 9
        for p in range(8):
            mf.append((pv(TILES[pvn], pvn % 3, p), ('V', p)))
    gaps = [[] for _ in range(NG)]
    def put(gp, text, cost=1, tag=None):
        gaps[gp % NG].append((text, cost, tag))
    for n in range(9):
        S = vS + 16 * (n % 3)
        l = vLs + TILES[n]
        for r in range(16):
            if not OPT['noexp']:
                put(16*n + r, f'v_exp_f32 {vr(S+r)}, {vr(S+r)}', 2)
            else:
                put(16*n + r, f'v_mov_b32 {vr(S+r)}, {vr(S+r)}', 1)
    for n in range(9):
        S = vS + 16 * (n % 3)
        l = vLs + TILES[n]
        for r in range(16):
            gp = min(16*n + r + 1, NG - 1)
            put(gp, f'v_add_f32 {vr(l)}, {vr(l)}, {vr(S+r)}')
            if r & 1:
                k = r >> 1
                put(gp, f'v_cvt_pk_bf16_f32 {vr(S+k)}, {vr(S+2*k)}, {vr(S+2*k+1)}')
    load = lambda gp: sum(c for _, c, _ in gaps[gp % NG])
    CAP = 6
    put(8, 's_waitcnt vmcnt(16)'); put(8, 's_barrier')
    put(112, 's_waitcnt vmcnt(16)'); put(112, 's_barrier')
    def place(text, lo, hi, cost=1, tag=None):
        for gp in range(lo, hi + 1):
            if load(gp) + cost <= CAP:
                put(gp, text, cost, tag)
                return gp
        best = min(range(lo, hi + 1), key=load)
        put(best, text, cost, tag)
        return best
    def seq(texts, lo, hi, mind=0):
        gp = lo
        for t in texts:
            gp = place(t, gp, hi) + mind
        return gp
    for idx, n in enumerate([1, 3, 5, 7]):
        if n == 7:
            upd = [f's_add_u32 {sr(sT1)}, {sr(sSlotK)}, {sr(sW8K)}',
                   f's_add_u32 {sr(sSlotK)}, {sr(sSlotK)}, {2*SLOT}',
                   f's_sub_u32 {sr(sT0)}, {sr(sSlotK)}, {5*SLOT}',
                   f's_min_u32 {sr(sSlotK)}, {sr(sSlotK)}, {sr(sT0)}',
                   f'v_add_u32 {vr(vKa0)}, {sr(sSlotK)}, {vr(vKbase)}',
                   f'v_xor_b32 {vr(vKa1)}, 32, {vr(vKa0)}']
            seq(upd, 16*n - 9, 16*n - 1)
        else:
            upd = [f'v_add_u32 {vr(vKa0)}, {sr(sD+idx)}, {vr(vKa0)}',
                   f'v_add_u32 {vr(vKa1)}, {sr(sD+idx)}, {vr(vKa1)}']
            seq(upd, 16*n - 5, 16*n)
        for i in range(8):
            place(kread(i), 16*n + i + 1, 16*n + i + 6, 1, ('K', i))
    for idx, n in enumerate([3, 5, 7, 0]):
        if n == 0:
            upd = [f's_add_u32 {sr(sT2)}, {sr(sSlotV)}, {sr(sW8K)}',
                   f's_add_u32 {sr(sSlotV)}, {sr(sSlotV)}, {2*SLOT}',
                   f's_sub_u32 {sr(sT0)}, {sr(sSlotV)}, {5*SLOT}',
                   f's_min_u32 {sr(sSlotV)}, {sr(sSlotV)}, {sr(sT0)}',
                   f'v_add_u32 {vr(vVa)}, {sr(sSlotV)}, {vr(vVbase)}']
            seq(upd, 1, 7)
        else:
            seq([f'v_add_u32 {vr(vVa)}, {sr(sD+idx)}, {vr(vVa)}'], 16*n + 2, 16*n + 8)
        gp = 16*n + 9
        for p in range(8):
            for jj in range(2):
                lo = max(gp, 16*n + 9 + p)
                gp = place(vread(p, jj), lo, 16*n + 9 + p + 8, 1, ('V', p))
    if not OPT['nodma']:
        gp = 26
        for j in range(8):
            if j == 0:
                gp = place(f's_mov_b32 m0, {sr(sT2)}', gp, gp + 3) + 1
            if j == 4:
                gp = place(f's_add_u32 m0, {sr(sT2)}, 4096', gp, gp + 3) + 1
            gp = place(dma_kv('K', j, sKoff, sKoff2), gp, gp + 4, 2) + 3
        seq([f's_add_u32 {sr(sKoff)}, {sr(sKoff)}, {SLOT}', f's_add_u32 {sr(sKoff2)}, {sr(sKoff2)}, {SLOT}'], gp, gp + 8)
        gp = 113
        for j in range(8):
            if j == 0:
                gp = place(f's_mov_b32 m0, {sr(sT1)}', gp, gp + 3) + 1
            if j == 4:
                gp = place(f's_add_u32 m0, {sr(sT1)}, 4096', gp, gp + 3) + 1
            gp = place(dma_kv('V', j, sVoff, sVoff2), gp, min(gp + 3, 140), 2) + 2
        assert gp <= 143, gp
    if not OPT['nodma']:
        put(142, f's_add_u32 {sr(sVoff)}, {sr(sVoff)}, {SLOT}')
        put(142, f's_add_u32 {sr(sVoff2)}, {sr(sVoff2)}, {SLOT}')
    def lin():
        out = []
        for gidx in range(NG):
            out.append(('M', mf[gidx][0], mf[gidx][1], gidx))
            for (t, cst, tag) in gaps[gidx]:
                out.append(('F', t, tag, gidx))
        return out
    one = lin()
    two = one + [(k, t, tag, gi + NG) for (k, t, tag, gi) in one]
    issued = []
    done = 0
    res = []
    LOOK = 5
    for (k, t, tag, gi) in two:
        if k == 'M':
            idxs = [x for x in range(len(issued)) if issued[x][0] == tag]
            if idxs and idxs[-1] >= done:
                need = idxs[-1] + 1
                while need < len(issued) and issued[need][1] <= gi - LOOK:
                    need += 1
                n = min(len(issued) - need, 15)
                done = len(issued) - n
                res.append(('W', f's_waitcnt lgkmcnt({n})', None, gi))
                assert gi - issued[idxs[-1]][1] >= 4, (tag, gi, issued[idxs[-1]])
        elif tag is not None:
            issued.append((tag, gi))
        res.append((k, t, tag, gi))
    body = [(k, t, gi - NG) for (k, t, tag, gi) in res if gi >= NG]
    return body, gaps

def kernel1(g):
    g.raw('.globl attn_kernel\n.p2align 8\n.type attn_kernel,@function')
    g.label('attn_kernel')
    g('s_cmp_ge_u32 s2, 256')
    g('s_cbranch_scc1 L1_done')
    stamp(g)
    g('s_load_dwordx4 s[28:31], s[0:1], 0')
    g('s_load_dwordx4 s[32:35], s[0:1], 16')
    g('s_load_dwordx2 s[36:37], s[0:1], 56')
    t = lambda i: vr(16 + i)
    g(f'v_lshrrev_b32 {t(0)}, 6, v0')
    g(f'v_and_b32 {t(1)}, 63, v0')
    g(f'v_readfirstlane_b32 {sr(sW)}, {t(0)}')
    g('s_and_b32 s3, s2, 7')
    g('s_lshr_b32 s4, s2, 3')
    g(f'v_lshlrev_b32 {vr(vL16)}, 4, {t(1)}')
    g(f's_lshl_b32 {sr(sW8K)}, {sr(sW)}, 13')
    g(f's_lshl_b32 {sr(sW1K)}, {sr(sW)}, 10')
    g(f's_lshl_b32 {sr(sW4K)}, {sr(sW)}, 12')
    g(f'v_and_b32 {t(2)}, 3, {t(1)}')
    g(f'v_bfe_u32 {t(3)}, {t(1)}, 2, 2')
    g(f'v_lshrrev_b32 {t(4)}, 4, {t(1)}')
    g(f'v_lshrrev_b32 {t(5)}, 5, {t(1)}')
    g(f'v_bfe_u32 {t(6)}, {t(1)}, 4, 1')
    g(f'v_bfe_u32 {t(7)}, {t(1)}, 2, 3')
    g(f'v_lshl_add_u32 {t(8)}, {t(0)}, 3, {t(7)}')
    g(f'v_mul_u32_u24 {t(8)}, 1152, {t(8)}')
    g(f'v_and_b32 {t(9)}, 1, {t(0)}')
    g(f'v_lshlrev_b32 {t(9)}, 1, {t(9)}')
    g(f'v_or_b32 {t(9)}, {t(9)}, {t(6)}')
    g(f'v_xor_b32 {t(9)}, {t(9)}, {t(2)}')
    g(f'v_lshl_add_u32 {t(8)}, {t(9)}, 4, {t(8)}')
    g(f'v_lshl_add_u32 {vr(vXvo)}, {t(5)}, 6, {t(8)}')
    g(f'v_lshlrev_b32 {t(8)}, 6, {t(4)}')
    g(f'v_lshl_add_u32 {t(8)}, {t(2)}, 4, {t(8)}')
    g(f'v_lshl_add_u32 {t(9)}, {t(3)}, 13, {t(8)}')
    g(f'v_lshl_add_u32 {vr(vWvo)}, {t(0)}, 17, {t(9)}')
    g('s_waitcnt lgkmcnt(0)')
    g('s_mul_i32 s5, s3, 331776')
    g(f's_add_u32 {sr(sX)}, s28, s5')
    g(f's_addc_u32 {sr(sX+1)}, s29, 0')
    g(f's_mov_b32 {sr(sX+2)}, 331776')
    g(f's_mov_b32 {sr(sX+3)}, 0x20000')
    g('s_lshl_b32 s5, s4, 8')
    g(f's_add_u32 {sr(sWQ)}, s34, s5')
    g(f's_addc_u32 {sr(sWQ+1)}, s35, 0')
    g(f's_sub_u32 {sr(sWQ+2)}, {576*8192}, s5')
    g(f's_mov_b32 {sr(sWQ+3)}, 0x20000')
    for s in qchunk_dma(0):
        g(s)
    g('s_lshl_b32 s5, s3, 5')
    g('s_add_u32 s5, s5, s4')
    g('s_lshl_b32 s6, s5, 19')
    g(f's_add_u32 {sr(sK)}, s30, s6')
    g(f's_addc_u32 {sr(sK+1)}, s31, 0')
    g(f's_mov_b32 {sr(sK+2)}, 524288')
    g(f's_mov_b32 {sr(sK+3)}, 0x20000')
    g(f's_add_u32 {sr(sV)}, s32, s6')
    g(f's_addc_u32 {sr(sV+1)}, s33, 0')
    g(f's_mov_b32 {sr(sV+2)}, 524288')
    g(f's_mov_b32 {sr(sV+3)}, 0x20000')
    g(f's_mul_i32 s5, s3, {9*262144}')
    g('s_lshl_b32 s6, s4, 13')
    g('s_add_u32 s5, s5, s6')
    g(f's_add_u32 {sr(sO)}, s36, s5')
    g(f's_addc_u32 {sr(sO+1)}, s37, 0')
    g(f's_mov_b32 {sr(sO+2)}, {8*262144+8192}')
    g(f's_mov_b32 {sr(sO+3)}, 0x20000')
    for c in (1, 2):
        for s in qchunk_dma(c):
            g(s)
    g(f'v_lshl_add_u32 {t(9)}, {t(3)}, 8, {t(8)}')
    g(f'v_lshl_add_u32 {vr(vVvo)}, {t(0)}, 13, {t(9)}')
    g(f'v_mov_b32 {vr(vKvo)}, {vr(vVvo)}')
    for p in range(1, 4):
        g(f'v_xor_b32 {vr(vKvo+p)}, {16*p}, {vr(vVvo)}')
    g(f'v_xor_b32 {t(10)}, {t(5)}, {t(3)}')
    g(f'v_lshlrev_b32 {t(10)}, 4, {t(10)}')
    g(f'v_lshl_add_u32 {t(11)}, {t(7)}, 10, {t(10)}')
    g(f'v_lshl_add_u32 {t(11)}, {t(2)}, 6, {t(11)}')
    g(f'v_lshl_add_u32 {vr(vKbase)}, {t(0)}, 13, {t(11)}')
    g(f'v_lshlrev_b32 {t(12)}, 6, {t(3)}')
    g(f'v_lshl_add_u32 {t(12)}, {t(6)}, 5, {t(12)}')
    g(f'v_lshl_add_u32 {t(13)}, {t(2)}, 3, {t(12)}')
    g(f'v_lshl_add_u32 {t(13)}, {t(5)}, 10, {t(13)}')
    g(f'v_lshl_add_u32 {vr(vVbase)}, {t(0)}, 13, {t(13)}')
    g(f'v_bfe_u32 {t(14)}, {t(1)}, 3, 2')
    g(f'v_lshl_add_u32 {t(14)}, {t(14)}, 10, {t(10)}')
    g(f'v_and_b32 {t(15)}, 7, {t(1)}')
    g(f'v_lshl_add_u32 {t(14)}, {t(15)}, 6, {t(14)}')
    g(f'v_lshl_add_u32 {vr(vXa0)}, {t(0)}, 13, {t(14)}')
    g(f'v_xor_b32 {vr(vXa1)}, 32, {vr(vXa0)}')
    g(f'v_add_u32 {vr(vXc0)}, 32768, {t(14)}')
    g(f'v_xor_b32 {vr(vXc1)}, 32, {vr(vXc0)}')
    g(f'v_and_b32 {t(15)}, 1, {t(1)}')
    g(f'v_lshl_add_u32 {t(12)}, {t(15)}, 4, {t(12)}')
    g(f'v_bfe_u32 {t(15)}, {t(1)}, 1, 1')
    g(f'v_lshl_add_u32 {t(12)}, {t(15)}, 3, {t(12)}')
    g(f'v_lshl_add_u32 {t(12)}, {t(5)}, 11, {t(12)}')
    g(f'v_add_u32 {vr(vWa)}, {XB}, {t(12)}')
    g(f'v_lshl_add_u32 {vr(vWc)}, {t(0)}, 8, {vr(vWa)}')
    for j in range(3):
        g(f's_add_u32 {sr(sT0)}, {sr(sW)}, {j}')
        g(f's_and_b32 {sr(sT0)}, {sr(sT0)}, 3')
        g(f's_cmp_eq_u32 {sr(sT0)}, 3')
        g(f's_cselect_b32 {sr(sD+j)}, -3, 1')
        g(f's_lshl_b32 {sr(sD+j)}, {sr(sD+j)}, 13')
    cs = f2u(math.log2(math.e) / math.sqrt(128.0))
    g(f's_mov_b32 {sr(sC)}, {cs:#x}')
    g(f's_mov_b32 {sr(sC+1)}, {cs:#x}')
    g(f's_mov_b32 {sr(sPass)}, 0')
    g(f's_mov_b32 {sr(sThr)}, {f2u(-1.0 if OPT["force_fallback"] else 2.0**24):#x}')
    for r in range(192):
        g(f'v_accvgpr_write_b32 {ar(aO+r)}, 0')
    g.c('---- Q projection: Q^T[128 x 288] = wq_h^T x_b^T, 36 k-steps, 3-deep chunk ring')
    g('s_waitcnt vmcnt(26)')
    g('s_barrier')
    stamp(g)
    for s in qreads(0):
        g(s)
    for s in range(36):
        e = s & 1
        base = aK + 32 * e
        mf = []
        for X in range(2):
            for tt in range(4):
                d = vr(vACC + 64*X + 16*tt, 16)
                mf.append(f'{MFMA} {d}, {ar(base+4*tt,4)}, {ar(base+20+4*X,4)}, {d if s else 0}')
        d = vr(vACC + 128, 16)
        mf.append(f'{MFMA} {d}, {ar(base+16,4)}, {ar(base+28,4)}, {d if s else 0}')
        if s == 35:
            mf = [mf[8]] + mf[:8]
        fill = []
        pre = []
        if (s & 3) == 3:
            c = s >> 2
            if c + 1 <= 7:
                pre.append('s_waitcnt vmcnt(13)')
            elif c + 1 == 8:
                pre.append('s_waitcnt vmcnt(8)')
            pre.append('s_barrier')
            if c + 1 <= 8:
                dlt = QBUF if ((c + 1) % 3) else (-2*QBUF) & 0xffffffff
                for rg in (vXa0, vWa, vXa1, vXc0, vXc1, vWc):
                    pre.append(f'v_add_u32 {vr(rg)}, {dlt:#x}, {vr(rg)}')
        if s < 35:
            fill += qreads(s + 1)
        dma = []
        if (s & 3) == 3:
            c = s >> 2
            if c + 3 <= 8:
                dma = qchunk_dma(c + 3)
            elif c == 6:
                dma = issue_kv_const(None, 'K', 0, 0)
            elif c == 7:
                dma = issue_kv_const(None, 'V', 0, 1) + issue_kv_const(None, 'K', 1, 2)
            elif c == 8:
                dma = issue_kv_const(None, 'V', 1, 3)
        pend = getattr(kernel1, 'pend', [])
        pend += dma
        g('s_waitcnt lgkmcnt(0)')
        for m in range(9):
            g(mf[m])
            if m == 0:
                for x in pre:
                    g(x)
            n = 0
            while fill and n < 3:
                g(fill.pop(0)); n += 1
            if not fill or m >= 1:
                k = 0
                while pend and n < 5:
                    x = pend.pop(0)
                    g(x); n += 1
                    if x.startswith('buffer'):
                        break
        assert not fill
        if (s & 3) == 2 or s == 35:
            for x in pend:
                g(x)
            pend = []
        kernel1.pend = pend
    stamp(g)
    g.c('---- scale, round to bf16; exchange the C tile')
    g('s_nop 7')
    def conv(src, dst):
        for k in range(8):
            g(f'v_pk_mul_f32 {vr(src+2*k,2)}, {vr(src+2*k,2)}, {sr(sC,2)}')
        for k in range(8):
            g(f'v_cvt_pk_bf16_f32 {vr(dst+k)}, {vr(src+2*k)}, {vr(src+2*k+1)}')
    EX = 4 * SLOT
    conv(vACC + 128, vQ + 64)
    g(f's_lshl_b32 {sr(sT0)}, {sr(sW)}, 11')
    g(f's_add_u32 {sr(sT0)}, {sr(sT0)}, {EX}')
    g(f'v_add_u32 {vr(vXa0)}, {sr(sT0)}, {vr(vL16)}')
    g(f'ds_write_b128 {vr(vXa0)}, {vr(vQ+64,4)}')
    g(f'ds_write_b128 {vr(vXa0)}, {vr(vQ+68,4)} offset:1024')
    for X in range(2):
        for tt in range(4):
            conv(vACC + 64*X + 16*tt, vQ + 32*X + 8*tt)
    g(f'v_add_u32 {vr(vWa)}, {EX}, {vr(vL16)}')
    g(f'v_mov_b32 {vr(vKa0)}, {vr(vKbase)}')
    g(f'v_xor_b32 {vr(vKa1)}, 32, {vr(vKbase)}')
    g(f'v_subrev_u32 {vr(12)}, {sr(sW8K)}, {vr(vKbase)}')
    g(f'v_xor_b32 {vr(14)}, 32, {vr(12)}')
    g('s_waitcnt vmcnt(24) lgkmcnt(0)')
    g('s_barrier')
    stamp(g)
    g.c('---- stand-in max: exact row max over the first 32 keys this wave sees')
    for i in range(8):
        g(kread(i))
    for i in range(8):
        g(f'ds_read_b128 {vr(vQ+64+4*i,4)}, {vr(vWa)} offset:{i*1024}')
    for i in range(8):
        g(kread(i, aV, 12, 14))
    g('s_waitcnt lgkmcnt(15)')
    for i in range(8):
        g(qk(0, 0, i, '0'))
    for i in range(8):
        g(qk(1, 1, i, '0'))
    g('s_waitcnt lgkmcnt(0)')
    for i in range(8):
        g(qk(2, 2, i, '0', aV))
    def maxtree(S, dst):
        g(f'v_max3_f32 {vr(dst)}, {vr(S)}, {vr(S+1)}, {vr(S+2)}')
        for k in range(3, 15, 2):
            g(f'v_max3_f32 {vr(dst)}, {vr(dst)}, {vr(S+k)}, {vr(S+k+1)}')
        g(f'v_max_f32 {vr(dst)}, {vr(dst)}, {vr(S+15)}')
    def setneg(X, m, tmp):
        g(f'v_mov_b32 {vr(tmp)}, {vr(m)}')
        g('s_nop 1')
        g(f'v_permlane32_swap_b32 {vr(tmp)}, {vr(m)}')
        g('s_nop 1')
        g(f'v_max_f32 {vr(m)}, {vr(m)}, {vr(tmp)}')
        g(f'v_xor_b32 {vr(m)}, 0x80000000, {vr(m)}')
        for r in range(16):
            g(f'v_mov_b32 {vr(vNEG+16*X+r)}, {vr(m)}')
    maxtree(vS, vT); setneg(0, vT, vT + 3)
    maxtree(vS + 16, vT + 1); setneg(1, vT + 1, vT + 3)
    maxtree(vS + 32, vT + 2); setneg(2, vT + 2, vT + 3)
    g.label('L1_main')
    g.c('entry: K0 visible, K frags of subtile w in aK, V0,K1,V1 issued, O = 0, -m blocks set')
    g('s_nop 1')
    for i in range(8):
        g(qk(2, 0, i, vr(vNEG + 32, 16)))
        for r in range(4):
            g(f'v_accvgpr_write_b32 {ar(aV+4*i+r)}, 0')
        g(f'v_mov_b32 {vr(vS+32+i)}, 0')
    for X in range(3):
        g(f'v_mov_b32 {vr(vLs+X)}, 0')
    g(f's_mov_b32 {sr(sSlotK)}, 0')
    g(f's_mov_b32 {sr(sSlotV)}, {4*SLOT}')
    g(f's_mov_b32 {sr(sKoff)}, {2*SLOT}')
    g(f's_mov_b32 {sr(sKoff2)}, {2*SLOT+4096}')
    g(f's_mov_b32 {sr(sVoff)}, {2*SLOT}')
    g(f's_mov_b32 {sr(sVoff2)}, {2*SLOT+4096}')
    g(f's_mov_b32 {sr(sCnt)}, 0')
    g('s_nop 3')
    stamp(g)
    body, gaps = build_loop()
    g.raw('.p2align 6')
    g.label('L1_loop')
    last = [x for x in body if x[2] == 143]
    for (k, tx, gi) in body:
        if gi == 143:
            break
        g(tx)
    lt = [x[1] for x in last]
    for x in lt[:-2]:
        g(x)
    g(f's_add_u32 {sr(sCnt)}, {sr(sCnt)}, 1')
    g(f's_cmp_lt_u32 {sr(sCnt)}, 16')
    for x in lt[-2:]:
        assert x.startswith('v_'), x
        g(x)
    g('s_cbranch_scc1 L1_loop')
    stamp(g)
    g.c('---- tail: PV of the last tile')
    g('s_nop 1')
    for p in range(8):
        g(pv(1, 2, p))
    g.c('---- epilogue')
    g(f'v_cmp_nle_f32 vcc, {vr(vLs)}, {sr(sThr)}'.replace('v_cmp_nle_f32 vcc', 'v_cmp_nle_f32_e64 vcc'))
    g(f'v_cmp_nle_f32_e64 s[4:5], {vr(vLs+1)}, {sr(sThr)}')
    g(f'v_cmp_nle_f32_e64 s[6:7], {vr(vLs+2)}, {sr(sThr)}')
    g('s_nop 1')
    g('s_or_b64 s[4:5], s[4:5], vcc')
    g('s_or_b64 s[4:5], s[4:5], s[6:7]')
    g('s_cselect_b32 s4, 1, 0')
    g(f'v_mov_b32 {vr(vT+4)}, s4')
    g(f'v_add_u32 {vr(vT+5)}, {sr(sW8K)}, {vr(vL16)}')
    g(f'v_add_u32 {vr(vT+6)}, {3*SLOT}, {vr(vT+5)}')
    g(f'v_lshrrev_b32 {vr(vT+7)}, 2, {vr(vL16)}')
    g(f'v_add_u32 {vr(vT+8)}, {sr(sW8K)}, {vr(vT+7)}')
    g('s_waitcnt vmcnt(0) lgkmcnt(0)')
    for j in range(16):
        off = (j >> 3) * SLOT + (j & 7) * 1024
        g(f'ds_write_b128 {vr(vT+6)}, {ar(aO+128+4*j,4)} offset:{off}')
    g(f'ds_write_b32 {vr(vT+8)}, {vr(vLs+2)}')
    g(f'ds_write_b32 {vr(vT+8)}, {vr(vT+4)} offset:256')
    def halfsum_rcp(l, tmp):
        g(f'v_mov_b32 {vr(tmp)}, {vr(l)}')
        g('s_nop 1')
        g(f'v_permlane32_swap_b32 {vr(tmp)}, {vr(l)}')
        g('s_nop 1')
        g(f'v_add_f32 {vr(l)}, {vr(l)}, {vr(tmp)}')
        g(f'v_rcp_f32 {vr(l)}, {vr(l)}')
        g('s_nop 0')
    vR = vT + 10
    def out_tile(X, qt_soff_reg, src_is_acc=True):
        for tt in range(4):
            b = vS + 16 * (tt & 1)
            for r in range(16):
                g(f'v_accvgpr_read_b32 {vr(b+r)}, {ar(aO+64*X+16*tt+r)}')
            for k in range(8):
                g(f'v_pk_mul_f32 {vr(b+2*k,2)}, {vr(b+2*k,2)}, {vr(vR,2)}')
            d = vT + 12 + 8 * (tt & 1)
            for k in range(8):
                g(f'v_cvt_pk_bf16_f32 {vr(d+k)}, {vr(b+2*k)}, {vr(b+2*k+1)}')
            for a in range(2):
                f = 2*tt + a
                so = qt_soff_reg if f < 4 else qt_soff_reg + 1
                g(f'buffer_store_dwordx4 {vr(d+4*a,4)}, {vr(vL16)}, {sr(sO,4)}, {sr(so)} offen offset:{(f&3)*1024}')
    g(f's_lshl_b32 s4, {sr(sW)}, 19')
    g('s_add_u32 s5, s4, 4096')
    g('s_add_u32 s6, s4, 262144')
    g(f's_add_u32 s7, s4, {262144+4096}')
    halfsum_rcp(vLs, vT + 9)
    g(f'v_mov_b32 {vr(vR)}, {vr(vLs)}')
    g(f'v_mov_b32 {vr(vR+1)}, {vr(vLs)}')
    out_tile(0, 4)
    g('s_waitcnt lgkmcnt(0)')
    g('s_barrier')
    g(f's_lshr_b32 {sr(sT0)}, {sr(sW)}, 1')
    g(f's_lshl_b32 {sr(sT0)}, {sr(sT0)}, 15')
    g(f's_and_b32 {sr(sT1)}, {sr(sW)}, 1')
    g(f's_lshl_b32 {sr(sT1)}, {sr(sT1)}, 12')
    g(f's_add_u32 {sr(sT0)}, {sr(sT0)}, {sr(sT1)}')
    g(f's_add_u32 {sr(sT0)}, {sr(sT0)}, {3*SLOT}')
    g(f'v_add_u32 {vr(vT+6)}, {sr(sT0)}, {vr(vL16)}')
    vM = vNEG
    for u in range(4):
        g(f'ds_read_b32 {vr(vT+28+u)}, {vr(vT+7)} offset:{u*8192+256}')
    for u in range(4):
        g(f'ds_read_b32 {vr(vT+32+u)}, {vr(vT+7)} offset:{u*8192}')
    g('s_waitcnt lgkmcnt(4)')
    g(f'v_or_b32 {vr(vT+28)}, {vr(vT+28)}, {vr(vT+29)}')
    g(f'v_or3_b32 {vr(vT+28)}, {vr(vT+28)}, {vr(vT+30)}, {vr(vT+31)}')
    g('s_nop 0')
    g(f'v_readfirstlane_b32 {sr(sT0)}, {vr(vT+28)}')
    g('s_nop 1')
    g(f's_andn2_b32 {sr(sT0)}, {sr(sT0)}, {sr(sPass)}')
    g('s_cbranch_scc1 L1_fallback')
    for u in range(4):
        for j in range(4):
            g(f'ds_read_b128 {vr(vQ+16*u+4*j,4)}, {vr(vT+6)} offset:{u*8192+j*1024}')
    halfsum_rcp(vLs + 1, vT + 9)
    g(f'v_mov_b32 {vr(vR)}, {vr(vLs+1)}')
    g(f'v_mov_b32 {vr(vR+1)}, {vr(vLs+1)}')
    out_tile(1, 6)
    g('s_waitcnt lgkmcnt(0)')
    g(f'v_add_f32 {vr(vT+32)}, {vr(vT+32)}, {vr(vT+33)}')
    g(f'v_add_f32 {vr(vT+34)}, {vr(vT+34)}, {vr(vT+35)}')
    g(f'v_add_f32 {vr(vLs+2)}, {vr(vT+32)}, {vr(vT+34)}')
    halfsum_rcp(vLs + 2, vT + 9)
    g(f'v_mov_b32 {vr(vR)}, {vr(vLs+2)}')
    g(f'v_mov_b32 {vr(vR+1)}, {vr(vLs+2)}')
    for k in range(8):
        g(f'v_pk_add_f32 {vr(vQ+2*k,2)}, {vr(vQ+2*k,2)}, {vr(vQ+16+2*k,2)}')
        g(f'v_pk_add_f32 {vr(vQ+32+2*k,2)}, {vr(vQ+32+2*k,2)}, {vr(vQ+48+2*k,2)}')
    for k in range(8):
        g(f'v_pk_add_f32 {vr(vQ+2*k,2)}, {vr(vQ+2*k,2)}, {vr(vQ+32+2*k,2)}')
    for k in range(8):
        g(f'v_pk_mul_f32 {vr(vQ+2*k,2)}, {vr(vQ+2*k,2)}, {vr(vR,2)}')
    for k in range(8):
        g(f'v_cvt_pk_bf16_f32 {vr(vQ+64+k)}, {vr(vQ+2*k)}, {vr(vQ+2*k+1)}')
    g(f's_lshl_b32 s4, {sr(sW)}, 11')
    g(f's_add_u32 s4, s4, {8*262144}')
    g(f'buffer_store_dwordx4 {vr(vQ+64,4)}, {vr(vL16)}, {sr(sO,4)}, s4 offen')
    g(f'buffer_store_dwordx4 {vr(vQ+68,4)}, {vr(vL16)}, {sr(sO,4)}, s4 offen offset:1024')
    if OPT['stamp']:
        stamp(g)
        g('s_waitcnt vmcnt(0)')
        stamp(g)
        emit_stamps(g, 36, 0)
    g.label('L1_done')
    g('s_endpgm')
    g.c('---- fallback: the stand-in was unsafe.  Scan all keys for the true row max, then redo.')
    g.label('L1_fallback')
    g(f's_mov_b32 {sr(sPass)}, 1')
    g('s_waitcnt vmcnt(0) lgkmcnt(0)')
    for X in range(3):
        g(f'v_mov_b32 {vr(vT+X)}, 0xff800000')
    g(f's_mov_b32 {sr(sKoff)}, 0')
    g(f's_mov_b32 {sr(sKoff2)}, 4096')
    g(f's_mov_b32 {sr(sCnt)}, 0')
    g.label('L1_scan')
    g('s_barrier')
    g(f's_mov_b32 m0, {sr(sW8K)}')
    g('s_nop 0')
    for j in range(4):
        g(dma_kv('K', j, sKoff, sKoff2))
    g(f's_add_u32 m0, {sr(sW8K)}, 4096')
    g('s_nop 0')
    for j in range(4, 8):
        g(dma_kv('K', j, sKoff, sKoff2))
    g(f's_add_u32 {sr(sKoff)}, {sr(sKoff)}, {SLOT}')
    g(f's_add_u32 {sr(sKoff2)}, {sr(sKoff2)}, {SLOT}')
    g('s_waitcnt vmcnt(0)')
    g('s_barrier')
    g(f'v_mov_b32 {vr(vKa0)}, {vr(12)}')
    g(f'v_mov_b32 {vr(vKa1)}, {vr(14)}')
    g(f's_mov_b32 {sr(sT1)}, 0')
    g.label('L1_scan_sub')
    for i in range(8):
        g(kread(i))
    g(f'v_add_u32 {vr(vKa0)}, 8192, {vr(vKa0)}')
    g(f'v_add_u32 {vr(vKa1)}, 8192, {vr(vKa1)}')
    g('s_waitcnt lgkmcnt(0)')
    for X in range(3):
        for i in range(8):
            g(qk(X, X, i, '0'))
    g('s_nop 15')
    for X in range(3):
        for k in range(0, 16, 2):
            g(f'v_max3_f32 {vr(vT+X)}, {vr(vT+X)}, {vr(vS+16*X+k)}, {vr(vS+16*X+k+1)}')
    g(f's_add_u32 {sr(sT1)}, {sr(sT1)}, 1')
    g(f's_cmp_lt_u32 {sr(sT1)}, 4')
    g('s_cbranch_scc1 L1_scan_sub')
    g(f's_add_u32 {sr(sCnt)}, {sr(sCnt)}, 1')
    g(f's_cmp_lt_u32 {sr(sCnt)}, 16')
    g('s_cbranch_scc1 L1_scan')
    g('s_barrier')
    issue_kv_const(g, 'K', 0, 0)
    issue_kv_const(g, 'V', 0, 1)
    issue_kv_const(g, 'K', 1, 2)
    issue_kv_const(g, 'V', 1, 3)
    for X in range(3):
        setneg(X, vT + X, vT + 3)
    for r in range(192):
        g(f'v_accvgpr_write_b32 {ar(aO+r)}, 0')
    g(f'v_mov_b32 {vr(vKa0)}, {vr(vKbase)}')
    g(f'v_xor_b32 {vr(vKa1)}, 32, {vr(vKbase)}')
    g('s_waitcnt vmcnt(24)')
    g('s_barrier')
    for i in range(8):
        g(kread(i))
    g('s_waitcnt lgkmcnt(0)')
    g('s_branch L1_main')
    return gaps

def emit_stamps(g, sws, kidx):
    n = nstamp[0]
    g('s_waitcnt lgkmcnt(0)')
    g(f's_add_u32 s8, {sr(sws)}, {STAMP_OFF + kidx*(1<<20)}')
    g(f's_addc_u32 s9, {sr(sws+1)}, 0')
    g('s_mov_b32 s10, 0x100000')
    g('s_mov_b32 s11, 0x20000')
    g('s_lshl_b32 s4, s2, 2')
    g(f's_add_u32 s4, s4, {sr(sW)}')
    g('s_lshl_b32 s4, s4, 7')
    g('s_mov_b64 exec, 1')
    g('v_mov_b32 v2, 0')
    for i in range(n):
        g(f'v_mov_b32 v4, {sr(sST+2*i)}')
        g(f'v_mov_b32 v5, {sr(sST+2*i+1)}')
        g(f'buffer_store_dwordx2 v[4:5], v2, s[8:11], s4 offen offset:{8*i}')
        g('s_nop 1')
    g('s_getreg_b32 s5, hwreg(HW_REG_XCC_ID)')
    g('v_mov_b32 v4, s5')
    g(f'buffer_store_dword v4, v2, s[8:11], s4 offen offset:120')
    nstamp[0] = 0

def kernel2(g):
    D = OPT['k2_D']
    sO2, sWO, sOUT = 8, 12, 16
    sWL = 39
    vOo, vWo, vRa, vL = 2, 5, 6, 1
    vOF = 16
    vWF = vOF + 12 * D
    assert vWF + 16 <= 256
    RING = D * 2048
    REG = max(RING, 24576)
    g.raw('.globl oproj_kernel\n.p2align 8\n.type oproj_kernel,@function')
    g.label('oproj_kernel')
    g('s_cmp_ge_u32 s2, 216')
    g('s_cbranch_scc1 L2_done')
    stamp(g)
    g('s_load_dwordx4 s[28:31], s[0:1], 32')
    g('s_load_dwordx2 s[36:37], s[0:1], 56')
    g('v_lshrrev_b32 v7, 6, v0')
    g('v_and_b32 v8, 63, v0')
    g(f'v_readfirstlane_b32 {sr(sW)}, v7')
    g('s_and_b32 s3, s2, 7')
    g('s_lshr_b32 s4, s2, 3')
    g('s_mul_i32 s5, s4, 57')
    g('s_lshr_b32 s5, s5, 9')
    g('s_mul_i32 s6, s5, 9')
    g('s_sub_u32 s6, s4, s6')
    g('s_mul_i32 s7, s3, 3')
    g('s_add_u32 s7, s7, s5')
    g(f'v_lshlrev_b32 {vr(vL)}, 4, v8')
    g(f'v_lshl_add_u32 {vr(vOo)}, v7, 16, {vr(vL)}')
    g(f'v_add_u32 {vr(vOo+1)}, 262144, {vr(vOo)}')
    g(f'v_add_u32 {vr(vOo+2)}, 524288, {vr(vOo)}')
    g('v_bfe_u32 v9, v8, 2, 3')
    g('v_lshl_add_u32 v9, v7, 10, v9')
    g('v_mul_u32_u24 v9, 1152, v9')
    g('v_lshrrev_b32 v10, 5, v8')
    g('v_lshl_add_u32 v9, v10, 6, v9')
    g('v_and_b32 v11, 3, v8')
    g(f'v_lshl_add_u32 {vr(vWo)}, v11, 4, v9')
    g(f's_mul_i32 {sr(sWL)}, {sr(sW)}, {REG}')
    g('s_waitcnt lgkmcnt(0)')
    g(f's_mul_i32 s4, s7, {3*262144}')
    g(f's_add_u32 {sr(sO2)}, s36, s4')
    g(f's_addc_u32 {sr(sO2+1)}, s37, 0')
    g(f's_mov_b32 {sr(sO2+2)}, {3*262144}')
    g(f's_mov_b32 {sr(sO2+3)}, 0x20000')
    g('s_lshl_b32 s4, s6, 7')
    g(f's_add_u32 {sr(sWO)}, s28, s4')
    g(f's_addc_u32 {sr(sWO+1)}, s29, 0')
    g(f's_sub_u32 {sr(sWO+2)}, {4096*1152}, s4')
    g(f's_mov_b32 {sr(sWO+3)}, 0x20000')
    def loads(s):
        sl = s % D
        w = [f's_add_u32 m0, {sr(sWL)}, {sl*2048}',
             f's_mov_b32 {sr(sT0)}, {s*18432}',
             f'buffer_load_dwordx4 {vr(vWo)}, {sr(sWO,4)}, {sr(sT0)} offen lds',
             f's_mov_b32 {sr(sT0)}, {s*18432+9216-1024}',
             f'buffer_load_dwordx4 {vr(vWo)}, {sr(sWO,4)}, {sr(sT0)} offen offset:1024 lds']
        if (s & 3) == 0:
            w.append(f's_mov_b32 {sr(sT1)}, {(s>>2)*4096}')
        o = [f'buffer_load_dwordx4 {vr(vOF+12*sl+4*X,4)}, {vr(vOo+X)}, {sr(sO2,4)}, {sr(sT1)} offen offset:{(s&3)*1024}' for X in range(3)]
        return w, o
    for s in range(D):
        w, o = loads(s)
        for x in w + o:
            g(x)
    g(f's_mul_i32 s5, s7, {96*1152}')
    g('s_add_u32 s4, s4, s5')
    g(f's_add_u32 {sr(sOUT)}, s30, s4')
    g(f's_addc_u32 {sr(sOUT+1)}, s31, 0')
    g(f's_sub_u32 {sr(sOUT+2)}, {2304*1152}, s4')
    g(f's_mov_b32 {sr(sOUT+3)}, 0x20000')
    g('v_bfe_u32 v9, v8, 2, 2')
    g('v_lshlrev_b32 v9, 6, v9')
    g('v_lshl_add_u32 v9, v10, 8, v9')
    g('v_bfe_u32 v11, v8, 4, 1')
    g('v_lshl_add_u32 v9, v11, 5, v9')
    g('v_and_b32 v11, 1, v8')
    g('v_lshl_add_u32 v9, v11, 4, v9')
    g('v_bfe_u32 v11, v8, 1, 1')
    g('v_lshl_add_u32 v9, v11, 3, v9')
    g(f'v_add_u32 {vr(vRa)}, {sr(sWL)}, v9')
    def reads(s):
        sl = s % D
        b = vWF + 8 * (s & 1)
        return [f'ds_read_b64_tr_b16 {vr(b+4*t+2*jj,2)}, {vr(vRa)} offset:{sl*2048+jj*1024+t*512}' for t in range(2) for jj in range(2)]
    g(f's_waitcnt vmcnt({5*D-2})')
    stamp(g)
    for x in reads(0):
        g(x)
    NS = 64
    for s in range(NS):
        sl = s % D
        issued_to = min(s + D - 1, NS - 1)
        if s + 1 < NS:
            n = 3 + 5 * (issued_to - (s + 1))
            g(f's_waitcnt vmcnt({n})')
            for x in reads(s + 1):
                g(x)
            g('s_waitcnt lgkmcnt(4)')
        else:
            g('s_waitcnt vmcnt(0) lgkmcnt(0)')
        w, o = loads(s + D) if s + D < NS else ([], [])
        b = vWF + 8 * (s & 1)
        for X in range(3):
            for tt in range(2):
                d = ar(16 * (2*X + tt), 16)
                g(f'{MFMA} {d}, {vr(b+4*tt,4)}, {vr(vOF+12*sl+4*X,4)}, {d if s else 0}')
                m = 2*X + tt
                if w and m == 0:
                    for x in w[:3]:
                        g(x)
                if w and m == 1:
                    for x in w[3:]:
                        g(x)
                if o and m in (2, 4):
                    g(o[m//2 - 1])
        if o:
            g('s_nop 0')
            g(o[2])
    stamp(g)
    g('s_nop 15')
    g(f'v_add_u32 v9, {sr(sWL)}, {vr(vL)}')
    for j in range(24):
        g(f'ds_write_b128 v9, {ar(4*j,4)} offset:{j*1024}')
    g(f's_mul_i32 s4, {sr(sW)}, 6144')
    g(f'v_add_u32 v9, s4, {vr(vL)}')
    g(f'v_add_u32 v10, {2*REG}, v9')
    g('v_and_b32 v11, 31, v8')
    g('v_mul_u32_u24 v11, 1152, v11')
    g('v_lshrrev_b32 v12, 5, v8')
    g('v_lshl_add_u32 v11, v12, 4, v11')
    for e in range(3):
        g(f's_mul_i32 s4, {sr(sW)}, 3')
        g(f's_add_u32 s4, s4, {e}')
        g('s_lshr_b32 s5, s4, 2')
        g(f's_mul_i32 s5, s5, 36864')
        g('s_and_b32 s4, s4, 3')
        g('s_lshl_b32 s4, s4, 5')
        g(f's_add_u32 {sr(44+e)}, s4, s5')
    g('s_waitcnt lgkmcnt(0)')
    g('s_barrier')
    for u in range(4):
        for j in range(6):
            g(f'ds_read_b128 {vr(16+24*u+4*j,4)}, {"v9" if u < 2 else "v10"} offset:{(u&1)*REG+j*1024}')
    g('s_waitcnt lgkmcnt(12)')
    for k in range(12):
        g(f'v_pk_add_f32 {vr(16+2*k,2)}, {vr(16+2*k,2)}, {vr(40+2*k,2)}')
    g('s_waitcnt lgkmcnt(0)')
    for k in range(12):
        g(f'v_pk_add_f32 {vr(64+2*k,2)}, {vr(64+2*k,2)}, {vr(88+2*k,2)}')
    for k in range(12):
        g(f'v_pk_add_f32 {vr(16+2*k,2)}, {vr(16+2*k,2)}, {vr(64+2*k,2)}')
    for k in range(12):
        g(f'v_cvt_pk_bf16_f32 {vr(112+k)}, {vr(16+2*k)}, {vr(16+2*k+1)}')
    for e in range(3):
        g(f'buffer_store_dwordx4 {vr(112+4*e,4)}, v11, {sr(sOUT,4)}, {sr(44+e)} offen')
    if OPT['stamp']:
        stamp(g)
        g('s_waitcnt vmcnt(0)')
        stamp(g)
        emit_stamps(g, 36, 1)
    g.label('L2_done')
    g('s_endpgm')
    return 4 * REG

def kd(name, nv, acc):
    return f'''.p2align 6
.amdhsa_kernel {name}
  .amdhsa_next_free_vgpr {nv}
  .amdhsa_next_free_sgpr 102
  .amdhsa_accum_offset {acc}
  .amdhsa_group_segment_fixed_size 0
  .amdhsa_kernarg_size 64
  .amdhsa_user_sgpr_count 2
  .amdhsa_user_sgpr_kernarg_segment_ptr 1
  .amdhsa_system_sgpr_workgroup_id_x 1
  .amdhsa_float_denorm_mode_32 3
.end_amdhsa_kernel'''

HEAD = open(__file__.rsplit('/', 1)[0] + '/header.txt').read() if '/' in __file__ else open('header.txt').read()

def main():
    g = G()
    gaps = kernel1(g)
    lds2 = kernel2(g)
    out = HEAD.replace('@LDS2@', str(lds2))
    out += '.amdgcn_target "amdgcn-amd-amdhsa--gfx950"\n.text\n'
    out += '\n'.join(g.L) + '\n'
    out += '.section .rodata,"a"\n' + kd('attn_kernel', 512, 256) + '\n' + kd('oproj_kernel', 352, 256) + '\n'
    open(sys.argv[1], 'w').write(out)
    loads = [sum(c for _, c, _ in x) for x in gaps]
    print('gap loads:', ''.join(str(x) for x in loads), file=sys.stderr)

main()
```

```python
import sys, math, struct, re, os

OPT = dict(stamp=0, force_fallback=0, k2_D=6, k2_PH=8, nodma=0, map=1, qrot=0, pd=3, qsp=4, ipf=1,
           px=0, pwq=0, pos=2, pol=0, pwo=0, pkv=1, wopf=0)
for a in sys.argv[2:]:
    k, v = a.split('=')
    assert k in OPT, k
    OPT[k] = int(v)
POL = ['', ' nt', ' sc1', ' sc0 sc1', ' sc1 nt', ' sc0 sc1 nt', ' sc0']
pol = lambda k: POL[OPT[k]]

def f2u(x):
    return struct.unpack('<I', struct.pack('<f', x))[0]

class G:
    def __init__(self):
        self.L = []
    def __call__(self, s):
        self.L.append('    ' + s)
    def many(self, xs):
        for x in xs:
            self(x)
    def label(self, s):
        self.L.append(s + ':')
    def c(self, s):
        self.L.append('    ; ' + s)
    def raw(self, s):
        self.L.append(s)

vr = lambda b, n=1: f'v{b}' if n == 1 else f'v[{b}:{b+n-1}]'
ar = lambda b, n=1: f'a{b}' if n == 1 else f'a[{b}:{b+n-1}]'
sr = lambda b, n=1: f's{b}' if n == 1 else f's[{b}:{b+n-1}]'
MF = 'v_mfma_f32_16x16x32_bf16'
STAMP_OFF = 32 << 20

class Sched:
    def __init__(self, cap=2):
        self.mf = []
        self.gaps = []
        self.cap = cap
    def add(self, text, needs=()):
        self.mf.append((text, tuple(needs)))
        self.gaps.append([])
        return len(self.mf) - 1
    @staticmethod
    def cost(t):
        return 2 if t.startswith('v_exp') else 1
    def load(self, g):
        return sum(self.cost(t) for t, _ in self.gaps[g])
    def put(self, g, text, tag=None):
        self.gaps[g].append((text, tag))
        return g
    def place(self, text, lo, hi, tag=None, cap=None):
        cap = cap or self.cap
        hi = min(hi, len(self.mf) - 1)
        assert lo <= hi, (text, lo, hi)
        for g in range(lo, hi + 1):
            if self.load(g) + self.cost(text) <= cap:
                return self.put(g, text, tag)
        best = min(range(lo, hi + 1), key=self.load)
        return self.put(best, text, tag)
    def seq(self, texts, lo, hi, step=0):
        g = lo
        for t in texts:
            tag = None
            if isinstance(t, tuple):
                t, tag = t
            g = self.place(t, g, hi, tag) + step
        return g
    def order(self, g):
        a = [x for x in self.gaps[g] if not x[0].startswith('v_')]
        b = [x for x in self.gaps[g] if x[0].startswith('v_')]
        return a + b
    def resolve(self, pending=(), look=6, mind=5):
        n = len(self.mf)
        waits = {}
        def issued_upto(g):
            out = list(pending)
            for x in range(g):
                out += [(tag, x) for t, tag in self.order(x) if t.startswith('ds_')]
            return out
        done = 0
        fixed = {}
        for x in range(n):
            for t, _ in self.gaps[x]:
                if 'lgkmcnt(0)' in t:
                    fixed[x] = True
        for m in range(n):
            if (m - 1) in fixed:
                done = max(done, len(issued_upto(m - 1)))
            iss = issued_upto(m)
            last = -1
            for tag in self.mf[m][1]:
                idx = [k for k, (tg, _) in enumerate(iss) if tg == tag]
                if idx:
                    last = max(last, idx[-1])
            if last >= done:
                lg = iss[last][1]
                if m == 0:
                    pos = -1
                else:
                    cands = [p for p in range(m - 1, max(m - 5, lg, -1), -1) if p - lg >= mind and self.load(p) < self.cap]
                    pos = cands[0] if cands else m - 1
                    assert pos > lg, (self.mf[m], lg)
                cur = issued_upto(max(pos, 0))
                need = last + 1
                while need < len(cur) and cur[need][1] <= pos - look:
                    need += 1
                cnt = min(len(cur) - need, 15)
                done = len(cur) - cnt
                w = (f's_waitcnt lgkmcnt({cnt})', None)
                if pos < 0:
                    waits[-1] = w[0]
                else:
                    self.gaps[pos].insert(0, w)
        self.pre = waits.get(-1)
        allops = issued_upto(n)
        return [(tag, g - n) for tag, g in allops[done:]]
    def emit(self, g):
        if getattr(self, 'pre', None):
            g(self.pre)
        for m in range(len(self.mf)):
            g(self.mf[m][0])
            for t, _ in self.order(m):
                g(t)
    def loads(self):
        return ''.join(str(self.load(x)) for x in range(len(self.mf)))

sX, sWQ, sK, sV, sO = 8, 12, 16, 20, 24
sW, sW4K, sW1K = 38, 39, 56
sT0, sT1, sT2 = 40, 41, 42
sSlot, sOld, sOff, sCnt, sPass = 43, 44, 45, 46, 47
sCx, sCw, sCh = 48, 49, 50
sC = 54
sThr = 58
sST, sRT = 60, 90
vL16, vXvo, vW0, vW1, vKV0, vKV1 = 1, 2, 3, 4, 5, 6
vKb, vVb = 7, 9
vXa, vXc, vWa = 11, 12, 13
vKa, vVa = 11, 13
vQ = 24
vACC = 104
vNEG = 104
vP = 124
vS = 204
vT = 216
aO, aL, aONE, aK, aV = 0, 160, 180, 184, 216
QBUF, XB, SLOT = 53248, 36864, 32768
EXCH = 16384

nstamp = [0]
def stamp(g, mode=1):
    if OPT['stamp'] & mode:
        if nstamp[0] == 0:
            g(f's_memrealtime {sr(sRT, 2)}')
        g(f's_memtime {sr(sST + 2*nstamp[0], 2)}')
        nstamp[0] += 1

def dma_kv(kind, j, soff):
    srd = sK if kind == 'K' else sV
    off = f' offset:{j*1024}' if j else ''
    return f'buffer_load_dwordx4 {vr(vKV1 if j & 1 else vKV0)}, {sr(srd,4)}, {sr(soff)} offen{off}{pol("pkv")} lds'

def pair_const(u):
    slot = (u % 5) * SLOT
    out = [f's_add_u32 m0, {sr(sW4K)}, {slot}', f's_mov_b32 {sr(sT0)}, {u*16384}']
    out += [dma_kv('K', j, sT0) for j in range(4)]
    if u > 0:
        out += [f's_add_u32 m0, {sr(sW4K)}, {slot+16384}', 's_nop 0']
        out += [dma_kv('V', j, sT0) for j in range(4)]
    return out

def qchunk_dma(j):
    out = []
    buf = (j % 3) * QBUF
    for p in range(4):
        out.append(f's_add_u32 m0, {sr(sW4K)}, {buf + XB + p*1024}')
        out.append(f's_add_u32 {sr(sT0)}, {sr(sCw)}, {p*32768}')
        out.append(f'buffer_load_dwordx4 {vr(vW1 if p & 2 else vW0)}, {sr(sWQ,4)}, {sr(sT0)} offen{pol("pwq")} lds')
    for p in range(9):
        out.append(f's_add_u32 m0, {sr(sW1K)}, {buf + p*4096}')
        out.append(f's_add_u32 {sr(sT0)}, {sr(sCx)}, {p*36864}')
        out.append(f'buffer_load_dwordx4 {vr(vXvo)}, {sr(sX,4)}, {sr(sT0)} offen{pol("px")} lds')
    if OPT['qrot'] == 3:
        if j < 8:
            out += [f's_add_u32 {sr(sCx)}, {sr(sCh + (j+1) % 3)}, {((j+1)//3)*384}', f's_lshl_b32 {sr(sCw)}, {sr(sCx)}, 12']
        return out
    out += [f's_add_u32 {sr(sCx)}, {sr(sCx)}, 128',
            f's_sub_u32 {sr(sT0)}, {sr(sCx)}, 1152',
            f's_min_u32 {sr(sCx)}, {sr(sCx)}, {sr(sT0)}',
            f's_lshl_b32 {sr(sCw)}, {sr(sCx)}, 12']
    return out

def kread(kt, i, dst=None):
    dst = aK + 16*(kt & 1) if dst is None else dst
    return f'ds_read_b128 {ar(dst+4*i,4)}, {vr(vKa+(kt>>1))} offset:{i*256+(kt&1)*4096}'
def vread(dt, a, jj):
    return f'ds_read_b64_tr_b16 {ar(aV+8*(dt&3)+4*a+2*jj,2)}, {vr(vVa+2*a+(dt&1))} offset:{16384+jj*4096+(dt>>1)*256}'
def Preg(buf, X, a):
    return vP + 40*buf + 8*X + 4*a

CHAINS = [(kt, X) for kt in range(4) for X in range(5 if kt < 2 else 4)]
PVS = [(dt, X, a) for dt in range(8) for X in range(5) for a in range(2 if X < 4 else 1)]
SUMS = [(X, a) for X in range(5) for a in range(2 if X < 4 else 1)]

def qk_mf(c, i, cinit=None, dst=None):
    kt, X = CHAINS[c]
    d = vr(vS + 4*(c % 3) if dst is None else dst, 4)
    ci = vr(vNEG + 4*X, 4) if cinit is None else cinit
    return f'{MF} {d}, {ar(aK+16*(kt&1)+4*i,4)}, {vr(vQ+16*X+4*i,4)}, {d if i else ci}', [('K', kt & 1, i)]
def pv_mf(j, buf):
    dt, X, a = PVS[j]
    o = ar(aO + 32*X + 4*dt, 4)
    return f'{MF} {o}, {ar(aV+8*(dt&3)+4*a,4)}, {vr(Preg(buf,X,a),4)}, {o}', [('V', dt & 3, a)]
def sum_mf(j, buf):
    X, a = SUMS[j]
    o = ar(aL + 4*X, 4)
    return f'{MF} {o}, {ar(aONE,4)}, {vr(Preg(buf,X,a),4)}, {o}', []
def softmax_ops(c, buf, src=None):
    kt, X = CHAINS[c]
    S = vS + 4*(c % 3) if src is None else src
    P = Preg(buf, X, kt >> 1) + 2*(kt & 1)
    ex = [f'v_exp_f32 {vr(S+r)}, {vr(S+r)}' for r in range(4)]
    cv = [f'v_cvt_pk_bf16_f32 {vr(P+k)}, {vr(S+2*k)}, {vr(S+2*k+1)}' for k in range(2)]
    return ex, cv

PD = OPT['pd']
VMW = 8*(PD - 2)
sDst = sOld
def slot_update():
    return [f's_add_u32 {sr(sSlot)}, {sr(sSlot)}, {SLOT}',
            f's_sub_u32 {sr(sT0)}, {sr(sSlot)}, {5*SLOT}',
            f's_min_u32 {sr(sSlot)}, {sr(sSlot)}, {sr(sT0)}']
def dst_update():
    if PD == 5:
        return [f's_add_u32 {sr(sT1)}, {sr(sSlot)}, {sr(sW4K)}']
    return [f's_add_u32 {sr(sT1)}, {sr(sSlot)}, {PD*SLOT}',
            f's_sub_u32 {sr(sT0)}, {sr(sT1)}, {5*SLOT}',
            f's_min_u32 {sr(sT1)}, {sr(sT1)}, {sr(sT0)}',
            f's_add_u32 {sr(sT1)}, {sr(sT1)}, {sr(sW4K)}']
def addr_update():
    return [f'v_add_u32 {vr(vKa)}, {sr(sSlot)}, {vr(vKb)}',
            f'v_add_u32 {vr(vVa)}, {sr(sSlot)}, {vr(vVb)}',
            f'v_add_u32 {vr(vVa+2)}, {sr(sSlot)}, {vr(vVb+1)}',
            f'v_xor_b32 {vr(vVa+1)}, 32, {vr(vVa)}',
            f'v_xor_b32 {vr(vVa+3)}, 32, {vr(vVa+2)}',
            f'v_add_u32 {vr(vKa+1)}, {sr(sSlot)}, {vr(vKb+1)}']

def build_stage(buf):
    s = Sched()
    for c in range(18):
        for i in range(4):
            s.add(*qk_mf(c, i))
        for j in range(4):
            s.add(*pv_mf(4*c + j, buf))
    for j in range(9):
        s.add(*sum_mf(j, buf))
    for c in range(18):
        ex, cv = softmax_ops(c, buf ^ 1)
        for r in range(4):
            s.put(8*c + 9 + 2*r, ex[r])
        s.put(8*c + 12, cv[0])
        s.put(8*c + 16, cv[1])
    BAR = 108
    for kt, lo in ((1, 0), (2, 37), (3, 77)):
        s.seq([(kread(kt, i), ('K', kt & 1, i)) for i in range(4)], lo, lo + 20, 1)
    first = lambda dt: 8*((9*dt) >> 2) + 4 + ((9*dt) & 3)
    lastu = lambda dt: 8*((9*dt+8) >> 2) + 4 + ((9*dt+8) & 3)
    for dt in range(2, 8):
        lo = max(first(dt) - 44, lastu(dt - 4) + 1 if dt >= 4 else 0, 0)
        s.seq([(vread(dt, a, jj), ('V', dt & 3, a)) for a in range(2) for jj in range(2)], lo, min(lo + 18, BAR - 8), 1)
    s.seq(dst_update() + slot_update(), 60, 100)
    s.gaps[BAR] = [x for x in s.gaps[BAR]]
    moved = s.gaps[BAR]; s.gaps[BAR] = []
    s.put(BAR, f's_waitcnt vmcnt({VMW})' + (' lgkmcnt(0)' if PD == 5 else ''))
    s.put(BAR, 's_barrier')
    for t, tag in moved:
        s.put(BAR, t, tag)
    au = addr_update()
    s.seq(au, BAR - 7, BAR + 6)
    g0 = BAR + 2
    ga = max(x for x in range(len(s.gaps)) if any(t in au[:5] for t, _ in s.gaps[x])) + 1
    s.seq([(kread(0, i), ('K', 0, i)) for i in range(4)], max(g0, ga), 140, 1)
    s.seq([(vread(0, a, jj), ('V', 0, a)) for a in range(2) for jj in range(2)], max(g0, ga, lastu(4) + 1), 146, 1)
    s.seq([(vread(1, a, jj), ('V', 1, a)) for a in range(2) for jj in range(2)], max(g0, ga, lastu(5) + 1), 152, 1)
    return s, BAR

def add_dma(s, BAR, nxt):
    if OPT['nodma']:
        return
    g = s.place(f's_mov_b32 m0, {sr(sT1)}', BAR + 1, BAR + 8) + 1
    for j in range(4):
        g = s.place(dma_kv('K', j, sOff), g, g + 8) + 6
    assert g < 160
    g = nxt.place(f's_add_u32 m0, {sr(sT1)}, 16384', 0, 6) + 1
    for j in range(4):
        g = nxt.place(dma_kv('V', j, sOff), g, g + 8) + 8
    g = nxt.place(f's_add_u32 {sr(sOff)}, {sr(sOff)}, 16384', g - 6, g + 8)
    assert g < 58

def code_prefetch(g, start, end, srd, vtmp, vdst):
    g(f's_getpc_b64 {sr(srd,2)}')
    g.label(f'Lpc_{start[:4]}')
    g(f's_mov_b32 {sr(srd+2)}, {end}-Lpc_{start[:4]}')
    g(f's_mov_b32 {sr(srd+3)}, 0x20000')
    g(f'v_lshlrev_b32 {vr(vtmp)}, 7, v0')
    g('s_bfe_u32 s7, s2, 0x10003')
    g('s_lshl_b32 s7, s7, 15')
    g(f'buffer_load_dword {vr(vdst)}, {vr(vtmp)}, {sr(srd,4)}, s7 offen')

def kernel1(g):
    g.raw('.globl attn_kernel\n.p2align 8\n.type attn_kernel,@function')
    g.label('attn_kernel')
    g('s_cmp_ge_u32 s2, 256')
    g('s_cbranch_scc1 L1_done')
    stamp(g, 3)
    g('s_load_dwordx4 s[28:31], s[0:1], 0')
    g('s_load_dwordx4 s[32:35], s[0:1], 16')
    g('s_load_dwordx2 s[36:37], s[0:1], 56')
    t = lambda i: vr(vQ + i)
    g(f'v_lshrrev_b32 {t(0)}, 6, v0')
    g(f'v_and_b32 {t(1)}, 63, v0')
    g(f'v_readfirstlane_b32 {sr(sW)}, {t(0)}')
    if OPT['ipf']:
        code_prefetch(g, 'attn_kernel', 'L1_end', 24, 23, 22)
    if OPT['map'] == 0:
        g('s_and_b32 s3, s2, 7')
        g('s_lshr_b32 s4, s2, 3')
        g('s_mul_i32 s5, s4, 57'); g('s_lshr_b32 s5, s5, 9'); g('s_mul_i32 s5, s5, 9'); g('s_sub_u32 s5, s4, s5')
    else:
        g('s_and_b32 s3, s2, 1'); g('s_lshl_b32 s3, s3, 2'); g('s_bfe_u32 s5, s2, 0x20003'); g('s_add_u32 s3, s3, s5')
        g('s_bfe_u32 s4, s2, 0x20001'); g('s_lshl_b32 s4, s4, 3'); g('s_lshr_b32 s6, s2, 5'); g('s_add_u32 s4, s4, s6')
        g('s_lshl_b32 s5, s5, 1'); g('s_add_u32 s5, s5, s6'); g('s_sub_u32 s6, s5, 9'); g('s_min_u32 s5, s5, s6')
    if OPT['qrot'] == 3:
        g('s_mul_i32 s6, s5, 11'); g('s_lshr_b32 s6, s6, 5'); g('s_mul_i32 s6, s6, 3'); g('s_sub_u32 s5, s5, s6')
        g(f's_lshl_b32 {sr(sCh)}, s5, 7')
        for k in (1, 2):
            g(f's_add_u32 {sr(sCh+k)}, {sr(sCh+k-1)}, 128'); g(f's_sub_u32 s6, {sr(sCh+k)}, 384'); g(f's_min_u32 {sr(sCh+k)}, {sr(sCh+k)}, s6')
    if OPT['qrot']:
        g(f's_lshl_b32 {sr(sCx)}, s5, 7')
        g(f's_lshl_b32 {sr(sCw)}, s5, 19')
    else:
        g(f's_mov_b32 {sr(sCx)}, 0'); g(f's_mov_b32 {sr(sCw)}, 0')
    g(f's_lshl_b32 {sr(sW1K)}, {sr(sW)}, 10')
    g(f's_lshl_b32 {sr(sW4K)}, {sr(sW)}, 12')
    g(f'v_and_b32 {t(2)}, 3, {t(1)}')
    g(f'v_bfe_u32 {t(3)}, {t(1)}, 2, 2')
    g(f'v_lshrrev_b32 {t(4)}, 4, {t(1)}')
    g(f'v_lshlrev_b32 {t(8)}, 6, {t(4)}')
    g(f'v_lshl_add_u32 {t(8)}, {t(2)}, 4, {t(8)}')
    g(f'v_lshl_add_u32 {t(9)}, {t(3)}, 13, {t(8)}')
    g(f'v_lshl_add_u32 {vr(vW0)}, {t(0)}, 17, {t(9)}')
    g(f'v_xor_b32 {vr(vW1)}, 48, {vr(vW0)}')
    g(f'v_bfe_u32 {t(7)}, {t(1)}, 2, 3')
    g(f'v_lshl_add_u32 {t(9)}, {t(0)}, 3, {t(7)}')
    g(f'v_mul_u32_u24 {t(9)}, 1152, {t(9)}')
    g(f'v_and_b32 {t(6)}, 1, {t(0)}')
    g(f'v_lshlrev_b32 {t(10)}, 1, {t(6)}')
    g(f'v_xor_b32 {t(10)}, {t(10)}, {t(2)}')
    g(f'v_lshl_add_u32 {t(9)}, {t(10)}, 4, {t(9)}')
    g(f'v_lshrrev_b32 {t(5)}, 5, {t(1)}')
    g(f'v_lshl_add_u32 {vr(vXvo)}, {t(5)}, 6, {t(9)}')
    g('s_mul_i32 s6, s3, 331776')
    g('s_lshl_b32 s7, s4, 8')
    g(f's_mov_b32 {sr(sX+2)}, 331776')
    g(f's_mov_b32 {sr(sX+3)}, 0x20000')
    g(f's_sub_u32 {sr(sWQ+2)}, {576*8192}, s7')
    g(f's_mov_b32 {sr(sWQ+3)}, 0x20000')
    g('s_waitcnt lgkmcnt(0)')
    stamp(g, 3)
    g(f's_add_u32 {sr(sX)}, s28, s6')
    g(f's_addc_u32 {sr(sX+1)}, s29, 0')
    g(f's_add_u32 {sr(sWQ)}, s34, s7')
    g(f's_addc_u32 {sr(sWQ+1)}, s35, 0')
    g.many(qchunk_dma(0))
    stamp(g, 2)
    weave_from = len(g.L)
    g('s_lshl_b32 s5, s3, 5')
    g('s_add_u32 s5, s5, s4')
    g('s_lshl_b32 s6, s5, 19')
    g(f's_add_u32 {sr(sK)}, s30, s6')
    g(f's_addc_u32 {sr(sK+1)}, s31, 0')
    g(f's_mov_b32 {sr(sK+2)}, 524288')
    g(f's_mov_b32 {sr(sK+3)}, 0x20000')
    g(f's_add_u32 {sr(sV)}, s32, s6')
    g(f's_addc_u32 {sr(sV+1)}, s33, 0')
    g(f's_sub_u32 {sr(sV)}, {sr(sV)}, 16384')
    g(f's_subb_u32 {sr(sV+1)}, {sr(sV+1)}, 0')
    g(f's_mov_b32 {sr(sV+2)}, {524288+16384}')
    g(f's_mov_b32 {sr(sV+3)}, 0x20000')
    g(f's_mul_i32 s5, s3, {18*131072}')
    g('s_lshl_b32 s6, s4, 12')
    g('s_add_u32 s5, s5, s6')
    g(f's_add_u32 {sr(sO)}, s36, s5')
    g(f's_addc_u32 {sr(sO+1)}, s37, 0')
    g(f's_mov_b32 {sr(sO+2)}, {17*131072+4096}')
    g(f's_mov_b32 {sr(sO+3)}, 0x20000')
    g(f'v_lshlrev_b32 {vr(vL16)}, 4, {t(1)}')
    g(f'v_lshl_add_u32 {t(9)}, {t(3)}, 8, {t(8)}')
    g(f'v_lshl_add_u32 {vr(vKV0)}, {t(0)}, 12, {t(9)}')
    g(f'v_xor_b32 {vr(vKV1)}, 48, {vr(vKV0)}')
    g(f'v_and_b32 {t(11)}, 1, {t(4)}')
    g(f'v_lshl_or_b32 {t(12)}, {t(11)}, 1, {t(5)}')
    g(f'v_and_b32 {t(13)}, 1, {t(3)}')
    g(f'v_mul_u32_u24 {t(13)}, 3, {t(13)}')
    g(f'v_xor_b32 {t(12)}, {t(12)}, {t(13)}')
    g(f'v_lshlrev_b32 {t(12)}, 4, {t(12)}')
    g(f'v_lshl_add_u32 {t(12)}, {t(2)}, 6, {t(12)}')
    g(f'v_lshl_add_u32 {t(12)}, {t(3)}, 10, {t(12)}')
    g(f'v_lshl_add_u32 {vr(vKb)}, {t(6)}, 13, {t(12)}')
    g(f'v_xor_b32 {vr(vKb+1)}, 8192, {vr(vKb)}')
    g(f'v_mul_u32_u24 {t(13)}, 3, {t(11)}')
    g(f'v_lshrrev_b32 {t(14)}, 1, {t(2)}')
    g(f'v_xor_b32 {t(13)}, {t(13)}, {t(14)}')
    g(f'v_lshlrev_b32 {t(13)}, 4, {t(13)}')
    g(f'v_and_b32 {t(14)}, 1, {t(2)}')
    g(f'v_lshl_add_u32 {t(13)}, {t(14)}, 3, {t(13)}')
    g(f'v_lshl_add_u32 {t(13)}, {t(3)}, 6, {t(13)}')
    g(f'v_lshl_add_u32 {t(14)}, {t(4)}, 10, {t(13)}')
    g(f'v_lshl_add_u32 {vr(vVb)}, {t(6)}, 13, {t(14)}')
    g(f'v_xor_b32 {vr(vVb+1)}, 8192, {vr(vVb)}')
    g(f'v_lshl_add_u32 {t(14)}, {t(4)}, 11, {t(13)}')
    g(f'v_lshl_add_u32 {t(14)}, {t(6)}, 9, {t(14)}')
    g(f'v_add_u32 {vr(vWa)}, {XB}, {t(14)}')
    g(f'v_xor_b32 {vr(vWa+1)}, 32, {vr(vWa)}')
    g(f'v_xor_b32 {vr(vWa+2)}, 512, {vr(vWa)}')
    g(f'v_xor_b32 {vr(vWa+3)}, 512, {vr(vWa+1)}')
    g(f'v_bfe_u32 {t(14)}, {t(1)}, 3, 1')
    g(f'v_lshlrev_b32 {t(15)}, 1, {t(14)}')
    g(f'v_xor_b32 {t(15)}, {t(15)}, {t(4)}')
    g(f'v_lshlrev_b32 {t(15)}, 4, {t(15)}')
    g(f'v_lshl_add_u32 {t(15)}, {t(14)}, 10, {t(15)}')
    g(f'v_and_b32 {t(14)}, 7, {t(1)}')
    g(f'v_lshl_add_u32 {t(15)}, {t(14)}, 6, {t(15)}')
    g(f'v_lshl_add_u32 {vr(vXa)}, {t(0)}, 13, {t(15)}')
    g(f'v_lshrrev_b32 {t(14)}, 1, {t(0)}')
    g(f'v_lshl_add_u32 {t(15)}, {t(14)}, 11, {t(15)}')
    g(f'v_add_u32 {vr(vXc)}, 32768, {t(15)}')
    cs = f2u(math.log2(math.e) / math.sqrt(128.0))
    g(f's_mov_b32 {sr(sC)}, {cs:#x}')
    g(f's_mov_b32 {sr(sC+1)}, {cs:#x}')
    g(f's_mov_b32 {sr(sPass)}, 0')
    g(f's_mov_b32 {sr(sThr)}, {f2u(-1.0 if OPT["force_fallback"] else 2.0**24):#x}')
    g(f'v_cmp_eq_u32 vcc, 0, {t(2)}')
    g(f'v_mov_b32 {t(14)}, 0x3f803f80')
    g('s_nop 0')
    g(f'v_cndmask_b32 {t(14)}, 0, {t(14)}, vcc')
    for r in range(4):
        g(f'v_accvgpr_write_b32 {ar(aONE+r)}, {t(14)}')
    for r in range(180):
        g(f'v_accvgpr_write_b32 {ar(aO+r)}, 0')
    g.c('---- Q projection: Q^T = wq_h^T x_b^T, 9 chunks of 64, 3-deep LDS ring')
    def xread(j, X, i):
        a = vXa if X < 4 else vXc
        off = i*512 + (X*2048 if X < 4 else 0)
        return (f'ds_read_b128 {vr(vQ+40*(j&1)+8*X+4*i,4)}, {vr(a)} offset:{off}', ('X', j & 1, X, i))
    def wread(tau, i, jj):
        return (f'ds_read_b64_tr_b16 {ar(aV+8*(tau&3)+4*i+2*jj,2)}, {vr(vWa+2*(tau>>2)+(tau&1))} offset:{i*8192+jj*1024+((tau>>1)&1)*256}', ('W', tau & 3, i))
    wr = lambda tau: [wread(tau, i, jj) for i in range(2) for jj in range(2)]
    xr = lambda j, X: [xread(j, X, i) for i in range(2)]
    s = Sched(cap=3)
    gs = {}
    def acc(X, tau):
        return vACC + 32*X + 4*tau
    for j in range(9):
        for tau in range(8):
            gs[(j, tau)] = len(s.mf)
            for X in range(5 if tau < 4 else 4):
                for i in range(2):
                    d = vr(acc(X, tau), 4)
                    s.add(f'{MF} {d}, {ar(aV+8*(tau&3)+4*i,4)}, {vr(vQ+40*(j&1)+8*X+4*i,4)}, {d if (j or i) else 0}',
                          [('W', tau & 3, i), ('X', j & 1, X, i)])
    pre = xr(0, 0) + wr(0) + xr(0, 1) + xr(0, 2) + xr(0, 3) + xr(0, 4) + wr(1) + wr(2)
    for j in range(9):
        b0 = gs[(j, 0)]
        for tau in range(3, 8):
            lo = gs[(j, tau - 3)] + 1
            s.seq(wr(tau), lo, lo + 7)
        bar = b0 + 52
        vm = 13 if j + 1 <= 7 else (4 if j + 1 == 8 else None)
        s.put(bar, 's_waitcnt ' + (f'vmcnt({vm}) ' if vm is not None else '') + 'lgkmcnt(0)')
        s.put(bar, 's_barrier')
        if j < 8:
            dlt = QBUF if ((j + 1) % 3) else (-2*QBUF) & 0xffffffff
            s.seq([f'v_add_u32 {vr(rg)}, {dlt:#x}, {vr(rg)}' for rg in (vXa, vWa, vWa+1, vXc, vWa+2, vWa+3)], bar - 4, bar - 1)
            gq = s.seq(xr(j+1, 0) + wr(0) + xr(j+1, 1) + xr(j+1, 2) + xr(j+1, 3) + xr(j+1, 4), bar + 1, bar + 12)
            gq = s.seq(wr(1), max(gq, gs[(j, 6)] + 1), b0 + 71)
            s.seq(wr(2), max(gq, gs[(j, 7)] + 1), b0 + 71)
        if j + 3 <= 8:
            dma = qchunk_dma(j + 3)
        elif j == 6:
            dma = pair_const(0)
        elif j == 7:
            dma = pair_const(1)
        else:
            dma = sum((pair_const(u) for u in range(2, PD)), [])
        if j < 8:
            gq = bar + 1
            for x in dma:
                gq = s.place(x, gq, bar + 66)
                if x.startswith('buffer'):
                    gq += OPT['qsp'] if j < 6 else 7
            assert gq < bar + 70, gq - bar
        else:
            lastdma = dma
    body = g.L[weave_from:]
    first_acc = next(k for k, x in enumerate(body) if 'v_accvgpr_write_b32 a0,' in x)
    head, accw = body[:first_acc], body[first_acc:]
    del g.L[weave_from:]
    g.L += head
    d1 = qchunk_dma(1)
    for k, x in enumerate(accw):
        g.L.append(x)
        if k % 4 == 3 and d1:
            g(d1.pop(0))
    g.many(d1)
    gq = 0
    for x in qchunk_dma(2):
        gq = s.place(x, gq, 50)
        if x.startswith('buffer'):
            gq += 3
    stamp(g, 2)
    g('s_waitcnt vmcnt(13)')
    g('s_barrier')
    stamp(g, 3)
    if OPT['stamp'] & 2:
        for j in (1, 2, 3, 4, 6, 7, 8):
            s.put(gs[(j, 0)], f's_memtime {sr(sST + 2*nstamp[0], 2)}')
            nstamp[0] += 1
    g.many([x for x, _ in pre])
    gq = gs[(8, 0)] + 53
    while lastdma and gq < len(s.mf):
        x = lastdma.pop(0)
        s.put(gq, x)
        if x.startswith('buffer'):
            gq += 1
    s.resolve(pending=[(tag, -8) for _, tag in pre], look=5, mind=4)
    s.emit(g)
    stamp(g, 4)
    g.many(lastdma)
    stamp(g, 7)
    g.c('---- scale by log2(e)/sqrt(128), round to bf16, exchange the shared tile')
    def conv(srcA, dst):
        for k in range(4):
            g(f'v_pk_mul_f32 {vr(srcA+2*k,2)}, {vr(srcA+2*k,2)}, {sr(sC,2)}')
        for k in range(4):
            g(f'v_cvt_pk_bf16_f32 {vr(dst+k)}, {vr(srcA+2*k)}, {vr(srcA+2*k+1)}')
    def swaps(dst):
        g(f'v_permlane16_swap_b32 {vr(dst)}, {vr(dst+2)}')
        g(f'v_permlane16_swap_b32 {vr(dst+1)}, {vr(dst+3)}')
    conv(acc(4, 0), vQ + 64)
    conv(acc(4, 2), vQ + 68)
    g(f's_lshl_b32 {sr(sT0)}, {sr(sW)}, 11')
    g(f's_add_u32 {sr(sT0)}, {sr(sT0)}, {EXCH}')
    g(f'v_add_u32 {vr(vXa)}, {sr(sT0)}, {vr(vL16)}')
    swaps(vQ + 64); swaps(vQ + 68)
    g(f's_and_b32 {sr(sT0)}, {sr(sT0)}, {~4095 & 0xffffffff:#x}')
    g(f'v_add_u32 {vr(17)}, {sr(sT0)}, {vr(vL16)}')
    g(f'ds_write_b128 {vr(vXa)}, {vr(vQ+64,4)}')
    g(f'ds_write_b128 {vr(vXa)}, {vr(vQ+68,4)} offset:1024')
    stamp(g, 4)
    g(f's_bitcmp1_b32 {sr(sW)}, 0')
    g('s_cbranch_scc1 L1_conv_odd')
    for p in range(2):
        prev = None
        for X in range(4):
            for il in range(4):
                dst = vQ + 16*X + 4*(il ^ (2*p))
                conv(acc(X, 2*il), dst)
                if prev is not None:
                    swaps(prev)
                prev = dst
        g('s_nop 1')
        swaps(prev)
        if p == 0:
            g('s_branch L1_conv_done')
            g.label('L1_conv_odd')
    g.label('L1_conv_done')
    g(f's_mov_b32 {sr(sSlot)}, 0')
    g.many(addr_update())
    stamp(g, 4)
    g(f's_waitcnt vmcnt({8*(PD-1)}) lgkmcnt(0)')
    stamp(g, 4)
    g('s_barrier')
    stamp(g, 5)
    for i in range(4):
        g(kread(0, i))
    for i in range(4):
        g(f'ds_read_b128 {vr(vQ+64+4*i,4)}, {vr(17)} offset:{i*1024}')
    g.c('---- stand-in for the row max: exact max over the first 16 keys this wave sees (checked at the end)')
    vR = vT
    vM = vT + 20
    g('s_waitcnt lgkmcnt(4)')
    for c in range(5):
        if c == 4:
            g('s_waitcnt lgkmcnt(0)')
        for i in range(4):
            g(qk_mf(c, i, '0', vR + 4*c)[0])
    g('s_nop 3')
    for X in range(5):
        g(f'v_max3_f32 {vr(vM+X)}, {vr(vR+4*X)}, {vr(vR+4*X+1)}, {vr(vR+4*X+2)}')
    for X in range(5):
        g(f'v_max_f32 {vr(vM+X)}, {vr(vM+X)}, {vr(vR+4*X+3)}')
    def setneg():
        for sw in ('v_permlane32_swap_b32', 'v_permlane16_swap_b32'):
            for X in range(5):
                g(f'v_mov_b32 {vr(vM+5+X)}, {vr(vM+X)}')
            g('s_nop 0')
            for X in range(5):
                g(f'{sw} {vr(vM+5+X)}, {vr(vM+X)}')
            g('s_nop 0')
            for X in range(5):
                g(f'v_max_f32 {vr(vM+X)}, {vr(vM+X)}, {vr(vM+5+X)}')
        for X in range(5):
            for r in range(4):
                g(f'v_sub_f32 {vr(vNEG+4*X+r)}, 0, {vr(vM+X)}')
    setneg()
    stamp(g, 4)
    g.label('L1_main')
    g.c('entry: pair 0 visible, raw scores of key tile 0 in vR, pairs 1..4 issued, O = l = 0, -m set')
    for i in range(4):
        g(kread(1, i))
    for X in range(5):
        for r in range(4):
            g(f'v_add_f32 {vr(vR+4*X+r)}, {vr(vR+4*X+r)}, {vr(vNEG+4*X)}')
    g(f's_mov_b32 {sr(sOff)}, {PD*16384}')
    g(f's_mov_b32 {sr(sCnt)}, 0')
    squad = lambda c: vR + 4*c if c < 5 else (vP + 40 + 4*(c - 5) if c < 15 else vS + 4*(c - 15))
    s = Sched(cap=3)
    for c in range(5, 18):
        for i in range(4):
            s.add(*qk_mf(c, i, None, squad(c)))
    s.seq([(kread(2, i), ('K', 0, i)) for i in range(4)], 0, 6)
    s.seq([(kread(3, i), ('K', 1, i)) for i in range(4)], 21, 28)
    BARP = 38
    s.seq(dst_update() + slot_update(), 8, 24)
    s.put(BARP, f's_waitcnt vmcnt({VMW}) lgkmcnt(0)')
    s.put(BARP, 's_barrier')
    s.seq(addr_update(), BARP - 6, BARP - 1)
    s.seq([(kread(0, i), ('K', 0, i)) for i in range(4)] +
          [(vread(dt, a, jj), ('V', dt, a)) for dt in range(2) for a in range(2) for jj in range(2)], BARP + 1, 51)
    flat = []
    prev = None
    for c in range(18):
        ex, cv = softmax_ops(c, 0, squad(c))
        lo = 0 if c < 5 else 4*(c - 5) + 9
        flat += [(lo, ex[0])] + ([(lo, prev)] if prev else []) + [(lo, ex[1]), (lo, ex[2]), (lo, cv[0]), (lo, ex[3])]
        prev = cv[1]
    tailops = []
    gq = 0
    nm = len(s.mf)
    for lo, x in flat:
        gq = max(gq, lo)
        while gq < nm and s.load(gq) + s.cost(x) > 4:
            gq += 1
        if gq >= nm:
            tailops.append(x)
        else:
            s.put(gq, x)
    tailops += ['s_nop 0', prev]
    stA, BA = build_stage(0)
    stB, BB = build_stage(1)
    if not OPT['nodma']:
        gq = s.place(f's_mov_b32 m0, {sr(sT1)}', BARP + 1, 51, cap=5) + 1
        for j in range(4):
            gq = s.place(dma_kv('K', j, sOff), gq, 51, cap=5) + 1
    add_dma(stA, BA, stB)
    add_dma(stB, BB, stA)
    pend = s.resolve(pending=[(('K', 1, i), -12) for i in range(4)], look=5, mind=4)
    s.emit(g)
    g.many(tailops)
    g('s_waitcnt lgkmcnt(0)')
    import copy
    carry = []
    for it in range(2):
        a, b = copy.deepcopy(stA), copy.deepcopy(stB)
        c1 = a.resolve(pending=carry)
        carry2 = b.resolve(pending=c1)
        if it == 1:
            assert carry2 == carry, (carry, carry2)
        carry = carry2
    print('stageA', a.loads(), file=sys.stderr)
    print('stageB', b.loads(), file=sys.stderr)
    a.put(150, f's_add_u32 {sr(sCnt)}, {sr(sCnt)}, 1')
    a.put(152, f's_cmp_eq_u32 {sr(sCnt)}, 16')
    assert not any(x[0].startswith('s_') and 'cmp' not in x[0] and 'wait' not in x[0] for x in a.gaps[152])
    stamp(g, 5)
    g.raw('.p2align 6')
    g.label('L1_loop')
    a.emit(g)
    g('s_cbranch_scc1 L1_tail')
    b.emit(g)
    g('s_branch L1_loop')
    g.label('L1_tail')
    stamp(g, 5)
    s = Sched(cap=3)
    for j in range(9):
        s.add(*sum_mf(j, 1))
    for j in range(72):
        s.add(*pv_mf(j, 1))
    for dt in range(2, 8):
        lo = 0 if dt < 4 else 9 + 9*(dt - 4) + 9
        s.seq([(vread(dt, a_, jj), ('V', dt & 3, a_)) for a_ in range(2) for jj in range(2)], lo, lo + 8)
    vl = vT + 32
    e = []
    for X in range(5):
        e.append(f'v_accvgpr_read_b32 {vr(vl+X)}, {ar(aL+4*X)}')
    s.seq(e, 20, 40, 1)
    s.resolve(pending=c1)
    g('s_nop 0')
    s.emit(g)
    stamp(g, 4)
    g.c('---- epilogue')
    g(f'v_cmp_nle_f32_e64 vcc, {vr(vl)}, {sr(sThr)}')
    g(f'v_cmp_nle_f32_e64 s[4:5], {vr(vl+1)}, {sr(sThr)}')
    g(f'v_cmp_nle_f32_e64 s[6:7], {vr(vl+2)}, {sr(sThr)}')
    g(f'v_cmp_nle_f32_e64 s[28:29], {vr(vl+3)}, {sr(sThr)}')
    g(f'v_cmp_nle_f32_e64 s[30:31], {vr(vl+4)}, {sr(sThr)}')
    g('s_or_b64 s[4:5], s[4:5], vcc')
    g('s_or_b64 s[4:5], s[4:5], s[6:7]')
    g('s_or_b64 s[28:29], s[28:29], s[30:31]')
    g('s_or_b64 s[4:5], s[4:5], s[28:29]')
    g('s_cselect_b32 s4, 1, 0')
    g(f'v_mov_b32 {vr(18)}, s4')
    g(f'v_add_u32 {vr(19)}, {sr(sW4K)}, {vr(vL16)}')
    g(f'v_add_u32 {vr(19)}, {3*SLOT}, {vr(19)}')
    g(f'v_lshrrev_b32 {vr(20)}, 2, {vr(vL16)}')
    g(f'v_add_u32 {vr(20)}, {4*SLOT}, {vr(20)}')
    g(f'v_add_u32 {vr(21)}, {sr(sW4K)}, {vr(20)}')
    g('s_waitcnt vmcnt(0)')
    for dt in range(8):
        g(f'ds_write_b128 {vr(19)}, {ar(aO+128+4*dt,4)} offset:{(dt>>2)*16384+(dt&3)*1024}')
    g(f'ds_write_b32 {vr(21)}, {vr(vl+4)}')
    g(f'ds_write_b32 {vr(21)}, {vr(vNEG+16)} offset:256')
    g(f'ds_write_b32 {vr(21)}, {vr(18)} offset:512')
    vRc = vT + 38
    assert vRc % 2 == 0
    def out_tile(X):
        g(f'v_rcp_f32 {vr(vRc)}, {vr(vl+X)}')
        b = vP + 32*(X & 1)
        for r in range(32):
            g(f'v_accvgpr_read_b32 {vr(b+r)}, {ar(aO+32*X+r)}')
        for k in range(16):
            g(f'v_pk_mul_f32 {vr(b+2*k,2)}, {vr(b+2*k,2)}, {vr(vRc,2)} op_sel_hi:[1,0]')
        d = vT + 16*(X & 1)
        for k in range(16):
            g(f'v_cvt_pk_bf16_f32 {vr(d+k)}, {vr(b+2*k)}, {vr(b+2*k+1)}')
            if k & 3 == 3:
                i = k >> 2
                g(f'buffer_store_dwordx4 {vr(d+4*i,4)}, {vr(vL16)}, {sr(sO,4)}, {sr(4+X)} offen offset:{i*1024}{pol("pos")}')
    g(f's_lshl_b32 s4, {sr(sW)}, 19')
    for X in range(1, 4):
        g(f's_add_u32 {sr(4+X)}, s4, {X*131072}')
    out_tile(0)
    stamp(g, 4)
    g('s_waitcnt lgkmcnt(0)')
    g('s_barrier')
    for u in range(4):
        g(f'ds_read_b32 {vr(vS+u)}, {vr(20)} offset:{u*4096+512}')
    g(f'v_xor_b32 {vr(22)}, 4096, {vr(21)}')
    g(f'ds_read_b32 {vr(vS+4)}, {vr(22)}')
    g(f'ds_read_b32 {vr(vS+5)}, {vr(22)} offset:256')
    g(f's_and_b32 {sr(sT0)}, {sr(sW)}, 1')
    g(f's_lshl_b32 {sr(sT0)}, {sr(sT0)}, 14')
    g(f'v_add_u32 {vr(19)}, {sr(sT0)}, {vr(19)}')
    g(f'v_xor_b32 {vr(23)}, 4096, {vr(19)}')
    g('s_waitcnt lgkmcnt(2)')
    g(f'v_or_b32 {vr(vS)}, {vr(vS)}, {vr(vS+1)}')
    g(f'v_or3_b32 {vr(vS)}, {vr(vS)}, {vr(vS+2)}, {vr(vS+3)}')
    g('s_nop 0')
    g(f'v_readfirstlane_b32 {sr(sT0)}, {vr(vS)}')
    g('s_nop 1')
    g(f's_andn2_b32 {sr(sT0)}, {sr(sT0)}, {sr(sPass)}')
    g('s_cbranch_scc1 L1_fallback')
    for j in range(4):
        g(f'ds_read_b128 {vr(vQ+4*j,4)}, {vr(19)} offset:{j*1024}')
        g(f'ds_read_b128 {vr(vQ+16+4*j,4)}, {vr(23)} offset:{j*1024}')
    for X in range(1, 4):
        out_tile(X)
    g('s_waitcnt lgkmcnt(0)')
    g(f'v_min_f32 {vr(vS+6)}, {vr(vS+5)}, {vr(vNEG+16)}')
    g(f'v_sub_f32 {vr(vS+8)}, {vr(vS+6)}, {vr(vNEG+16)}')
    g(f'v_sub_f32 {vr(vS+10)}, {vr(vS+6)}, {vr(vS+5)}')
    g(f'v_exp_f32 {vr(vS+8)}, {vr(vS+8)}')
    g(f'v_exp_f32 {vr(vS+10)}, {vr(vS+10)}')
    g('s_nop 0')
    g(f'v_mul_f32 {vr(vS+6)}, {vr(vS+8)}, {vr(vl+4)}')
    g(f'v_fmac_f32 {vr(vS+6)}, {vr(vS+10)}, {vr(vS+4)}')
    g(f'v_rcp_f32 {vr(vS+6)}, {vr(vS+6)}')
    g('s_nop 0')
    g(f'v_mul_f32 {vr(vS+8)}, {vr(vS+8)}, {vr(vS+6)}')
    g(f'v_mul_f32 {vr(vS+10)}, {vr(vS+10)}, {vr(vS+6)}')
    for k in range(8):
        g(f'v_pk_mul_f32 {vr(vQ+2*k,2)}, {vr(vQ+2*k,2)}, {vr(vS+8,2)} op_sel_hi:[1,0]')
    for k in range(8):
        g(f'v_pk_fma_f32 {vr(vQ+2*k,2)}, {vr(vQ+16+2*k,2)}, {vr(vS+10,2)}, {vr(vQ+2*k,2)} op_sel_hi:[1,0,1]')
    for k in range(8):
        g(f'v_cvt_pk_bf16_f32 {vr(vQ+32+k)}, {vr(vQ+2*k)}, {vr(vQ+2*k+1)}')
    g(f's_lshr_b32 s4, {sr(sW)}, 1')
    g('s_lshl_b32 s4, s4, 17')
    g(f's_and_b32 s5, {sr(sW)}, 1')
    g('s_lshl_b32 s5, s5, 11')
    g('s_add_u32 s4, s4, s5')
    g(f's_add_u32 s4, s4, {16*131072}')
    g(f'buffer_store_dwordx4 {vr(vQ+32,4)}, {vr(vL16)}, {sr(sO,4)}, s4 offen{pol("pos")}')
    g(f'buffer_store_dwordx4 {vr(vQ+36,4)}, {vr(vL16)}, {sr(sO,4)}, s4 offen offset:1024{pol("pos")}')
    if OPT['stamp']:
        stamp(g, 5)
        g('s_waitcnt vmcnt(0)')
        stamp(g, 5)
        emit_stamps(g, 36, 0)
    g.label('L1_done')
    g('s_endpgm')
    g.c('---- fallback: the stand-in was unsafe.  Scan all keys for the true row max, then redo the main pass.')
    g.label('L1_fallback')
    g(f's_mov_b32 {sr(sPass)}, 1')
    g('s_waitcnt vmcnt(0) lgkmcnt(0)')
    for X in range(5):
        g(f'v_mov_b32 {vr(vM+X)}, 0xff800000')
    g(f's_mov_b32 {sr(sOff)}, 0')
    g(f's_mov_b32 {sr(sSlot)}, 0')
    g.many(addr_update())
    g.label('L1_scan')
    g('s_barrier')
    g(f's_mov_b32 m0, {sr(sW4K)}')
    g('s_nop 0')
    for j in range(4):
        g(dma_kv('K', j, sOff))
    g(f's_add_u32 {sr(sOff)}, {sr(sOff)}, 16384')
    g('s_waitcnt vmcnt(0)')
    g('s_barrier')
    for kt in range(4):
        for i in range(4):
            g(kread(kt, i, aK))
        g('s_waitcnt lgkmcnt(0)')
        for c in range(5):
            for i in range(4):
                g(qk_mf(c, i, '0', vR + 4*c)[0])
        g('s_nop 7')
        for X in range(5):
            g(f'v_max3_f32 {vr(vM+X)}, {vr(vM+X)}, {vr(vR+4*X)}, {vr(vR+4*X+1)}')
            g(f'v_max3_f32 {vr(vM+X)}, {vr(vM+X)}, {vr(vR+4*X+2)}, {vr(vR+4*X+3)}')
    g(f's_cmp_lt_u32 {sr(sOff)}, 524288')
    g('s_cbranch_scc1 L1_scan')
    g('s_barrier')
    for u in range(PD):
        g.many(pair_const(u))
    setneg()
    for r in range(180):
        g(f'v_accvgpr_write_b32 {ar(aO+r)}, 0')
    g(f's_waitcnt vmcnt({8*(PD-1)})')
    g('s_barrier')
    for i in range(4):
        g(kread(0, i))
    g('s_waitcnt lgkmcnt(0)')
    for c in range(5):
        for i in range(4):
            g(qk_mf(c, i, '0', vR + 4*c)[0])
    g('s_nop 7')
    g('s_branch L1_main')
    g.label('L1_end')

def emit_stamps(g, sws, kidx):
    n = nstamp[0]
    assert n <= 13
    g(f's_memrealtime {sr(sRT+2, 2)}')
    g('s_waitcnt lgkmcnt(0)')
    g(f's_add_u32 s8, {sr(sws)}, {STAMP_OFF + kidx*(1<<20)}')
    g(f's_addc_u32 s9, {sr(sws+1)}, 0')
    g('s_mov_b32 s10, 0x100000')
    g('s_mov_b32 s11, 0x20000')
    g('s_lshl_b32 s4, s2, 2')
    g(f's_add_u32 s4, s4, {sr(sW)}')
    g('s_lshl_b32 s4, s4, 7')
    g('s_mov_b64 exec, 1')
    g('v_mov_b32 v2, 0')
    for reg, off in [(sST+2*i, 8*i) for i in range(n)] + [(sRT, 104), (sRT+2, 112)]:
        g(f'v_mov_b32 v4, {sr(reg)}')
        g(f'v_mov_b32 v5, {sr(reg+1)}')
        g(f'buffer_store_dwordx2 v[4:5], v2, s[8:11], s4 offen offset:{off}')
        g('s_nop 1')
    g('s_getreg_b32 s5, hwreg(HW_REG_XCC_ID)')
    g('v_mov_b32 v4, s5')
    g('buffer_store_dword v4, v2, s[8:11], s4 offen offset:120')
    print('stamps', kidx, n, file=sys.stderr)
    nstamp[0] = 0

def kernel2(g):
    D = OPT['k2_D']; PH = OPT['k2_PH']
    sO2, sWO, sOUT = 8, 12, 16
    sWL, sRot, sKo, sKw = 39, 43, 44, 45
    vL, vOo, vWo, vRa = 1, 2, 8, 9
    vOF = 16
    vWF = vOF + 24 * D
    assert vWF + 32 <= 256
    REG = max(D * 4096, 24576)
    g.raw('.globl oproj_kernel\n.p2align 8\n.type oproj_kernel,@function')
    g.label('oproj_kernel')
    g('s_cmp_ge_u32 s2, 216')
    g('s_cbranch_scc1 L2_done')
    OPT['stamp'] = 1 if OPT['stamp'] else 0
    stamp(g)
    g('s_load_dwordx4 s[28:31], s[0:1], 32')
    g('s_load_dwordx2 s[36:37], s[0:1], 56')
    g('v_lshrrev_b32 v11, 6, v0')
    g('v_and_b32 v12, 63, v0')
    g(f'v_readfirstlane_b32 {sr(sW)}, v11')
    if OPT['ipf']:
        code_prefetch(g, 'oproj_kernel', 'L2_end', 24, 250, 251)
    g('s_and_b32 s3, s2, 7')
    g('s_lshr_b32 s4, s2, 3')
    g('s_mul_i32 s5, s4, 57')
    g('s_lshr_b32 s5, s5, 9')
    g('s_mul_i32 s6, s5, 9')
    g('s_sub_u32 s6, s4, s6')
    g('s_mul_i32 s7, s3, 3')
    g('s_add_u32 s7, s7, s5')
    g(f's_mul_i32 {sr(sRot)}, s5, 3')
    g(f's_add_u32 {sr(sRot)}, {sr(sRot)}, s6')
    g(f's_mul_i32 {sr(sRot)}, {sr(sRot)}, {(PH*256)//9 + 1}')
    g(f's_lshr_b32 {sr(sRot)}, {sr(sRot)}, 8')
    g(f'v_lshlrev_b32 {vr(vL)}, 4, v12')
    g(f'v_lshl_add_u32 {vr(vOo)}, v11, 15, {vr(vL)}')
    for X in range(1, 6):
        g(f'v_add_u32 {vr(vOo+X)}, {X*131072}, {vr(vOo)}')
    g('v_bfe_u32 v13, v12, 2, 3')
    g('v_lshl_add_u32 v13, v11, 10, v13')
    g('v_mul_u32_u24 v13, 1152, v13')
    g('v_lshrrev_b32 v14, 5, v12')
    g('v_lshl_add_u32 v13, v14, 6, v13')
    g('v_bfe_u32 v15, v12, 4, 1')
    g('v_lshlrev_b32 v15, 1, v15')
    g('v_and_b32 v9, 3, v12')
    g('v_xor_b32 v15, v15, v9')
    g(f'v_lshl_add_u32 {vr(vWo)}, v15, 4, v13')
    g(f's_mul_i32 {sr(sWL)}, {sr(sW)}, {REG}')
    g(f's_mul_i32 s4, s7, {6*131072}')
    g(f's_mov_b32 {sr(sO2+2)}, {6*131072}')
    g(f's_mov_b32 {sr(sO2+3)}, 0x20000')
    g('s_lshl_b32 s5, s6, 7')
    g(f's_sub_u32 {sr(sWO+2)}, {4096*1152}, s5')
    g(f's_mov_b32 {sr(sWO+3)}, 0x20000')
    g('s_waitcnt lgkmcnt(0)')
    g(f's_add_u32 {sr(sO2)}, s36, s4')
    g(f's_addc_u32 {sr(sO2+1)}, s37, 0')
    g(f's_add_u32 {sr(sWO)}, s28, s5')
    g(f's_addc_u32 {sr(sWO+1)}, s29, 0')
    def loads(s):
        sl = s % D
        w = [f's_add_u32 {sr(sT0)}, {sr(sRot)}, {s & (PH-1)}',
             f's_and_b32 {sr(sT0)}, {sr(sT0)}, {PH-1}',
             f's_add_u32 {sr(sT0)}, {sr(sT0)}, {s & ~(PH-1)}',
             f's_add_u32 m0, {sr(sWL)}, {sl*4096}',
             f's_mul_i32 {sr(sKw)}, {sr(sT0)}, 36864',
             f's_lshl_b32 {sr(sKo)}, {sr(sT0)}, 10']
        for p in range(4):
            if p:
                w.append(f's_add_u32 {sr(sKw)}, {sr(sKw)}, 8192')
            w.append(f'buffer_load_dwordx4 {vr(vWo)}, {sr(sWO,4)}, {sr(sKw)} offen' + (f' offset:{p*1024}' if p else '') + f'{pol("pwo")} lds')
        o = [f'buffer_load_dwordx4 {vr(vOF+24*sl+4*X,4)}, {vr(vOo+X)}, {sr(sO2,4)}, {sr(sKo)} offen{pol("pol")}' for X in range(6)]
        return w, o
    for s in range(D):
        w, o = loads(s)
        g.many(w + o)
    g(f's_mul_i32 s4, s7, {96*1152}')
    g('s_add_u32 s4, s4, s5')
    g(f's_add_u32 {sr(sOUT)}, s30, s4')
    g(f's_addc_u32 {sr(sOUT+1)}, s31, 0')
    g(f's_sub_u32 {sr(sOUT+2)}, {2304*1152}, s4')
    g(f's_mov_b32 {sr(sOUT+3)}, 0x20000')
    g('v_bfe_u32 v13, v12, 2, 3')
    g('v_lshlrev_b32 v13, 6, v13')
    g('v_lshl_add_u32 v13, v14, 10, v13')
    g('v_bfe_u32 v15, v12, 4, 1')
    g('v_lshl_add_u32 v13, v15, 5, v13')
    g('v_lshl_add_u32 v13, v9, 3, v13')
    g(f'v_add_u32 {vr(vRa)}, {sr(sWL)}, v13')
    g(f'v_xor_b32 {vr(vRa+1)}, 32, {vr(vRa)}')
    def reads(s):
        sl = s % D
        b = vWF + 16 * (s & 1)
        return [f'ds_read_b64_tr_b16 {vr(b+4*nt+2*jj,2)}, {vr(vRa+(nt&1))} offset:{sl*4096+jj*2048+(nt>>1)*512}' for nt in range(4) for jj in range(2)]
    g(f's_waitcnt vmcnt({10*D-4})')
    stamp(g)
    g.many(reads(0))
    NS = 32
    for s in range(NS):
        sl = s % D
        issued_to = min(s + D - 1, NS - 1)
        if s + 1 < NS:
            g(f's_waitcnt vmcnt({6 + 10*(issued_to - (s + 1))})')
            g.many(reads(s + 1))
            g('s_waitcnt lgkmcnt(8)')
        else:
            g('s_waitcnt vmcnt(0) lgkmcnt(0)')
        w, o = loads(s + D) if s + D < NS else ([], [])
        b = vWF + 16 * (s & 1)
        for X in range(6):
            for nt in range(4):
                d = ar(4*(4*X + nt), 4)
                g(f'{MF} {d}, {vr(b+4*nt,4)}, {vr(vOF+24*sl+4*X,4)}, {d if s else 0}')
                m = 4*X + nt
                if m < 5:
                    k = 0
                    while w and k < 3:
                        g(w.pop(0)); k += 1
                if o and m >= 5 and nt == 1:
                    assert not w
                    g(o.pop(0))
        if o:
            g('s_nop 0')
            g(o.pop(0))
        assert not o and not w
    stamp(g)
    g('s_nop 7')
    g(f'v_add_u32 v9, {sr(sWL)}, {vr(vL)}')
    for j in range(24):
        g(f'ds_write_b128 v9, {ar(4*j,4)} offset:{j*1024}')
    g(f's_mul_i32 s4, {sr(sW)}, 6144')
    g(f'v_add_u32 v9, s4, {vr(vL)}')
    g(f'v_add_u32 v10, {2*REG}, v9')
    g('v_and_b32 v11, 15, v12')
    g('v_mul_u32_u24 v11, 1152, v11')
    g('v_lshl_add_u32 v11, v14, 4, v11')
    g('v_lshl_add_u32 v11, v15, 5, v11')
    for e in range(3):
        g(f's_mul_i32 s4, {sr(sW)}, 3')
        g(f's_add_u32 s4, s4, {e}')
        g('s_lshr_b32 s5, s4, 1')
        g('s_mul_i32 s5, s5, 18432')
        g('s_and_b32 s4, s4, 1')
        g('s_lshl_b32 s4, s4, 6')
        g(f's_add_u32 {sr(44+e)}, s4, s5')
    g('s_waitcnt lgkmcnt(0)')
    g('s_barrier')
    for u in range(4):
        for j in range(6):
            g(f'ds_read_b128 {vr(16+24*u+4*j,4)}, {"v9" if u < 2 else "v10"} offset:{(u&1)*REG+j*1024}')
    g('s_waitcnt lgkmcnt(12)')
    for k in range(12):
        g(f'v_pk_add_f32 {vr(16+2*k,2)}, {vr(16+2*k,2)}, {vr(40+2*k,2)}')
    g('s_waitcnt lgkmcnt(0)')
    for k in range(12):
        g(f'v_pk_add_f32 {vr(64+2*k,2)}, {vr(64+2*k,2)}, {vr(88+2*k,2)}')
    for k in range(12):
        g(f'v_pk_add_f32 {vr(16+2*k,2)}, {vr(16+2*k,2)}, {vr(64+2*k,2)}')
    for k in range(12):
        g(f'v_cvt_pk_bf16_f32 {vr(112+k)}, {vr(16+2*k)}, {vr(16+2*k+1)}')
    g('s_nop 1')
    for e in range(3):
        g(f'v_permlane16_swap_b32 {vr(112+4*e)}, {vr(114+4*e)}')
        g(f'v_permlane16_swap_b32 {vr(113+4*e)}, {vr(115+4*e)}')
    for e in range(3):
        g(f'buffer_store_dwordx4 {vr(112+4*e,4)}, v11, {sr(sOUT,4)}, {sr(44+e)} offen')
    if OPT['stamp']:
        stamp(g)
        g('s_waitcnt vmcnt(0)')
        stamp(g)
        emit_stamps(g, 36, 1)
    g.label('L2_done')
    g('s_endpgm')
    g.label('L2_end')
    return 4 * REG

def kd(name, nv, acc):
    return f'''.p2align 6
.amdhsa_kernel {name}
  .amdhsa_next_free_vgpr {nv}
  .amdhsa_next_free_sgpr 102
  .amdhsa_accum_offset {acc}
  .amdhsa_group_segment_fixed_size 0
  .amdhsa_kernarg_size 64
  .amdhsa_user_sgpr_count 2
  .amdhsa_user_sgpr_kernarg_segment_ptr 1
  .amdhsa_system_sgpr_workgroup_id_x 1
  .amdhsa_float_denorm_mode_32 3
.end_amdhsa_kernel'''

def main():
    here = os.path.dirname(os.path.abspath(__file__))
    g = G()
    kernel1(g)
    lds2 = kernel2(g)
    out = open(here + '/header.txt').read().replace('@LDS2@', str(lds2))
    out += '.amdgcn_target "amdgcn-amd-amdhsa--gfx950"\n.text\n'
    out += '\n'.join(g.L) + '\n'
    out += '.section .rodata,"a"\n' + kd('attn_kernel', 512, 256) + '\n' + kd('oproj_kernel', 352, 256) + '\n'
    open(sys.argv[1], 'w').write(out)

main()
```

```python
import sys, math, struct, re, os

OPT = dict(stamp=0, force_fallback=0, k2_D=6, k2_PH=8, nodma=0, map=1, qrot=0, pd=3, qsp=4, ipf=1, DO=3, map2=0,
           px=0, pwq=0, pos=2, pol=2, pwo=0, pkv=1, wopf=0)
for a in sys.argv[2:]:
    k, v = a.split('=')
    assert k in OPT, k
    OPT[k] = int(v)
POL = ['', ' nt', ' sc1', ' sc0 sc1', ' sc1 nt', ' sc0 sc1 nt', ' sc0']
pol = lambda k: POL[OPT[k]]

def f2u(x):
    return struct.unpack('<I', struct.pack('<f', x))[0]

class G:
    def __init__(self):
        self.L = []
    def __call__(self, s):
        self.L.append('    ' + s)
    def many(self, xs):
        for x in xs:
            self(x)
    def label(self, s):
        self.L.append(s + ':')
    def c(self, s):
        self.L.append('    ; ' + s)
    def raw(self, s):
        self.L.append(s)

vr = lambda b, n=1: f'v{b}' if n == 1 else f'v[{b}:{b+n-1}]'
ar = lambda b, n=1: f'a{b}' if n == 1 else f'a[{b}:{b+n-1}]'
sr = lambda b, n=1: f's{b}' if n == 1 else f's[{b}:{b+n-1}]'
MF = 'v_mfma_f32_16x16x32_bf16'
STAMP_OFF = 32 << 20
KN = 'standalone__mha_block_cached__near_ridge_kernel'

class Sched:
    def __init__(self, cap=2):
        self.mf = []
        self.gaps = []
        self.cap = cap
    def add(self, text, needs=()):
        self.mf.append((text, tuple(needs)))
        self.gaps.append([])
        return len(self.mf) - 1
    @staticmethod
    def cost(t):
        return 2 if t.startswith('v_exp') else 1
    def load(self, g):
        return sum(self.cost(t) for t, _ in self.gaps[g])
    def put(self, g, text, tag=None):
        self.gaps[g].append((text, tag))
        return g
    def place(self, text, lo, hi, tag=None, cap=None):
        cap = cap or self.cap
        hi = min(hi, len(self.mf) - 1)
        assert lo <= hi, (text, lo, hi)
        for g in range(lo, hi + 1):
            if self.load(g) + self.cost(text) <= cap:
                return self.put(g, text, tag)
        best = min(range(lo, hi + 1), key=self.load)
        return self.put(best, text, tag)
    def seq(self, texts, lo, hi, step=0):
        g = lo
        for t in texts:
            tag = None
            if isinstance(t, tuple):
                t, tag = t
            g = self.place(t, g, hi, tag) + step
        return g
    def order(self, g):
        a = [x for x in self.gaps[g] if not x[0].startswith('v_')]
        b = [x for x in self.gaps[g] if x[0].startswith('v_')]
        return a + b
    def resolve(self, pending=(), look=6, mind=5):
        n = len(self.mf)
        waits = {}
        def issued_upto(g):
            out = list(pending)
            for x in range(g):
                out += [(tag, x) for t, tag in self.order(x) if t.startswith('ds_')]
            return out
        done = 0
        fixed = {}
        for x in range(n):
            for t, _ in self.gaps[x]:
                if 'lgkmcnt(0)' in t:
                    fixed[x] = True
        for m in range(n):
            if (m - 1) in fixed:
                done = max(done, len(issued_upto(m - 1)))
            iss = issued_upto(m)
            last = -1
            for tag in self.mf[m][1]:
                idx = [k for k, (tg, _) in enumerate(iss) if tg == tag]
                if idx:
                    last = max(last, idx[-1])
            if last >= done:
                lg = iss[last][1]
                if m == 0:
                    pos = -1
                else:
                    cands = [p for p in range(m - 1, max(m - 5, lg, -1), -1) if p - lg >= mind and self.load(p) < self.cap]
                    pos = cands[0] if cands else m - 1
                    assert pos > lg, (self.mf[m], lg)
                cur = issued_upto(max(pos, 0))
                need = last + 1
                while need < len(cur) and cur[need][1] <= pos - look:
                    need += 1
                cnt = min(len(cur) - need, 15)
                done = len(cur) - cnt
                w = (f's_waitcnt lgkmcnt({cnt})', None)
                if pos < 0:
                    waits[-1] = w[0]
                else:
                    self.gaps[pos].insert(0, w)
        self.pre = waits.get(-1)
        allops = issued_upto(n)
        return [(tag, g - n) for tag, g in allops[done:]]
    def emit(self, g):
        if getattr(self, 'pre', None):
            g(self.pre)
        for m in range(len(self.mf)):
            g(self.mf[m][0])
            for t, _ in self.order(m):
                g(t)
    def loads(self):
        return ''.join(str(self.load(x)) for x in range(len(self.mf)))

sX, sWQ, sK, sV, sO = 8, 12, 16, 20, 24
sW, sW4K, sW1K = 38, 39, 56
sT0, sT1, sT2 = 40, 41, 42
sSlot, sOld, sOff, sCnt, sPass = 43, 44, 45, 46, 47
sCx, sCw, sCh = 48, 49, 50
sC = 54
sThr = 58
sB4 = 57
sRot, sKo, sKw, sQG, sNG = 48, 49, 50, 51, 52
sST, sRT = 60, 90
vL16, vXvo, vW0, vW1, vKV0, vKV1 = 1, 2, 3, 4, 5, 6
vKb, vVb = 7, 9
vXa, vXc, vWa = 11, 12, 13
vKa, vVa = 11, 13
vQ = 24
vACC = 104
vNEG = 104
vP = 124
vS = 204
vT = 216
aO, aL, aONE, aK, aV = 0, 160, 180, 184, 216
QBUF, XB, SLOT = 53248, 36864, 32768
EXCH = 16384

nstamp = [0]
def stamp(g, mode=1):
    if OPT['stamp'] & mode:
        if nstamp[0] == 0:
            g(f's_memrealtime {sr(sRT, 2)}')
        g(f's_memtime {sr(sST + 2*nstamp[0], 2)}')
        nstamp[0] += 1

def dma_kv(kind, j, soff):
    srd = sK if kind == 'K' else sV
    off = f' offset:{j*1024}' if j else ''
    return f'buffer_load_dwordx4 {vr(vKV1 if j & 1 else vKV0)}, {sr(srd,4)}, {sr(soff)} offen{off}{pol("pkv")} lds'

def pair_const(u):
    slot = (u % 5) * SLOT
    out = [f's_add_u32 m0, {sr(sW4K)}, {slot}', f's_mov_b32 {sr(sT0)}, {u*16384}']
    out += [dma_kv('K', j, sT0) for j in range(4)]
    if u > 0:
        out += [f's_add_u32 m0, {sr(sW4K)}, {slot+16384}', 's_nop 0']
        out += [dma_kv('V', j, sT0) for j in range(4)]
    return out

def qchunk_dma(j):
    out = []
    buf = (j % 3) * QBUF
    for p in range(4):
        out.append(f's_add_u32 m0, {sr(sW4K)}, {buf + XB + p*1024}')
        out.append(f's_add_u32 {sr(sT0)}, {sr(sCw)}, {p*32768}')
        out.append(f'buffer_load_dwordx4 {vr(vW1 if p & 2 else vW0)}, {sr(sWQ,4)}, {sr(sT0)} offen{pol("pwq")} lds')
    for p in range(9):
        out.append(f's_add_u32 m0, {sr(sW1K)}, {buf + p*4096}')
        out.append(f's_add_u32 {sr(sT0)}, {sr(sCx)}, {p*36864}')
        out.append(f'buffer_load_dwordx4 {vr(vXvo)}, {sr(sX,4)}, {sr(sT0)} offen{pol("px")} lds')
    if OPT['qrot'] == 3:
        if j < 8:
            out += [f's_add_u32 {sr(sCx)}, {sr(sCh + (j+1) % 3)}, {((j+1)//3)*384}', f's_lshl_b32 {sr(sCw)}, {sr(sCx)}, 12']
        return out
    out += [f's_add_u32 {sr(sCx)}, {sr(sCx)}, 128',
            f's_sub_u32 {sr(sT0)}, {sr(sCx)}, 1152',
            f's_min_u32 {sr(sCx)}, {sr(sCx)}, {sr(sT0)}',
            f's_lshl_b32 {sr(sCw)}, {sr(sCx)}, 12']
    return out

def kread(kt, i, dst=None):
    dst = aK + 16*(kt & 1) if dst is None else dst
    return f'ds_read_b128 {ar(dst+4*i,4)}, {vr(vKa+(kt>>1))} offset:{i*256+(kt&1)*4096}'
def vread(dt, a, jj):
    return f'ds_read_b64_tr_b16 {ar(aV+8*(dt&3)+4*a+2*jj,2)}, {vr(vVa+2*a+(dt&1))} offset:{16384+jj*4096+(dt>>1)*256}'
def Preg(buf, X, a):
    return vP + 40*buf + 8*X + 4*a

CHAINS = [(kt, X) for kt in range(4) for X in range(5 if kt < 2 else 4)]
PVS = [(dt, X, a) for dt in range(8) for X in range(5) for a in range(2 if X < 4 else 1)]
SUMS = [(X, a) for X in range(5) for a in range(2 if X < 4 else 1)]

def qk_mf(c, i, cinit=None, dst=None):
    kt, X = CHAINS[c]
    d = vr(vS + 4*(c % 3) if dst is None else dst, 4)
    ci = vr(vNEG + 4*X, 4) if cinit is None else cinit
    return f'{MF} {d}, {ar(aK+16*(kt&1)+4*i,4)}, {vr(vQ+16*X+4*i,4)}, {d if i else ci}', [('K', kt & 1, i)]
def pv_mf(j, buf):
    dt, X, a = PVS[j]
    o = ar(aO + 32*X + 4*dt, 4)
    return f'{MF} {o}, {ar(aV+8*(dt&3)+4*a,4)}, {vr(Preg(buf,X,a),4)}, {o}', [('V', dt & 3, a)]
def sum_mf(j, buf):
    X, a = SUMS[j]
    o = ar(aL + 4*X, 4)
    return f'{MF} {o}, {ar(aONE,4)}, {vr(Preg(buf,X,a),4)}, {o}', []
def softmax_ops(c, buf, src=None):
    kt, X = CHAINS[c]
    S = vS + 4*(c % 3) if src is None else src
    P = Preg(buf, X, kt >> 1) + 2*(kt & 1)
    ex = [f'v_exp_f32 {vr(S+r)}, {vr(S+r)}' for r in range(4)]
    cv = [f'v_cvt_pk_bf16_f32 {vr(P+k)}, {vr(S+2*k)}, {vr(S+2*k+1)}' for k in range(2)]
    return ex, cv

PD = OPT['pd']
VMW = 8*(PD - 2)
sDst = sOld
def slot_update():
    return [f's_add_u32 {sr(sSlot)}, {sr(sSlot)}, {SLOT}',
            f's_sub_u32 {sr(sT0)}, {sr(sSlot)}, {5*SLOT}',
            f's_min_u32 {sr(sSlot)}, {sr(sSlot)}, {sr(sT0)}']
def dst_update():
    if PD == 5:
        return [f's_add_u32 {sr(sT1)}, {sr(sSlot)}, {sr(sW4K)}']
    return [f's_add_u32 {sr(sT1)}, {sr(sSlot)}, {PD*SLOT}',
            f's_sub_u32 {sr(sT0)}, {sr(sT1)}, {5*SLOT}',
            f's_min_u32 {sr(sT1)}, {sr(sT1)}, {sr(sT0)}',
            f's_add_u32 {sr(sT1)}, {sr(sT1)}, {sr(sW4K)}']
def addr_update():
    return [f'v_add_u32 {vr(vKa)}, {sr(sSlot)}, {vr(vKb)}',
            f'v_add_u32 {vr(vVa)}, {sr(sSlot)}, {vr(vVb)}',
            f'v_add_u32 {vr(vVa+2)}, {sr(sSlot)}, {vr(vVb+1)}',
            f'v_xor_b32 {vr(vVa+1)}, 32, {vr(vVa)}',
            f'v_xor_b32 {vr(vVa+3)}, 32, {vr(vVa+2)}',
            f'v_add_u32 {vr(vKa+1)}, {sr(sSlot)}, {vr(vKb+1)}']

def build_stage(buf):
    s = Sched()
    for c in range(18):
        for i in range(4):
            s.add(*qk_mf(c, i))
        for j in range(4):
            s.add(*pv_mf(4*c + j, buf))
    for j in range(9):
        s.add(*sum_mf(j, buf))
    for c in range(18):
        ex, cv = softmax_ops(c, buf ^ 1)
        for r in range(4):
            s.put(8*c + 9 + 2*r, ex[r])
        s.put(8*c + 12, cv[0])
        s.put(8*c + 16, cv[1])
    BAR = 108
    for kt, lo in ((1, 0), (2, 37), (3, 77)):
        s.seq([(kread(kt, i), ('K', kt & 1, i)) for i in range(4)], lo, lo + 20, 1)
    first = lambda dt: 8*((9*dt) >> 2) + 4 + ((9*dt) & 3)
    lastu = lambda dt: 8*((9*dt+8) >> 2) + 4 + ((9*dt+8) & 3)
    for dt in range(2, 8):
        lo = max(first(dt) - 44, lastu(dt - 4) + 1 if dt >= 4 else 0, 0)
        s.seq([(vread(dt, a, jj), ('V', dt & 3, a)) for a in range(2) for jj in range(2)], lo, min(lo + 18, BAR - 8), 1)
    s.seq(dst_update() + slot_update(), 60, 100)
    s.gaps[BAR] = [x for x in s.gaps[BAR]]
    moved = s.gaps[BAR]; s.gaps[BAR] = []
    s.put(BAR, f's_waitcnt vmcnt({VMW})' + (' lgkmcnt(0)' if PD == 5 else ''))
    s.put(BAR, 's_barrier')
    for t, tag in moved:
        s.put(BAR, t, tag)
    au = addr_update()
    s.seq(au, BAR - 7, BAR + 6)
    g0 = BAR + 2
    ga = max(x for x in range(len(s.gaps)) if any(t in au[:5] for t, _ in s.gaps[x])) + 1
    s.seq([(kread(0, i), ('K', 0, i)) for i in range(4)], max(g0, ga), 140, 1)
    s.seq([(vread(0, a, jj), ('V', 0, a)) for a in range(2) for jj in range(2)], max(g0, ga, lastu(4) + 1), 146, 1)
    s.seq([(vread(1, a, jj), ('V', 1, a)) for a in range(2) for jj in range(2)], max(g0, ga, lastu(5) + 1), 152, 1)
    return s, BAR

def add_dma(s, BAR, nxt):
    if OPT['nodma']:
        return
    g = s.place(f's_mov_b32 m0, {sr(sT1)}', BAR + 1, BAR + 8) + 1
    for j in range(4):
        g = s.place(dma_kv('K', j, sOff), g, g + 8) + 6
    assert g < 160
    g = nxt.place(f's_add_u32 m0, {sr(sT1)}, 16384', 0, 6) + 1
    for j in range(4):
        g = nxt.place(dma_kv('V', j, sOff), g, g + 8) + 8
    g = nxt.place(f's_add_u32 {sr(sOff)}, {sr(sOff)}, 16384', g - 6, g + 8)
    assert g < 58

def code_prefetch(g, start, end, srd, vtmp, vdst):
    g(f's_getpc_b64 {sr(srd,2)}')
    g.label(f'Lpc_{start[:4]}')
    g(f's_mov_b32 {sr(srd+2)}, {end}-Lpc_{start[:4]}')
    g(f's_mov_b32 {sr(srd+3)}, 0x20000')
    g(f'v_lshlrev_b32 {vr(vtmp)}, 7, v0')
    g('s_bfe_u32 s7, s2, 0x10003')
    g('s_lshl_b32 s7, s7, 15')
    g(f'buffer_load_dword {vr(vdst)}, {vr(vtmp)}, {sr(srd,4)}, s7 offen')

def kernel1(g):
    g.raw(f'.globl {KN}\n.p2align 8\n.type {KN},@function')
    g.label(KN)
    g('s_cmp_ge_u32 s2, 256')
    g('s_cbranch_scc1 L1_done')
    stamp(g, 3)
    g('s_load_dwordx4 s[28:31], s[0:1], 0')
    g('s_load_dwordx4 s[32:35], s[0:1], 16')
    g('s_load_dwordx2 s[36:37], s[0:1], 56')
    g('s_load_dwordx4 s[96:99], s[0:1], 32')
    g('s_load_dwordx2 s[94:95], s[0:1], 48')
    t = lambda i: vr(vQ + i)
    g(f'v_lshrrev_b32 {t(0)}, 6, v0')
    g(f'v_and_b32 {t(1)}, 63, v0')
    g(f'v_readfirstlane_b32 {sr(sW)}, {t(0)}')
    if OPT['ipf']:
        code_prefetch(g, 'attn_kernel', 'L1_end', 24, 23, 22)
    if OPT['map'] == 0:
        g('s_and_b32 s3, s2, 7')
        g('s_lshr_b32 s4, s2, 3')
        g('s_mul_i32 s5, s4, 57'); g('s_lshr_b32 s5, s5, 9'); g('s_mul_i32 s5, s5, 9'); g('s_sub_u32 s5, s4, s5')
    else:
        g('s_and_b32 s3, s2, 1'); g('s_lshl_b32 s3, s3, 2'); g('s_bfe_u32 s5, s2, 0x20003'); g('s_add_u32 s3, s3, s5')
        g('s_bfe_u32 s4, s2, 0x20001'); g('s_lshl_b32 s4, s4, 3'); g('s_lshr_b32 s6, s2, 5'); g('s_add_u32 s4, s4, s6')
        g('s_lshl_b32 s5, s5, 1'); g('s_add_u32 s5, s5, s6'); g('s_sub_u32 s6, s5, 9'); g('s_min_u32 s5, s5, s6')
    if OPT['qrot'] == 3:
        g('s_mul_i32 s6, s5, 11'); g('s_lshr_b32 s6, s6, 5'); g('s_mul_i32 s6, s6, 3'); g('s_sub_u32 s5, s5, s6')
        g(f's_lshl_b32 {sr(sCh)}, s5, 7')
        for k in (1, 2):
            g(f's_add_u32 {sr(sCh+k)}, {sr(sCh+k-1)}, 128'); g(f's_sub_u32 s6, {sr(sCh+k)}, 384'); g(f's_min_u32 {sr(sCh+k)}, {sr(sCh+k)}, s6')
    if OPT['qrot']:
        g(f's_lshl_b32 {sr(sCx)}, s5, 7')
        g(f's_lshl_b32 {sr(sCw)}, s5, 19')
    else:
        g(f's_mov_b32 {sr(sCx)}, 0'); g(f's_mov_b32 {sr(sCw)}, 0')
    g(f's_lshl_b32 {sr(sW1K)}, {sr(sW)}, 10')
    g(f's_lshl_b32 {sr(sW4K)}, {sr(sW)}, 12')
    g(f'v_and_b32 {t(2)}, 3, {t(1)}')
    g(f'v_bfe_u32 {t(3)}, {t(1)}, 2, 2')
    g(f'v_lshrrev_b32 {t(4)}, 4, {t(1)}')
    g(f'v_lshlrev_b32 {t(8)}, 6, {t(4)}')
    g(f'v_lshl_add_u32 {t(8)}, {t(2)}, 4, {t(8)}')
    g(f'v_lshl_add_u32 {t(9)}, {t(3)}, 13, {t(8)}')
    g(f'v_lshl_add_u32 {vr(vW0)}, {t(0)}, 17, {t(9)}')
    g(f'v_xor_b32 {vr(vW1)}, 48, {vr(vW0)}')
    g(f'v_bfe_u32 {t(7)}, {t(1)}, 2, 3')
    g(f'v_lshl_add_u32 {t(9)}, {t(0)}, 3, {t(7)}')
    g(f'v_mul_u32_u24 {t(9)}, 1152, {t(9)}')
    g(f'v_and_b32 {t(6)}, 1, {t(0)}')
    g(f'v_lshlrev_b32 {t(10)}, 1, {t(6)}')
    g(f'v_xor_b32 {t(10)}, {t(10)}, {t(2)}')
    g(f'v_lshl_add_u32 {t(9)}, {t(10)}, 4, {t(9)}')
    g(f'v_lshrrev_b32 {t(5)}, 5, {t(1)}')
    g(f'v_lshl_add_u32 {vr(vXvo)}, {t(5)}, 6, {t(9)}')
    g('s_mul_i32 s6, s3, 331776')
    g('s_lshl_b32 s7, s4, 8')
    g(f's_mov_b32 {sr(sX+2)}, 331776')
    g(f's_mov_b32 {sr(sX+3)}, 0x20000')
    g(f's_sub_u32 {sr(sWQ+2)}, {576*8192}, s7')
    g(f's_mov_b32 {sr(sWQ+3)}, 0x20000')
    g('s_waitcnt lgkmcnt(0)')
    stamp(g, 3)
    g(f's_add_u32 {sr(sX)}, s28, s6')
    g(f's_addc_u32 {sr(sX+1)}, s29, 0')
    g(f's_add_u32 {sr(sWQ)}, s34, s7')
    g(f's_addc_u32 {sr(sWQ+1)}, s35, 0')
    g.many(qchunk_dma(0))
    stamp(g, 2)
    weave_from = len(g.L)
    g('s_lshl_b32 s5, s3, 5')
    g('s_add_u32 s5, s5, s4')
    g('s_lshl_b32 s6, s5, 19')
    g(f's_add_u32 {sr(sK)}, s30, s6')
    g(f's_addc_u32 {sr(sK+1)}, s31, 0')
    g(f's_mov_b32 {sr(sK+2)}, 524288')
    g(f's_mov_b32 {sr(sK+3)}, 0x20000')
    g(f's_add_u32 {sr(sV)}, s32, s6')
    g(f's_addc_u32 {sr(sV+1)}, s33, 0')
    g(f's_sub_u32 {sr(sV)}, {sr(sV)}, 16384')
    g(f's_subb_u32 {sr(sV+1)}, {sr(sV+1)}, 0')
    g(f's_mov_b32 {sr(sV+2)}, {524288+16384}')
    g(f's_mov_b32 {sr(sV+3)}, 0x20000')
    g(f's_mul_i32 s5, s3, {18*131072}')
    g('s_lshl_b32 s6, s4, 12')
    g('s_add_u32 s5, s5, s6')
    g(f's_add_u32 {sr(sO)}, s36, s5')
    g(f's_addc_u32 {sr(sO+1)}, s37, 0')
    g(f's_mov_b32 {sr(sO+2)}, {17*131072+4096}')
    g(f's_mov_b32 {sr(sO+3)}, 0x20000')
    g(f'v_lshlrev_b32 {vr(vL16)}, 4, {t(1)}')
    g(f'v_lshl_add_u32 {t(9)}, {t(3)}, 8, {t(8)}')
    g(f'v_lshl_add_u32 {vr(vKV0)}, {t(0)}, 12, {t(9)}')
    g(f'v_xor_b32 {vr(vKV1)}, 48, {vr(vKV0)}')
    g(f'v_and_b32 {t(11)}, 1, {t(4)}')
    g(f'v_lshl_or_b32 {t(12)}, {t(11)}, 1, {t(5)}')
    g(f'v_and_b32 {t(13)}, 1, {t(3)}')
    g(f'v_mul_u32_u24 {t(13)}, 3, {t(13)}')
    g(f'v_xor_b32 {t(12)}, {t(12)}, {t(13)}')
    g(f'v_lshlrev_b32 {t(12)}, 4, {t(12)}')
    g(f'v_lshl_add_u32 {t(12)}, {t(2)}, 6, {t(12)}')
    g(f'v_lshl_add_u32 {t(12)}, {t(3)}, 10, {t(12)}')
    g(f'v_lshl_add_u32 {vr(vKb)}, {t(6)}, 13, {t(12)}')
    g(f'v_xor_b32 {vr(vKb+1)}, 8192, {vr(vKb)}')
    g(f'v_mul_u32_u24 {t(13)}, 3, {t(11)}')
    g(f'v_lshrrev_b32 {t(14)}, 1, {t(2)}')
    g(f'v_xor_b32 {t(13)}, {t(13)}, {t(14)}')
    g(f'v_lshlrev_b32 {t(13)}, 4, {t(13)}')
    g(f'v_and_b32 {t(14)}, 1, {t(2)}')
    g(f'v_lshl_add_u32 {t(13)}, {t(14)}, 3, {t(13)}')
    g(f'v_lshl_add_u32 {t(13)}, {t(3)}, 6, {t(13)}')
    g(f'v_lshl_add_u32 {t(14)}, {t(4)}, 10, {t(13)}')
    g(f'v_lshl_add_u32 {vr(vVb)}, {t(6)}, 13, {t(14)}')
    g(f'v_xor_b32 {vr(vVb+1)}, 8192, {vr(vVb)}')
    g(f'v_lshl_add_u32 {t(14)}, {t(4)}, 11, {t(13)}')
    g(f'v_lshl_add_u32 {t(14)}, {t(6)}, 9, {t(14)}')
    g(f'v_add_u32 {vr(vWa)}, {XB}, {t(14)}')
    g(f'v_xor_b32 {vr(vWa+1)}, 32, {vr(vWa)}')
    g(f'v_xor_b32 {vr(vWa+2)}, 512, {vr(vWa)}')
    g(f'v_xor_b32 {vr(vWa+3)}, 512, {vr(vWa+1)}')
    g(f'v_bfe_u32 {t(14)}, {t(1)}, 3, 1')
    g(f'v_lshlrev_b32 {t(15)}, 1, {t(14)}')
    g(f'v_xor_b32 {t(15)}, {t(15)}, {t(4)}')
    g(f'v_lshlrev_b32 {t(15)}, 4, {t(15)}')
    g(f'v_lshl_add_u32 {t(15)}, {t(14)}, 10, {t(15)}')
    g(f'v_and_b32 {t(14)}, 7, {t(1)}')
    g(f'v_lshl_add_u32 {t(15)}, {t(14)}, 6, {t(15)}')
    g(f'v_lshl_add_u32 {vr(vXa)}, {t(0)}, 13, {t(15)}')
    g(f'v_lshrrev_b32 {t(14)}, 1, {t(0)}')
    g(f'v_lshl_add_u32 {t(15)}, {t(14)}, 11, {t(15)}')
    g(f'v_add_u32 {vr(vXc)}, 32768, {t(15)}')
    cs = f2u(math.log2(math.e) / math.sqrt(128.0))
    g(f's_mov_b32 {sr(sC)}, {cs:#x}')
    g(f's_mov_b32 {sr(sC+1)}, {cs:#x}')
    g(f's_mov_b32 {sr(sPass)}, 0')
    g(f's_lshl_b32 {sr(sB4)}, s3, 2')
    g(f's_mov_b32 {sr(sThr)}, {f2u(-1.0 if OPT["force_fallback"] else 2.0**24):#x}')
    g(f'v_cmp_eq_u32 vcc, 0, {t(2)}')
    g(f'v_mov_b32 {t(14)}, 0x3f803f80')
    g('s_nop 0')
    g(f'v_cndmask_b32 {t(14)}, 0, {t(14)}, vcc')
    for r in range(4):
        g(f'v_accvgpr_write_b32 {ar(aONE+r)}, {t(14)}')
    for r in range(180):
        g(f'v_accvgpr_write_b32 {ar(aO+r)}, 0')
    g.c('---- Q projection: Q^T = wq_h^T x_b^T, 9 chunks of 64, 3-deep LDS ring')
    def xread(j, X, i):
        a = vXa if X < 4 else vXc
        off = i*512 + (X*2048 if X < 4 else 0)
        return (f'ds_read_b128 {vr(vQ+40*(j&1)+8*X+4*i,4)}, {vr(a)} offset:{off}', ('X', j & 1, X, i))
    def wread(tau, i, jj):
        return (f'ds_read_b64_tr_b16 {ar(aV+8*(tau&3)+4*i+2*jj,2)}, {vr(vWa+2*(tau>>2)+(tau&1))} offset:{i*8192+jj*1024+((tau>>1)&1)*256}', ('W', tau & 3, i))
    wr = lambda tau: [wread(tau, i, jj) for i in range(2) for jj in range(2)]
    xr = lambda j, X: [xread(j, X, i) for i in range(2)]
    s = Sched(cap=3)
    gs = {}
    def acc(X, tau):
        return vACC + 32*X + 4*tau
    for j in range(9):
        for tau in range(8):
            gs[(j, tau)] = len(s.mf)
            for X in range(5 if tau < 4 else 4):
                for i in range(2):
                    d = vr(acc(X, tau), 4)
                    s.add(f'{MF} {d}, {ar(aV+8*(tau&3)+4*i,4)}, {vr(vQ+40*(j&1)+8*X+4*i,4)}, {d if (j or i) else 0}',
                          [('W', tau & 3, i), ('X', j & 1, X, i)])
    pre = xr(0, 0) + wr(0) + xr(0, 1) + xr(0, 2) + xr(0, 3) + xr(0, 4) + wr(1) + wr(2)
    for j in range(9):
        b0 = gs[(j, 0)]
        for tau in range(3, 8):
            lo = gs[(j, tau - 3)] + 1
            s.seq(wr(tau), lo, lo + 7)
        bar = b0 + 52
        vm = 13 if j + 1 <= 7 else (4 if j + 1 == 8 else None)
        s.put(bar, 's_waitcnt ' + (f'vmcnt({vm}) ' if vm is not None else '') + 'lgkmcnt(0)')
        s.put(bar, 's_barrier')
        if j < 8:
            dlt = QBUF if ((j + 1) % 3) else (-2*QBUF) & 0xffffffff
            s.seq([f'v_add_u32 {vr(rg)}, {dlt:#x}, {vr(rg)}' for rg in (vXa, vWa, vWa+1, vXc, vWa+2, vWa+3)], bar - 4, bar - 1)
            gq = s.seq(xr(j+1, 0) + wr(0) + xr(j+1, 1) + xr(j+1, 2) + xr(j+1, 3) + xr(j+1, 4), bar + 1, bar + 12)
            gq = s.seq(wr(1), max(gq, gs[(j, 6)] + 1), b0 + 71)
            s.seq(wr(2), max(gq, gs[(j, 7)] + 1), b0 + 71)
        if j + 3 <= 8:
            dma = qchunk_dma(j + 3)
        elif j == 6:
            dma = pair_const(0)
        elif j == 7:
            dma = pair_const(1)
        else:
            dma = sum((pair_const(u) for u in range(2, PD)), [])
        if j < 8:
            gq = bar + 1
            for x in dma:
                gq = s.place(x, gq, bar + 66)
                if x.startswith('buffer'):
                    gq += OPT['qsp'] if j < 6 else 7
            assert gq < bar + 70, gq - bar
        else:
            lastdma = dma
    body = g.L[weave_from:]
    first_acc = next(k for k, x in enumerate(body) if 'v_accvgpr_write_b32 a0,' in x)
    head, accw = body[:first_acc], body[first_acc:]
    del g.L[weave_from:]
    g.L += head
    d1 = qchunk_dma(1)
    for k, x in enumerate(accw):
        g.L.append(x)
        if k % 4 == 3 and d1:
            g(d1.pop(0))
    g.many(d1)
    gq = 0
    for x in qchunk_dma(2):
        gq = s.place(x, gq, 50)
        if x.startswith('buffer'):
            gq += 3
    stamp(g, 2)
    g('s_waitcnt vmcnt(13)')
    g('s_barrier')
    stamp(g, 3)
    if OPT['stamp'] & 2:
        for j in (1, 2, 3, 4, 6, 7, 8):
            s.put(gs[(j, 0)], f's_memtime {sr(sST + 2*nstamp[0], 2)}')
            nstamp[0] += 1
    g.many([x for x, _ in pre])
    gq = gs[(8, 0)] + 53
    while lastdma and gq < len(s.mf):
        x = lastdma.pop(0)
        s.put(gq, x)
        if x.startswith('buffer'):
            gq += 1
    s.resolve(pending=[(tag, -8) for _, tag in pre], look=5, mind=4)
    s.emit(g)
    stamp(g, 4)
    g.many(lastdma)
    stamp(g, 7)
    g.c('---- scale by log2(e)/sqrt(128), round to bf16, exchange the shared tile')
    def conv(srcA, dst):
        for k in range(4):
            g(f'v_pk_mul_f32 {vr(srcA+2*k,2)}, {vr(srcA+2*k,2)}, {sr(sC,2)}')
        for k in range(4):
            g(f'v_cvt_pk_bf16_f32 {vr(dst+k)}, {vr(srcA+2*k)}, {vr(srcA+2*k+1)}')
    def swaps(dst):
        g(f'v_permlane16_swap_b32 {vr(dst)}, {vr(dst+2)}')
        g(f'v_permlane16_swap_b32 {vr(dst+1)}, {vr(dst+3)}')
    conv(acc(4, 0), vQ + 64)
    conv(acc(4, 2), vQ + 68)
    g(f's_lshl_b32 {sr(sT0)}, {sr(sW)}, 11')
    g(f's_add_u32 {sr(sT0)}, {sr(sT0)}, {EXCH}')
    g(f'v_add_u32 {vr(vXa)}, {sr(sT0)}, {vr(vL16)}')
    swaps(vQ + 64); swaps(vQ + 68)
    g(f's_and_b32 {sr(sT0)}, {sr(sT0)}, {~4095 & 0xffffffff:#x}')
    g(f'v_add_u32 {vr(17)}, {sr(sT0)}, {vr(vL16)}')
    g(f'ds_write_b128 {vr(vXa)}, {vr(vQ+64,4)}')
    g(f'ds_write_b128 {vr(vXa)}, {vr(vQ+68,4)} offset:1024')
    stamp(g, 4)
    g(f's_bitcmp1_b32 {sr(sW)}, 0')
    g('s_cbranch_scc1 L1_conv_odd')
    for p in range(2):
        prev = None
        for X in range(4):
            for il in range(4):
                dst = vQ + 16*X + 4*(il ^ (2*p))
                conv(acc(X, 2*il), dst)
                if prev is not None:
                    swaps(prev)
                prev = dst
        g('s_nop 1')
        swaps(prev)
        if p == 0:
            g('s_branch L1_conv_done')
            g.label('L1_conv_odd')
    g.label('L1_conv_done')
    g(f's_mov_b32 {sr(sSlot)}, 0')
    g.many(addr_update())
    stamp(g, 4)
    g(f's_waitcnt vmcnt({8*(PD-1)}) lgkmcnt(0)')
    stamp(g, 4)
    g('s_barrier')
    stamp(g, 5)
    for i in range(4):
        g(kread(0, i))
    for i in range(4):
        g(f'ds_read_b128 {vr(vQ+64+4*i,4)}, {vr(17)} offset:{i*1024}')
    g.c('---- stand-in for the row max: exact max over the first 16 keys this wave sees (checked at the end)')
    vR = vT
    vM = vT + 20
    g('s_waitcnt lgkmcnt(4)')
    for c in range(5):
        if c == 4:
            g('s_waitcnt lgkmcnt(0)')
        for i in range(4):
            g(qk_mf(c, i, '0', vR + 4*c)[0])
    g('s_nop 3')
    for X in range(5):
        g(f'v_max3_f32 {vr(vM+X)}, {vr(vR+4*X)}, {vr(vR+4*X+1)}, {vr(vR+4*X+2)}')
    for X in range(5):
        g(f'v_max_f32 {vr(vM+X)}, {vr(vM+X)}, {vr(vR+4*X+3)}')
    def setneg():
        for sw in ('v_permlane32_swap_b32', 'v_permlane16_swap_b32'):
            for X in range(5):
                g(f'v_mov_b32 {vr(vM+5+X)}, {vr(vM+X)}')
            g('s_nop 0')
            for X in range(5):
                g(f'{sw} {vr(vM+5+X)}, {vr(vM+X)}')
            g('s_nop 0')
            for X in range(5):
                g(f'v_max_f32 {vr(vM+X)}, {vr(vM+X)}, {vr(vM+5+X)}')
        for X in range(5):
            for r in range(4):
                g(f'v_sub_f32 {vr(vNEG+4*X+r)}, 0, {vr(vM+X)}')
    setneg()
    stamp(g, 4)
    g('s_lshr_b32 s4, s2, 3')
    g(f's_mul_i32 {sr(sQG)}, s4, 57')
    g(f's_lshr_b32 {sr(sQG)}, {sr(sQG)}, 9')
    g(f's_mul_i32 s6, {sr(sQG)}, 9')
    g(f's_sub_u32 {sr(sNG)}, s4, s6')
    g(f's_mul_i32 {sr(sRot)}, {sr(sQG)}, 3')
    g(f's_add_u32 {sr(sRot)}, {sr(sRot)}, {sr(sNG)}')
    g(f's_mul_i32 {sr(sRot)}, {sr(sRot)}, {(OPT["k2_PH"]*256)//9 + 1}')
    g(f's_lshr_b32 {sr(sRot)}, {sr(sRot)}, 8')
    g(f's_lshl_b32 s5, {sr(sNG)}, 7')
    g(f's_add_u32 {sr(sX)}, s96, s5')
    g(f's_addc_u32 {sr(sX+1)}, s97, 0')
    g(f's_sub_u32 {sr(sX+2)}, {4096*1152}, s5')
    g(f's_cmp_ge_u32 {sr(sQG)}, 3')
    g(f's_cselect_b32 {sr(sX+2)}, 0, {sr(sX+2)}')
    g(f'v_bfe_u32 v18, {vr(vL16)}, 6, 3')
    g(f'v_add_u32 v18, {sr(sW1K)}, v18')
    g('v_mul_u32_u24 v18, 1152, v18')
    g(f'v_lshrrev_b32 v19, 9, {vr(vL16)}')
    g('v_lshl_add_u32 v18, v19, 6, v18')
    g(f'v_bfe_u32 v19, {vr(vL16)}, 8, 1')
    g('v_lshlrev_b32 v19, 5, v19')
    g(f'v_and_b32 v20, 48, {vr(vL16)}')
    g('v_xor_b32 v19, v19, v20')
    g('v_add_u32 v17, v19, v18')
    g.label('L1_main')
    g.c('entry: pair 0 visible, raw scores of key tile 0 in vR, pairs 1..4 issued, O = l = 0, -m set')
    for i in range(4):
        g(kread(1, i))
    for X in range(5):
        for r in range(4):
            g(f'v_add_f32 {vr(vR+4*X+r)}, {vr(vR+4*X+r)}, {vr(vNEG+4*X)}')
    g(f's_mov_b32 {sr(sOff)}, {PD*16384}')
    g(f's_mov_b32 {sr(sCnt)}, 0')
    squad = lambda c: vR + 4*c if c < 5 else (vP + 40 + 4*(c - 5) if c < 15 else vS + 4*(c - 15))
    s = Sched(cap=3)
    for c in range(5, 18):
        for i in range(4):
            s.add(*qk_mf(c, i, None, squad(c)))
    s.seq([(kread(2, i), ('K', 0, i)) for i in range(4)], 0, 6)
    s.seq([(kread(3, i), ('K', 1, i)) for i in range(4)], 21, 28)
    BARP = 38
    s.seq(dst_update() + slot_update(), 8, 24)
    s.put(BARP, f's_waitcnt vmcnt({VMW}) lgkmcnt(0)')
    s.put(BARP, 's_barrier')
    s.seq(addr_update(), BARP - 6, BARP - 1)
    s.seq([(kread(0, i), ('K', 0, i)) for i in range(4)] +
          [(vread(dt, a, jj), ('V', dt, a)) for dt in range(2) for a in range(2) for jj in range(2)], BARP + 1, 51)
    flat = []
    prev = None
    for c in range(18):
        ex, cv = softmax_ops(c, 0, squad(c))
        lo = 0 if c < 5 else 4*(c - 5) + 9
        flat += [(lo, ex[0])] + ([(lo, prev)] if prev else []) + [(lo, ex[1]), (lo, ex[2]), (lo, cv[0]), (lo, ex[3])]
        prev = cv[1]
    tailops = []
    gq = 0
    nm = len(s.mf)
    for lo, x in flat:
        gq = max(gq, lo)
        while gq < nm and s.load(gq) + s.cost(x) > 4:
            gq += 1
        if gq >= nm:
            tailops.append(x)
        else:
            s.put(gq, x)
    tailops += ['s_nop 0', prev]
    stA, BA = build_stage(0)
    stB, BB = build_stage(1)
    if not OPT['nodma']:
        gq = s.place(f's_mov_b32 m0, {sr(sT1)}', BARP + 1, 51, cap=5) + 1
        for j in range(4):
            gq = s.place(dma_kv('K', j, sOff), gq, 51, cap=5) + 1
    add_dma(stA, BA, stB)
    add_dma(stB, BB, stA)
    pend = s.resolve(pending=[(('K', 1, i), -12) for i in range(4)], look=5, mind=4)
    s.emit(g)
    g.many(tailops)
    g('s_waitcnt lgkmcnt(0)')
    import copy
    carry = []
    for it in range(2):
        a, b = copy.deepcopy(stA), copy.deepcopy(stB)
        c1 = a.resolve(pending=carry)
        carry2 = b.resolve(pending=c1)
        if it == 1:
            assert carry2 == carry, (carry, carry2)
        carry = carry2
    print('stageA', a.loads(), file=sys.stderr)
    print('stageB', b.loads(), file=sys.stderr)
    a.put(150, f's_add_u32 {sr(sCnt)}, {sr(sCnt)}, 1')
    a.put(152, f's_cmp_eq_u32 {sr(sCnt)}, 16')
    assert not any(x[0].startswith('s_') and 'cmp' not in x[0] and 'wait' not in x[0] for x in a.gaps[152])
    stamp(g, 5)
    g.raw('.p2align 6')
    g.label('L1_loop')
    a.emit(g)
    g('s_cbranch_scc1 L1_tail')
    b.emit(g)
    g('s_branch L1_loop')
    g.label('L1_tail')
    stamp(g, 5)
    s = Sched(cap=3)
    for j in range(9):
        s.add(*sum_mf(j, 1))
    for j in range(72):
        s.add(*pv_mf(j, 1))
    for dt in range(2, 8):
        lo = 0 if dt < 4 else 9 + 9*(dt - 4) + 9
        s.seq([(vread(dt, a_, jj), ('V', dt & 3, a_)) for a_ in range(2) for jj in range(2)], lo, lo + 8)
    PH = OPT['k2_PH']; DO = OPT['DO']
    sWO, sO2, sOUT, sDB = sX, sWQ, sK, sV
    RNG = [0, 1, 6, 7, 2, 3, 5, 4, 8, 9]
    vWo = 17
    def kstep(st):
        return [f's_add_u32 {sr(sT0)}, {sr(sRot)}, {st & (PH-1)}',
                f's_and_b32 {sr(sT0)}, {sr(sT0)}, {PH-1}',
                f's_add_u32 {sr(sT0)}, {sr(sT0)}, {st & ~(PH-1)}']
    def wo_loads(st):
        w = kstep(st) + [f's_add_u32 m0, {sr(sW4K)}, {RNG[st % 10]*16384}', f's_mul_i32 {sr(sKw)}, {sr(sT0)}, 36864']
        for p in range(4):
            if p:
                w.append(f's_add_u32 {sr(sKw)}, {sr(sKw)}, 8192')
            w.append(f'buffer_load_dwordx4 {vr(vWo)}, {sr(sWO,4)}, {sr(sKw)} offen' + (f' offset:{p*1024}' if p else '') + f'{pol("pwo")} lds')
        return w
    gq = 0
    for st in range(4):
        for x in wo_loads(st):
            gq = s.place(x, gq, 60)
            if x.startswith('buffer'):
                gq += 1
    vl = vT + 32
    seq = [(0, f'v_add_u32 {vr(19)}, {sr(sW4K)}, {vr(vL16)}'), (0, f'v_add_u32 {vr(19)}, {4*SLOT}, {vr(19)}'),
           (0, f'v_lshrrev_b32 {vr(20)}, 2, {vr(vL16)}'), (0, f'v_add_u32 {vr(20)}, {2*SLOT}, {vr(20)}'),
           (0, f'v_add_u32 {vr(21)}, {sr(sW4K)}, {vr(20)}')]
    seq += [(14, f'v_accvgpr_read_b32 {vr(vl+X)}, {ar(aL+4*X)}') for X in range(5)]
    seq += [(14, f'v_cmp_nle_f32_e64 {d}, {vr(vl+X)}, {sr(sThr)}') for X, d in enumerate(('vcc', 's[4:5]', 's[6:7]', 's[28:29]', 's[30:31]'))]
    seq += [(14, f'v_rcp_f32 {vr(vl+X)}, {vr(vl+X)}') for X in range(4)]
    seq += [('S', ['s_or_b64 s[4:5], s[4:5], vcc', 's_or_b64 s[4:5], s[4:5], s[6:7]', 's_or_b64 s[28:29], s[28:29], s[30:31]',
                   's_or_b64 s[4:5], s[4:5], s[28:29]', 's_cselect_b32 s28, 1, 0',
                   f's_lshl_b32 s4, {sr(sW)}, 19', f's_add_u32 s5, s4, {131072}', f's_add_u32 s6, s4, {2*131072}', f's_add_u32 s7, s4, {3*131072}'])]
    seq += [(0, f'v_mov_b32 {vr(18)}, s28')]
    seq += [('S', ['s_waitcnt vmcnt(16)', f'ds_write_b32 {vr(21)}, {vr(vl+4)}', f'ds_write_b32 {vr(21)}, {vr(vNEG+16)} offset:256',
                   f'ds_write_b32 {vr(21)}, {vr(18)} offset:512'])]
    nf = 0
    for i in range(4):
        for X in range(4):
            rdy = 9 + 9*(2*i + 1) + 2*X + 1 + 5
            b = vP + 8*(nf % 5); d = vT + 4*(nf % 8); nf += 1
            seq += [(rdy, f'v_accvgpr_read_b32 {vr(b+r)}, {ar(aO+32*X+8*i+r)}') for r in range(8)]
            seq += [(rdy, f'v_mul_f32 {vr(b+r)}, {vr(b+r)}, {vr(vl+X)}') for r in range(8)]
            seq += [(rdy, f'v_cvt_pk_bf16_f32 {vr(d+k)}, {vr(b+2*k)}, {vr(b+2*k+1)}') for k in range(4)]
            seq += [('S', [f'buffer_store_dwordx4 {vr(d,4)}, {vr(vL16)}, {sr(sO,4)}, {sr(4+X)} offen offset:{i*1024}{pol("pos")}'])]
        seq += [('S', [f'ds_write_b128 {vr(19)}, {ar(aO+128+4*dt,4)} offset:{(dt>>2)*16384+(dt&3)*1024}' for dt in (2*i, 2*i+1)])]
    rest = []
    gq = 0
    nm = len(s.mf)
    lastdma_gap = max(x for x in range(nm) if any(t_.endswith('lds') for t_, _ in s.gaps[x]))
    for lo, x in seq:
        if lo == 'S':
            gq += 1
            if any('s_or_b64' in y or 'vmcnt' in y for y in x):
                gq = max(gq, lastdma_gap + 1)
            if gq >= nm:
                rest += x
            else:
                for y in x:
                    s.put(gq, y)
            continue
        gq = max(gq, lo)
        while gq < nm and s.load(gq) + s.cost(x) > 4:
            gq += 1
        if gq >= nm:
            rest.append(x)
        else:
            s.put(gq, x)
    s.resolve(pending=c1)
    print('tail', s.loads(), len(rest), file=sys.stderr)
    g('s_nop 0')
    s.emit(g)
    stamp(g, 4)
    g.c('---- epilogue')
    dsw = [x for x in rest if x.startswith('ds_write')]
    rest = [x for x in rest if not x.startswith('ds_write')]
    g.many(rest[:10])
    g.many(dsw)
    g.many(rest[10:])
    stamp(g, 4)
    g('s_waitcnt lgkmcnt(0)')
    g('s_barrier')
    for u in range(4):
        g(f'ds_read_b32 {vr(vS+u)}, {vr(20)} offset:{u*4096+512}')
    g(f'v_xor_b32 {vr(22)}, 4096, {vr(21)}')
    g(f'ds_read_b32 {vr(vS+4)}, {vr(22)}')
    g(f'ds_read_b32 {vr(vS+5)}, {vr(22)} offset:256')
    g(f's_and_b32 {sr(sT0)}, {sr(sW)}, 1')
    g(f's_lshl_b32 {sr(sT0)}, {sr(sT0)}, 14')
    g(f'v_add_u32 {vr(19)}, {sr(sT0)}, {vr(19)}')
    g(f'v_xor_b32 {vr(23)}, 4096, {vr(19)}')
    vA = vP + 40
    for j in range(4):
        g(f'ds_read_b128 {vr(vA+4*j,4)}, {vr(19)} offset:{j*1024}')
        g(f'ds_read_b128 {vr(vA+16+4*j,4)}, {vr(23)} offset:{j*1024}')
    g('s_waitcnt lgkmcnt(8)')
    g(f'v_or_b32 {vr(vS)}, {vr(vS)}, {vr(vS+1)}')
    g(f'v_or3_b32 {vr(vS)}, {vr(vS)}, {vr(vS+2)}, {vr(vS+3)}')
    g(f'v_min_f32 {vr(vS+6)}, {vr(vS+5)}, {vr(vNEG+16)}')
    g(f'v_readfirstlane_b32 {sr(sT0)}, {vr(vS)}')
    g(f'v_sub_f32 {vr(vS+8)}, {vr(vS+6)}, {vr(vNEG+16)}')
    g(f'v_sub_f32 {vr(vS+10)}, {vr(vS+6)}, {vr(vS+5)}')
    g(f's_andn2_b32 {sr(sT0)}, {sr(sT0)}, {sr(sPass)}')
    g('s_cbranch_scc1 L1_fallback')
    g(f'v_exp_f32 {vr(vS+8)}, {vr(vS+8)}')
    g(f'v_exp_f32 {vr(vS+10)}, {vr(vS+10)}')
    g(f's_lshr_b32 s4, {sr(sW)}, 1')
    g(f'v_mul_f32 {vr(vS+6)}, {vr(vS+8)}, {vr(vl+4)}')
    g(f'v_fmac_f32 {vr(vS+6)}, {vr(vS+10)}, {vr(vS+4)}')
    g(f'v_rcp_f32 {vr(vS+6)}, {vr(vS+6)}')
    g('s_lshl_b32 s4, s4, 17')
    g(f'v_mul_f32 {vr(vS+8)}, {vr(vS+8)}, {vr(vS+6)}')
    g(f'v_mul_f32 {vr(vS+10)}, {vr(vS+10)}, {vr(vS+6)}')
    g(f's_and_b32 s5, {sr(sW)}, 1')
    g('s_lshl_b32 s5, s5, 11')
    g('s_add_u32 s4, s4, s5')
    g(f's_add_u32 s4, s4, {16*131072}')
    g('s_waitcnt lgkmcnt(0)')
    for k in range(8):
        g(f'v_pk_mul_f32 {vr(vA+2*k,2)}, {vr(vA+2*k,2)}, {vr(vS+8,2)} op_sel_hi:[1,0]')
    for k in range(8):
        g(f'v_pk_fma_f32 {vr(vA+2*k,2)}, {vr(vA+16+2*k,2)}, {vr(vS+10,2)}, {vr(vA+2*k,2)} op_sel_hi:[1,0,1]')
    for k in range(8):
        g(f'v_cvt_pk_bf16_f32 {vr(vA+32+k)}, {vr(vA+2*k)}, {vr(vA+2*k+1)}')
    g(f'buffer_store_dwordx4 {vr(vA+32,4)}, {vr(vL16)}, {sr(sO,4)}, s4 offen{pol("pos")}')
    g(f'buffer_store_dwordx4 {vr(vA+36,4)}, {vr(vL16)}, {sr(sO,4)}, s4 offen offset:1024{pol("pos")}')
    stamp(g, 5)
    g.c('---- hand-off: all O stores of this workgroup are write-through and drained, then one counter add per workgroup')
    g(f's_mov_b32 {sr(sDB)}, s94')
    g(f's_mov_b32 {sr(sDB+1)}, s95')
    g(f's_mov_b32 {sr(sDB+2)}, 32')
    g(f's_mov_b32 {sr(sDB+3)}, 0x20000')
    g('s_and_b32 s3, s2, 7')
    g('s_mul_i32 s7, s3, 3')
    g(f's_add_u32 s7, s7, {sr(sQG)}')
    g(f's_mul_i32 s4, s7, {6*131072}')
    g(f's_add_u32 {sr(sO2)}, s36, s4')
    g(f's_addc_u32 {sr(sO2+1)}, s37, 0')
    g(f's_mov_b32 {sr(sO2+2)}, {6*131072}')
    g(f's_mul_i32 s4, s7, {96*1152}')
    g(f's_lshl_b32 s5, {sr(sNG)}, 7')
    g('s_add_u32 s4, s4, s5')
    g(f's_add_u32 {sr(sOUT)}, s98, s4')
    g(f's_addc_u32 {sr(sOUT+1)}, s99, 0')
    g(f's_sub_u32 {sr(sOUT+2)}, {2304*1152}, s4')
    g('s_lshl_b32 s3, s3, 2')
    vOo, vRa = 2, 8
    vOF = 24
    vWF = vOF + 24*DO
    g(f's_lshl_b32 s4, {sr(sW)}, 15')
    g(f'v_add_u32 {vr(vOo)}, s4, {vr(vL16)}')
    for X in range(1, 6):
        g(f'v_add_u32 {vr(vOo+X)}, {X*131072}, {vr(vOo)}')
    g(f'v_bfe_u32 v14, {vr(vL16)}, 6, 3')
    g('v_lshlrev_b32 v14, 6, v14')
    g(f'v_lshrrev_b32 v15, 9, {vr(vL16)}')
    g('v_lshl_add_u32 v14, v15, 10, v14')
    g(f'v_bfe_u32 v16, {vr(vL16)}, 8, 1')
    g('v_lshl_add_u32 v14, v16, 5, v14')
    g(f'v_bfe_u32 v18, {vr(vL16)}, 4, 2')
    g('v_lshl_add_u32 v14, v18, 3, v14')
    g(f'v_add_u32 {vr(vRa)}, {sr(sW4K)}, v14')
    g(f'v_xor_b32 {vr(vRa+1)}, 32, {vr(vRa)}')
    for k in (1, 2):
        g(f'v_add_u32 {vr(vRa+2*k)}, {65536*k}, {vr(vRa)}')
        g(f'v_add_u32 {vr(vRa+2*k+1)}, {65536*k}, {vr(vRa+1)}')
    g('v_mov_b32 v19, 1')
    g('s_waitcnt vmcnt(0)')
    stamp(g, 5)
    g('s_barrier')
    g(f's_cmp_lg_u32 {sr(sW)}, 0')
    g('s_cbranch_scc1 L1_nosig')
    g('s_mov_b64 exec, 1')
    g(f'buffer_atomic_add v19, off, {sr(sDB,4)}, {sr(sB4)} sc1')
    g('s_mov_b64 exec, -1')
    g.label('L1_nosig')
    g(f's_cmp_ge_u32 {sr(sQG)}, 3')
    g('s_cbranch_scc1 ' + ('L1_fin' if OPT['stamp'] else 'L1_done'))
    vq = []
    for st in range(4, 10):
        g.many(wo_loads(st))
        vq += [('w', st)] * 4
    g(f's_cmp_lg_u32 {sr(sW)}, 0')
    g('s_cbranch_scc1 L1_go')
    g(f's_mov_b32 {sr(sCnt)}, 0')
    g.label('L1_poll')
    g(f'buffer_load_dword v19, off, {sr(sDB,4)}, s3 sc1')
    g(f's_add_u32 {sr(sCnt)}, {sr(sCnt)}, 1')
    g('s_waitcnt vmcnt(0)')
    g('v_readfirstlane_b32 s4, v19')
    g(f's_cmp_gt_u32 {sr(sCnt)}, 400000')
    g('s_cbranch_scc1 L1_go')
    g('s_cmp_ge_u32 s4, 32')
    g('s_cbranch_scc1 L1_go')
    g('s_sleep 1')
    g('s_branch L1_poll')
    g.label('L1_go')
    g('s_barrier')
    stamp(g, 5)
    g.c('---- output projection: 96 x 64 tile, K split over the 4 waves')
    def o_loads(st):
        sl = st % DO
        return kstep(st) + [f's_lshl_b32 {sr(sKo)}, {sr(sT0)}, 10'], \
               [f'buffer_load_dwordx4 {vr(vOF+24*sl+4*X,4)}, {vr(vOo+X)}, {sr(sO2,4)}, {sr(sKo)} offen{pol("pol")}' for X in range(6)]
    for st in range(DO):
        a_, o = o_loads(st)
        g.many(a_ + o)
        vq += [('o', st)] * 6
    def reads(st):
        r = RNG[st % 10]
        b = vWF + 16*(st & 1)
        return [f'ds_read_b64_tr_b16 {vr(b+4*nt+2*jj,2)}, {vr(vRa+2*(r>>2)+(nt&1))} offset:{(r&3)*16384+jj*2048+(nt>>1)*512}' for nt in range(4) for jj in range(2)]
    def vwait(tags):
        idx = [k for k, tg in enumerate(vq) if tg in tags]
        return len(vq) - 1 - idx[-1] if idx else 63
    g.many(reads(0))
    NS = 32
    for st in range(NS):
        sl = st % DO
        if st + 1 < NS:
            n1 = vwait([('w', st + 1)])
            n2 = vwait([('o', st)])
            if n1 < 63 and n1 > n2:
                g(f's_waitcnt vmcnt({min(n1, 63)})')
            elif n1 < 63:
                g(f's_waitcnt vmcnt({n1})')
            g.many(reads(st + 1))
            g(f's_waitcnt vmcnt({min(n2, 63)}) lgkmcnt(8)')
        else:
            g('s_waitcnt vmcnt(0) lgkmcnt(0)')
        w = wo_loads(st + 10) if st + 10 < NS else []
        a_, o = o_loads(st + DO) if st + DO < NS else ([], [])
        b = vWF + 16*(st & 1)
        for X in range(6):
            for nt in range(4):
                d = ar(4*(4*X + nt), 4)
                g(f'{MF} {d}, {vr(b+4*nt,4)}, {vr(vOF+24*sl+4*X,4)}, {d if st else 0}')
                m = 4*X + nt
                if m < 2:
                    g.many(a_[2*m:2*m+2])
                elif o and m >= 5 and nt == 1:
                    g(o.pop(0)); vq.append(('o', st + DO))
                elif w:
                    k = 0
                    while w and k < 2:
                        x = w.pop(0); g(x); k += 1
                        if x.startswith('buffer'):
                            vq.append(('w', st + 10)); break
        if o:
            g('s_nop 0')
            g(o.pop(0)); vq.append(('o', st + DO))
        assert not o and not w
    stamp(g, 5)
    g(f'v_add_u32 v9, {sr(sW4K)}, {vr(vL16)}')
    g('v_add_u32 v10, 65536, v9')
    g(f'v_bfe_u32 v11, {vr(vL16)}, 4, 4')
    g('v_mul_u32_u24 v11, 1152, v11')
    g('v_lshl_add_u32 v11, v15, 4, v11')
    g('v_lshl_add_u32 v11, v16, 5, v11')
    g('s_nop 1')
    for j in range(24):
        r = j >> 2
        g(f'ds_write_b128 {"v9" if r < 4 else "v10"}, {ar(4*j,4)} offset:{(r&3)*16384+(j&3)*1024}')
    for e in range(3):
        g(f's_mul_i32 s4, {sr(sW)}, 3')
        g(f's_add_u32 s4, s4, {e}')
        g('s_lshr_b32 s5, s4, 1')
        g('s_and_b32 s4, s4, 1')
        g('s_lshl_b32 s6, s5, 14')
        g('s_lshl_b32 s7, s4, 11')
        g('s_add_u32 s6, s6, s7')
        g(f'v_add_u32 {vr(12+e)}, s6, {vr(vL16)}')
        g('s_mul_i32 s5, s5, 18432')
        g('s_lshl_b32 s4, s4, 6')
        g(f's_add_u32 {sr(44+e)}, s4, s5')
    g('s_waitcnt lgkmcnt(0)')
    g('s_barrier')
    for u in range(4):
        for j in range(6):
            g(f'ds_read_b128 {vr(24+24*u+4*j,4)}, {vr(12+(j>>1))} offset:{u*4096+(j&1)*1024}')
    g('s_waitcnt lgkmcnt(12)')
    for k in range(12):
        g(f'v_pk_add_f32 {vr(24+2*k,2)}, {vr(24+2*k,2)}, {vr(48+2*k,2)}')
    g('s_waitcnt lgkmcnt(0)')
    for k in range(12):
        g(f'v_pk_add_f32 {vr(72+2*k,2)}, {vr(72+2*k,2)}, {vr(96+2*k,2)}')
    for k in range(12):
        g(f'v_pk_add_f32 {vr(24+2*k,2)}, {vr(24+2*k,2)}, {vr(72+2*k,2)}')
    for k in range(12):
        g(f'v_cvt_pk_bf16_f32 {vr(120+k)}, {vr(24+2*k)}, {vr(24+2*k+1)}')
    g('s_nop 1')
    for e in range(3):
        g(f'v_permlane16_swap_b32 {vr(120+4*e)}, {vr(122+4*e)}')
        g(f'v_permlane16_swap_b32 {vr(121+4*e)}, {vr(123+4*e)}')
    for e in range(3):
        g(f'buffer_store_dwordx4 {vr(120+4*e,4)}, v11, {sr(sOUT,4)}, {sr(44+e)} offen')
    if OPT['stamp']:
        g('s_waitcnt vmcnt(0)')
        stamp(g, 5)
        g.label('L1_fin')
        emit_stamps(g, 36, 0)
    g.label('L1_done')
    g('s_endpgm')
    g.c('---- fallback: the stand-in was unsafe.  Scan all keys for the true row max, then redo the main pass.')
    g.label('L1_fallback')
    g(f's_mov_b32 {sr(sPass)}, 1')
    g('s_waitcnt vmcnt(0) lgkmcnt(0)')
    for X in range(5):
        g(f'v_mov_b32 {vr(vM+X)}, 0xff800000')
    g(f's_mov_b32 {sr(sOff)}, 0')
    g(f's_mov_b32 {sr(sSlot)}, 0')
    g.many(addr_update())
    g.label('L1_scan')
    g('s_barrier')
    g(f's_mov_b32 m0, {sr(sW4K)}')
    g('s_nop 0')
    for j in range(4):
        g(dma_kv('K', j, sOff))
    g(f's_add_u32 {sr(sOff)}, {sr(sOff)}, 16384')
    g('s_waitcnt vmcnt(0)')
    g('s_barrier')
    for kt in range(4):
        for i in range(4):
            g(kread(kt, i, aK))
        g('s_waitcnt lgkmcnt(0)')
        for c in range(5):
            for i in range(4):
                g(qk_mf(c, i, '0', vR + 4*c)[0])
        g('s_nop 7')
        for X in range(5):
            g(f'v_max3_f32 {vr(vM+X)}, {vr(vM+X)}, {vr(vR+4*X)}, {vr(vR+4*X+1)}')
            g(f'v_max3_f32 {vr(vM+X)}, {vr(vM+X)}, {vr(vR+4*X+2)}, {vr(vR+4*X+3)}')
    g(f's_cmp_lt_u32 {sr(sOff)}, 524288')
    g('s_cbranch_scc1 L1_scan')
    g('s_barrier')
    for u in range(PD):
        g.many(pair_const(u))
    setneg()
    for r in range(180):
        g(f'v_accvgpr_write_b32 {ar(aO+r)}, 0')
    g(f's_waitcnt vmcnt({8*(PD-1)})')
    g('s_barrier')
    for i in range(4):
        g(kread(0, i))
    g('s_waitcnt lgkmcnt(0)')
    for c in range(5):
        for i in range(4):
            g(qk_mf(c, i, '0', vR + 4*c)[0])
    g('s_nop 7')
    g('s_branch L1_main')
    g.label('L1_end')

def emit_stamps(g, sws, kidx):
    n = nstamp[0]
    assert n <= 13
    g(f's_memrealtime {sr(sRT+2, 2)}')
    g('s_waitcnt lgkmcnt(0)')
    g(f's_add_u32 s8, {sr(sws)}, {STAMP_OFF + kidx*(1<<20)}')
    g(f's_addc_u32 s9, {sr(sws+1)}, 0')
    g('s_mov_b32 s10, 0x100000')
    g('s_mov_b32 s11, 0x20000')
    g('s_lshl_b32 s4, s2, 2')
    g(f's_add_u32 s4, s4, {sr(sW)}')
    g('s_lshl_b32 s4, s4, 7')
    g('s_mov_b64 exec, 1')
    g('v_mov_b32 v2, 0')
    for reg, off in [(sST+2*i, 8*i) for i in range(n)] + [(sRT, 104), (sRT+2, 112)]:
        g(f'v_mov_b32 v4, {sr(reg)}')
        g(f'v_mov_b32 v5, {sr(reg+1)}')
        g(f'buffer_store_dwordx2 v[4:5], v2, s[8:11], s4 offen offset:{off}')
        g('s_nop 1')
    g('s_getreg_b32 s5, hwreg(HW_REG_XCC_ID)')
    g('v_mov_b32 v4, s5')
    g('buffer_store_dword v4, v2, s[8:11], s4 offen offset:120')
    print('stamps', kidx, n, file=sys.stderr)
    nstamp[0] = 0

def kd(name, nv, acc):
    return f'''.p2align 6
.amdhsa_kernel {name}
  .amdhsa_next_free_vgpr {nv}
  .amdhsa_next_free_sgpr 102
  .amdhsa_accum_offset {acc}
  .amdhsa_group_segment_fixed_size 0
  .amdhsa_kernarg_size 64
  .amdhsa_user_sgpr_count 2
  .amdhsa_user_sgpr_kernarg_segment_ptr 1
  .amdhsa_system_sgpr_workgroup_id_x 1
  .amdhsa_float_denorm_mode_32 3
.end_amdhsa_kernel'''

def main():
    here = os.path.dirname(os.path.abspath(__file__))
    g = G()
    kernel1(g)
    out = open(here + '/header3.txt').read()
    out += '.amdgcn_target "amdgcn-amd-amdhsa--gfx950"\n.text\n'
    out += '\n'.join(g.L) + '\n'
    out += '.section .rodata,"a"\n' + kd(KN, 512, 256) + '\n'
    open(sys.argv[1], 'w').write(out)

main()
```

```python
import sys, math, struct, re, os

OPT = dict(stamp=0, force_fallback=0, k2_D=6, k2_PH=8, nodma=0, map=1, qrot=0, pd=3, qsp=4, ipf=1, DO=3, map2=0, dbg=0,
           px=0, pwq=0, pos=2, pol=2, pwo=0, pkv=1, wopf=0)
for a in sys.argv[2:]:
    k, v = a.split('=')
    assert k in OPT, k
    OPT[k] = int(v)
POL = ['', ' nt', ' sc1', ' sc0 sc1', ' sc1 nt', ' sc0 sc1 nt', ' sc0']
pol = lambda k: POL[OPT[k]]

def f2u(x):
    return struct.unpack('<I', struct.pack('<f', x))[0]

class G:
    def __init__(self):
        self.L = []
    def __call__(self, s):
        self.L.append('    ' + s)
    def many(self, xs):
        for x in xs:
            self(x)
    def label(self, s):
        self.L.append(s + ':')
    def c(self, s):
        self.L.append('    ; ' + s)
    def raw(self, s):
        self.L.append(s)

vr = lambda b, n=1: f'v{b}' if n == 1 else f'v[{b}:{b+n-1}]'
ar = lambda b, n=1: f'a{b}' if n == 1 else f'a[{b}:{b+n-1}]'
sr = lambda b, n=1: f's{b}' if n == 1 else f's[{b}:{b+n-1}]'
MF = 'v_mfma_f32_16x16x32_bf16'
STAMP_OFF = 32 << 20
KN = 'standalone__mha_block_cached__near_ridge_kernel'

class Sched:
    def __init__(self, cap=2):
        self.mf = []
        self.gaps = []
        self.cap = cap
    def add(self, text, needs=()):
        self.mf.append((text, tuple(needs)))
        self.gaps.append([])
        return len(self.mf) - 1
    @staticmethod
    def cost(t):
        return 2 if t.startswith('v_exp') else 1
    def load(self, g):
        return sum(self.cost(t) for t, _ in self.gaps[g])
    def put(self, g, text, tag=None):
        self.gaps[g].append((text, tag))
        return g
    def place(self, text, lo, hi, tag=None, cap=None):
        cap = cap or self.cap
        hi = min(hi, len(self.mf) - 1)
        assert lo <= hi, (text, lo, hi)
        for g in range(lo, hi + 1):
            if self.load(g) + self.cost(text) <= cap:
                return self.put(g, text, tag)
        best = min(range(lo, hi + 1), key=self.load)
        return self.put(best, text, tag)
    def seq(self, texts, lo, hi, step=0):
        g = lo
        for t in texts:
            tag = None
            if isinstance(t, tuple):
                t, tag = t
            g = self.place(t, g, hi, tag) + step
        return g
    def order(self, g):
        a = [x for x in self.gaps[g] if not x[0].startswith('v_')]
        b = [x for x in self.gaps[g] if x[0].startswith('v_')]
        return a + b
    def resolve(self, pending=(), look=6, mind=5):
        n = len(self.mf)
        waits = {}
        def issued_upto(g):
            out = list(pending)
            for x in range(g):
                out += [(tag, x) for t, tag in self.order(x) if t.startswith('ds_')]
            return out
        done = 0
        fixed = {}
        for x in range(n):
            for t, _ in self.gaps[x]:
                if 'lgkmcnt(0)' in t:
                    fixed[x] = True
        for m in range(n):
            if (m - 1) in fixed:
                done = max(done, len(issued_upto(m - 1)))
            iss = issued_upto(m)
            last = -1
            for tag in self.mf[m][1]:
                idx = [k for k, (tg, _) in enumerate(iss) if tg == tag]
                if idx:
                    last = max(last, idx[-1])
            if last >= done:
                lg = iss[last][1]
                if m == 0:
                    pos = -1
                else:
                    cands = [p for p in range(m - 1, max(m - 5, lg, -1), -1) if p - lg >= mind and self.load(p) < self.cap]
                    pos = cands[0] if cands else m - 1
                    assert pos > lg, (self.mf[m], lg)
                cur = issued_upto(max(pos, 0))
                need = last + 1
                while need < len(cur) and cur[need][1] <= pos - look:
                    need += 1
                cnt = min(len(cur) - need, 15)
                done = len(cur) - cnt
                w = (f's_waitcnt lgkmcnt({cnt})', None)
                if pos < 0:
                    waits[-1] = w[0]
                else:
                    self.gaps[pos].insert(0, w)
        self.pre = waits.get(-1)
        allops = issued_upto(n)
        return [(tag, g - n) for tag, g in allops[done:]]
    def emit(self, g):
        if getattr(self, 'pre', None):
            g(self.pre)
        for m in range(len(self.mf)):
            g(self.mf[m][0])
            for t, _ in self.order(m):
                g(t)
    def loads(self):
        return ''.join(str(self.load(x)) for x in range(len(self.mf)))

sX, sWQ, sK, sV, sO = 8, 12, 16, 20, 24
sW, sW4K, sW1K = 38, 39, 56
sT0, sT1, sT2 = 40, 41, 42
sSlot, sOld, sOff, sCnt, sPass = 43, 44, 45, 46, 47
sCx, sCw, sCh = 48, 49, 50
sC = 54
sThr = 58
sB4 = 57
sRot, sKo, sKw, sQG, sNG = 48, 49, 50, 51, 52
sST, sRT = 60, 90
vL16, vXvo, vW0, vW1, vKV0, vKV1 = 1, 2, 3, 4, 5, 6
vKb, vVb = 7, 9
vXa, vXc, vWa = 11, 12, 13
vKa, vVa = 11, 13
vQ = 24
vACC = 104
vNEG = 104
vP = 124
vS = 204
vT = 216
aO, aL, aONE, aK, aV = 0, 160, 180, 184, 216
QBUF, XB, SLOT = 53248, 36864, 32768
EXCH = 16384

nstamp = [0]
def stamp(g, mode=1):
    if OPT['stamp'] & mode:
        if nstamp[0] == 0:
            g(f's_memrealtime {sr(sRT, 2)}')
        g(f's_memtime {sr(sST + 2*nstamp[0], 2)}')
        nstamp[0] += 1

def dma_kv(kind, j, soff):
    srd = sK if kind == 'K' else sV
    off = f' offset:{j*1024}' if j else ''
    return f'buffer_load_dwordx4 {vr(vKV1 if j & 1 else vKV0)}, {sr(srd,4)}, {sr(soff)} offen{off}{pol("pkv")} lds'

def pair_const(u):
    slot = (u % 5) * SLOT
    out = [f's_add_u32 m0, {sr(sW4K)}, {slot}', f's_mov_b32 {sr(sT0)}, {u*16384}']
    out += [dma_kv('K', j, sT0) for j in range(4)]
    if u > 0:
        out += [f's_add_u32 m0, {sr(sW4K)}, {slot+16384}', 's_nop 0']
        out += [dma_kv('V', j, sT0) for j in range(4)]
    return out

def qchunk_dma(j):
    out = []
    buf = (j % 3) * QBUF
    for p in range(4):
        out.append(f's_add_u32 m0, {sr(sW4K)}, {buf + XB + p*1024}')
        out.append(f's_add_u32 {sr(sT0)}, {sr(sCw)}, {p*32768}')
        out.append(f'buffer_load_dwordx4 {vr(vW1 if p & 2 else vW0)}, {sr(sWQ,4)}, {sr(sT0)} offen{pol("pwq")} lds')
    for p in range(9):
        out.append(f's_add_u32 m0, {sr(sW1K)}, {buf + p*4096}')
        out.append(f's_add_u32 {sr(sT0)}, {sr(sCx)}, {p*36864}')
        out.append(f'buffer_load_dwordx4 {vr(vXvo)}, {sr(sX,4)}, {sr(sT0)} offen{pol("px")} lds')
    if OPT['qrot'] == 3:
        if j < 8:
            out += [f's_add_u32 {sr(sCx)}, {sr(sCh + (j+1) % 3)}, {((j+1)//3)*384}', f's_lshl_b32 {sr(sCw)}, {sr(sCx)}, 12']
        return out
    out += [f's_add_u32 {sr(sCx)}, {sr(sCx)}, 128',
            f's_sub_u32 {sr(sT0)}, {sr(sCx)}, 1152',
            f's_min_u32 {sr(sCx)}, {sr(sCx)}, {sr(sT0)}',
            f's_lshl_b32 {sr(sCw)}, {sr(sCx)}, 12']
    return out

def kread(kt, i, dst=None):
    dst = aK + 16*(kt & 1) if dst is None else dst
    return f'ds_read_b128 {ar(dst+4*i,4)}, {vr(vKa+(kt>>1))} offset:{i*256+(kt&1)*4096}'
def vread(dt, a, jj):
    return f'ds_read_b64_tr_b16 {ar(aV+8*(dt&3)+4*a+2*jj,2)}, {vr(vVa+2*a+(dt&1))} offset:{16384+jj*4096+(dt>>1)*256}'
def Preg(buf, X, a):
    return vP + 40*buf + 8*X + 4*a

CHAINS = [(kt, X) for kt in range(4) for X in range(5 if kt < 2 else 4)]
PVS = [(dt, X, a) for dt in range(8) for X in range(5) for a in range(2 if X < 4 else 1)]
SUMS = [(X, a) for X in range(5) for a in range(2 if X < 4 else 1)]

def qk_mf(c, i, cinit=None, dst=None):
    kt, X = CHAINS[c]
    d = vr(vS + 4*(c % 3) if dst is None else dst, 4)
    ci = vr(vNEG + 4*X, 4) if cinit is None else cinit
    return f'{MF} {d}, {ar(aK+16*(kt&1)+4*i,4)}, {vr(vQ+16*X+4*i,4)}, {d if i else ci}', [('K', kt & 1, i)]
def pv_mf(j, buf):
    dt, X, a = PVS[j]
    o = ar(aO + 32*X + 4*dt, 4)
    return f'{MF} {o}, {ar(aV+8*(dt&3)+4*a,4)}, {vr(Preg(buf,X,a),4)}, {o}', [('V', dt & 3, a)]
def sum_mf(j, buf):
    X, a = SUMS[j]
    o = ar(aL + 4*X, 4)
    return f'{MF} {o}, {ar(aONE,4)}, {vr(Preg(buf,X,a),4)}, {o}', []
def softmax_ops(c, buf, src=None):
    kt, X = CHAINS[c]
    S = vS + 4*(c % 3) if src is None else src
    P = Preg(buf, X, kt >> 1) + 2*(kt & 1)
    ex = [f'v_exp_f32 {vr(S+r)}, {vr(S+r)}' for r in range(4)]
    cv = [f'v_cvt_pk_bf16_f32 {vr(P+k)}, {vr(S+2*k)}, {vr(S+2*k+1)}' for k in range(2)]
    return ex, cv

PD = OPT['pd']
VMW = 8*(PD - 2)
sDst = sOld
def slot_update():
    return [f's_add_u32 {sr(sSlot)}, {sr(sSlot)}, {SLOT}',
            f's_sub_u32 {sr(sT0)}, {sr(sSlot)}, {5*SLOT}',
            f's_min_u32 {sr(sSlot)}, {sr(sSlot)}, {sr(sT0)}']
def dst_update():
    if PD == 5:
        return [f's_add_u32 {sr(sT1)}, {sr(sSlot)}, {sr(sW4K)}']
    return [f's_add_u32 {sr(sT1)}, {sr(sSlot)}, {PD*SLOT}',
            f's_sub_u32 {sr(sT0)}, {sr(sT1)}, {5*SLOT}',
            f's_min_u32 {sr(sT1)}, {sr(sT1)}, {sr(sT0)}',
            f's_add_u32 {sr(sT1)}, {sr(sT1)}, {sr(sW4K)}']
def addr_update():
    return [f'v_add_u32 {vr(vKa)}, {sr(sSlot)}, {vr(vKb)}',
            f'v_add_u32 {vr(vVa)}, {sr(sSlot)}, {vr(vVb)}',
            f'v_add_u32 {vr(vVa+2)}, {sr(sSlot)}, {vr(vVb+1)}',
            f'v_xor_b32 {vr(vVa+1)}, 32, {vr(vVa)}',
            f'v_xor_b32 {vr(vVa+3)}, 32, {vr(vVa+2)}',
            f'v_add_u32 {vr(vKa+1)}, {sr(sSlot)}, {vr(vKb+1)}']

def build_stage(buf):
    s = Sched()
    for c in range(18):
        for i in range(4):
            s.add(*qk_mf(c, i))
        for j in range(4):
            s.add(*pv_mf(4*c + j, buf))
    for j in range(9):
        s.add(*sum_mf(j, buf))
    for c in range(18):
        ex, cv = softmax_ops(c, buf ^ 1)
        for r in range(4):
            s.put(8*c + 9 + 2*r, ex[r])
        s.put(8*c + 12, cv[0])
        s.put(8*c + 16, cv[1])
    BAR = 108
    for kt, lo in ((1, 0), (2, 37), (3, 77)):
        s.seq([(kread(kt, i), ('K', kt & 1, i)) for i in range(4)], lo, lo + 20, 1)
    first = lambda dt: 8*((9*dt) >> 2) + 4 + ((9*dt) & 3)
    lastu = lambda dt: 8*((9*dt+8) >> 2) + 4 + ((9*dt+8) & 3)
    for dt in range(2, 8):
        lo = max(first(dt) - 44, lastu(dt - 4) + 1 if dt >= 4 else 0, 0)
        s.seq([(vread(dt, a, jj), ('V', dt & 3, a)) for a in range(2) for jj in range(2)], lo, min(lo + 18, BAR - 8), 1)
    s.seq(dst_update() + slot_update(), 60, 100)
    s.gaps[BAR] = [x for x in s.gaps[BAR]]
    moved = s.gaps[BAR]; s.gaps[BAR] = []
    s.put(BAR, f's_waitcnt vmcnt({VMW})' + (' lgkmcnt(0)' if PD == 5 else ''))
    s.put(BAR, 's_barrier')
    for t, tag in moved:
        s.put(BAR, t, tag)
    au = addr_update()
    s.seq(au, BAR - 7, BAR + 6)
    g0 = BAR + 2
    ga = max(x for x in range(len(s.gaps)) if any(t in au[:5] for t, _ in s.gaps[x])) + 1
    s.seq([(kread(0, i), ('K', 0, i)) for i in range(4)], max(g0, ga), 140, 1)
    s.seq([(vread(0, a, jj), ('V', 0, a)) for a in range(2) for jj in range(2)], max(g0, ga, lastu(4) + 1), 146, 1)
    s.seq([(vread(1, a, jj), ('V', 1, a)) for a in range(2) for jj in range(2)], max(g0, ga, lastu(5) + 1), 152, 1)
    return s, BAR

def add_dma(s, BAR, nxt):
    if OPT['nodma']:
        return
    g = s.place(f's_mov_b32 m0, {sr(sT1)}', BAR + 1, BAR + 8) + 1
    for j in range(4):
        g = s.place(dma_kv('K', j, sOff), g, g + 8) + 6
    assert g < 160
    g = nxt.place(f's_add_u32 m0, {sr(sT1)}, 16384', 0, 6) + 1
    for j in range(4):
        g = nxt.place(dma_kv('V', j, sOff), g, g + 8) + 8
    g = nxt.place(f's_add_u32 {sr(sOff)}, {sr(sOff)}, 16384', g - 6, g + 8)
    assert g < 58

def code_prefetch(g, start, end, srd, vtmp, vdst):
    g(f's_getpc_b64 {sr(srd,2)}')
    g.label(f'Lpc_{start[:4]}')
    g(f's_mov_b32 {sr(srd+2)}, {end}-Lpc_{start[:4]}')
    g(f's_mov_b32 {sr(srd+3)}, 0x20000')
    g(f'v_lshlrev_b32 {vr(vtmp)}, 7, v0')
    g('s_bfe_u32 s7, s2, 0x10003')
    g('s_lshl_b32 s7, s7, 15')
    g(f'buffer_load_dword {vr(vdst)}, {vr(vtmp)}, {sr(srd,4)}, s7 offen')

def kernel1(g):
    g.raw(f'.globl {KN}\n.p2align 8\n.type {KN},@function')
    g.label(KN)
    g('s_cmp_ge_u32 s2, 256')
    g('s_cbranch_scc1 L1_done')
    stamp(g, 3)
    g('s_load_dwordx4 s[28:31], s[0:1], 0')
    g('s_load_dwordx4 s[32:35], s[0:1], 16')
    g('s_load_dwordx2 s[36:37], s[0:1], 56')
    g('s_load_dwordx4 s[96:99], s[0:1], 32')
    g('s_load_dwordx2 s[94:95], s[0:1], 48')
    t = lambda i: vr(vQ + i)
    g(f'v_lshrrev_b32 {t(0)}, 6, v0')
    g(f'v_and_b32 {t(1)}, 63, v0')
    g(f'v_readfirstlane_b32 {sr(sW)}, {t(0)}')
    if OPT['ipf']:
        code_prefetch(g, 'attn_kernel', 'L1_end', 24, 23, 22)
    if OPT['map'] == 0:
        g('s_and_b32 s3, s2, 7')
        g('s_lshr_b32 s4, s2, 3')
        g('s_mul_i32 s5, s4, 57'); g('s_lshr_b32 s5, s5, 9'); g('s_mul_i32 s5, s5, 9'); g('s_sub_u32 s5, s4, s5')
    else:
        g('s_and_b32 s3, s2, 1'); g('s_lshl_b32 s3, s3, 2'); g('s_bfe_u32 s5, s2, 0x20003'); g('s_add_u32 s3, s3, s5')
        g('s_bfe_u32 s4, s2, 0x20001'); g('s_lshl_b32 s4, s4, 3'); g('s_lshr_b32 s6, s2, 5'); g('s_add_u32 s4, s4, s6')
        g('s_lshl_b32 s5, s5, 1'); g('s_add_u32 s5, s5, s6'); g('s_sub_u32 s6, s5, 9'); g('s_min_u32 s5, s5, s6')
    if OPT['qrot'] == 3:
        g('s_mul_i32 s6, s5, 11'); g('s_lshr_b32 s6, s6, 5'); g('s_mul_i32 s6, s6, 3'); g('s_sub_u32 s5, s5, s6')
        g(f's_lshl_b32 {sr(sCh)}, s5, 7')
        for k in (1, 2):
            g(f's_add_u32 {sr(sCh+k)}, {sr(sCh+k-1)}, 128'); g(f's_sub_u32 s6, {sr(sCh+k)}, 384'); g(f's_min_u32 {sr(sCh+k)}, {sr(sCh+k)}, s6')
    if OPT['qrot']:
        g(f's_lshl_b32 {sr(sCx)}, s5, 7')
        g(f's_lshl_b32 {sr(sCw)}, s5, 19')
    else:
        g(f's_mov_b32 {sr(sCx)}, 0'); g(f's_mov_b32 {sr(sCw)}, 0')
    g(f's_lshl_b32 {sr(sW1K)}, {sr(sW)}, 10')
    g(f's_lshl_b32 {sr(sW4K)}, {sr(sW)}, 12')
    g(f'v_and_b32 {t(2)}, 3, {t(1)}')
    g(f'v_bfe_u32 {t(3)}, {t(1)}, 2, 2')
    g(f'v_lshrrev_b32 {t(4)}, 4, {t(1)}')
    g(f'v_lshlrev_b32 {t(8)}, 6, {t(4)}')
    g(f'v_lshl_add_u32 {t(8)}, {t(2)}, 4, {t(8)}')
    g(f'v_lshl_add_u32 {t(9)}, {t(3)}, 13, {t(8)}')
    g(f'v_lshl_add_u32 {vr(vW0)}, {t(0)}, 17, {t(9)}')
    g(f'v_xor_b32 {vr(vW1)}, 48, {vr(vW0)}')
    g(f'v_bfe_u32 {t(7)}, {t(1)}, 2, 3')
    g(f'v_lshl_add_u32 {t(9)}, {t(0)}, 3, {t(7)}')
    g(f'v_mul_u32_u24 {t(9)}, 1152, {t(9)}')
    g(f'v_and_b32 {t(6)}, 1, {t(0)}')
    g(f'v_lshlrev_b32 {t(10)}, 1, {t(6)}')
    g(f'v_xor_b32 {t(10)}, {t(10)}, {t(2)}')
    g(f'v_lshl_add_u32 {t(9)}, {t(10)}, 4, {t(9)}')
    g(f'v_lshrrev_b32 {t(5)}, 5, {t(1)}')
    g(f'v_lshl_add_u32 {vr(vXvo)}, {t(5)}, 6, {t(9)}')
    g('s_mul_i32 s6, s3, 331776')
    g('s_lshl_b32 s7, s4, 8')
    g(f's_mov_b32 {sr(sX+2)}, 331776')
    g(f's_mov_b32 {sr(sX+3)}, 0x20000')
    g(f's_sub_u32 {sr(sWQ+2)}, {576*8192}, s7')
    g(f's_mov_b32 {sr(sWQ+3)}, 0x20000')
    g('s_waitcnt lgkmcnt(0)')
    stamp(g, 3)
    g(f's_add_u32 {sr(sX)}, s28, s6')
    g(f's_addc_u32 {sr(sX+1)}, s29, 0')
    g(f's_add_u32 {sr(sWQ)}, s34, s7')
    g(f's_addc_u32 {sr(sWQ+1)}, s35, 0')
    g.many(qchunk_dma(0))
    stamp(g, 2)
    weave_from = len(g.L)
    g('s_lshl_b32 s5, s3, 5')
    g('s_add_u32 s5, s5, s4')
    g('s_lshl_b32 s6, s5, 19')
    g(f's_add_u32 {sr(sK)}, s30, s6')
    g(f's_addc_u32 {sr(sK+1)}, s31, 0')
    g(f's_mov_b32 {sr(sK+2)}, 524288')
    g(f's_mov_b32 {sr(sK+3)}, 0x20000')
    g(f's_add_u32 {sr(sV)}, s32, s6')
    g(f's_addc_u32 {sr(sV+1)}, s33, 0')
    g(f's_sub_u32 {sr(sV)}, {sr(sV)}, 16384')
    g(f's_subb_u32 {sr(sV+1)}, {sr(sV+1)}, 0')
    g(f's_mov_b32 {sr(sV+2)}, {524288+16384}')
    g(f's_mov_b32 {sr(sV+3)}, 0x20000')
    g(f's_mul_i32 s5, s3, {18*131072}')
    g('s_lshl_b32 s6, s4, 12')
    g('s_add_u32 s5, s5, s6')
    g(f's_add_u32 {sr(sO)}, s36, s5')
    g(f's_addc_u32 {sr(sO+1)}, s37, 0')
    g(f's_mov_b32 {sr(sO+2)}, {17*131072+4096}')
    g(f's_mov_b32 {sr(sO+3)}, 0x20000')
    g(f'v_lshlrev_b32 {vr(vL16)}, 4, {t(1)}')
    g(f'v_lshl_add_u32 {t(9)}, {t(3)}, 8, {t(8)}')
    g(f'v_lshl_add_u32 {vr(vKV0)}, {t(0)}, 12, {t(9)}')
    g(f'v_xor_b32 {vr(vKV1)}, 48, {vr(vKV0)}')
    g(f'v_and_b32 {t(11)}, 1, {t(4)}')
    g(f'v_lshl_or_b32 {t(12)}, {t(11)}, 1, {t(5)}')
    g(f'v_and_b32 {t(13)}, 1, {t(3)}')
    g(f'v_mul_u32_u24 {t(13)}, 3, {t(13)}')
    g(f'v_xor_b32 {t(12)}, {t(12)}, {t(13)}')
    g(f'v_lshlrev_b32 {t(12)}, 4, {t(12)}')
    g(f'v_lshl_add_u32 {t(12)}, {t(2)}, 6, {t(12)}')
    g(f'v_lshl_add_u32 {t(12)}, {t(3)}, 10, {t(12)}')
    g(f'v_lshl_add_u32 {vr(vKb)}, {t(6)}, 13, {t(12)}')
    g(f'v_xor_b32 {vr(vKb+1)}, 8192, {vr(vKb)}')
    g(f'v_mul_u32_u24 {t(13)}, 3, {t(11)}')
    g(f'v_lshrrev_b32 {t(14)}, 1, {t(2)}')
    g(f'v_xor_b32 {t(13)}, {t(13)}, {t(14)}')
    g(f'v_lshlrev_b32 {t(13)}, 4, {t(13)}')
    g(f'v_and_b32 {t(14)}, 1, {t(2)}')
    g(f'v_lshl_add_u32 {t(13)}, {t(14)}, 3, {t(13)}')
    g(f'v_lshl_add_u32 {t(13)}, {t(3)}, 6, {t(13)}')
    g(f'v_lshl_add_u32 {t(14)}, {t(4)}, 10, {t(13)}')
    g(f'v_lshl_add_u32 {vr(vVb)}, {t(6)}, 13, {t(14)}')
    g(f'v_xor_b32 {vr(vVb+1)}, 8192, {vr(vVb)}')
    g(f'v_lshl_add_u32 {t(14)}, {t(4)}, 11, {t(13)}')
    g(f'v_lshl_add_u32 {t(14)}, {t(6)}, 9, {t(14)}')
    g(f'v_add_u32 {vr(vWa)}, {XB}, {t(14)}')
    g(f'v_xor_b32 {vr(vWa+1)}, 32, {vr(vWa)}')
    g(f'v_xor_b32 {vr(vWa+2)}, 512, {vr(vWa)}')
    g(f'v_xor_b32 {vr(vWa+3)}, 512, {vr(vWa+1)}')
    g(f'v_bfe_u32 {t(14)}, {t(1)}, 3, 1')
    g(f'v_lshlrev_b32 {t(15)}, 1, {t(14)}')
    g(f'v_xor_b32 {t(15)}, {t(15)}, {t(4)}')
    g(f'v_lshlrev_b32 {t(15)}, 4, {t(15)}')
    g(f'v_lshl_add_u32 {t(15)}, {t(14)}, 10, {t(15)}')
    g(f'v_and_b32 {t(14)}, 7, {t(1)}')
    g(f'v_lshl_add_u32 {t(15)}, {t(14)}, 6, {t(15)}')
    g(f'v_lshl_add_u32 {vr(vXa)}, {t(0)}, 13, {t(15)}')
    g(f'v_lshrrev_b32 {t(14)}, 1, {t(0)}')
    g(f'v_lshl_add_u32 {t(15)}, {t(14)}, 11, {t(15)}')
    g(f'v_add_u32 {vr(vXc)}, 32768, {t(15)}')
    cs = f2u(math.log2(math.e) / math.sqrt(128.0))
    g(f's_mov_b32 {sr(sC)}, {cs:#x}')
    g(f's_mov_b32 {sr(sC+1)}, {cs:#x}')
    g(f's_mov_b32 {sr(sPass)}, 0')
    g(f's_lshl_b32 {sr(sB4)}, s3, 2')
    g(f's_mov_b32 {sr(sThr)}, {f2u(-1.0 if OPT["force_fallback"] else 2.0**24):#x}')
    g(f'v_cmp_eq_u32 vcc, 0, {t(2)}')
    g(f'v_mov_b32 {t(14)}, 0x3f803f80')
    g('s_nop 0')
    g(f'v_cndmask_b32 {t(14)}, 0, {t(14)}, vcc')
    for r in range(4):
        g(f'v_accvgpr_write_b32 {ar(aONE+r)}, {t(14)}')
    for r in range(180):
        g(f'v_accvgpr_write_b32 {ar(aO+r)}, 0')
    g.c('---- Q projection: Q^T = wq_h^T x_b^T, 9 chunks of 64, 3-deep LDS ring')
    def xread(j, X, i):
        a = vXa if X < 4 else vXc
        off = i*512 + (X*2048 if X < 4 else 0)
        return (f'ds_read_b128 {vr(vQ+40*(j&1)+8*X+4*i,4)}, {vr(a)} offset:{off}', ('X', j & 1, X, i))
    def wread(tau, i, jj):
        return (f'ds_read_b64_tr_b16 {ar(aV+8*(tau&3)+4*i+2*jj,2)}, {vr(vWa+2*(tau>>2)+(tau&1))} offset:{i*8192+jj*1024+((tau>>1)&1)*256}', ('W', tau & 3, i))
    wr = lambda tau: [wread(tau, i, jj) for i in range(2) for jj in range(2)]
    xr = lambda j, X: [xread(j, X, i) for i in range(2)]
    s = Sched(cap=3)
    gs = {}
    def acc(X, tau):
        return vACC + 32*X + 4*tau
    for j in range(9):
        for tau in range(8):
            gs[(j, tau)] = len(s.mf)
            for X in range(5 if tau < 4 else 4):
                for i in range(2):
                    d = vr(acc(X, tau), 4)
                    s.add(f'{MF} {d}, {ar(aV+8*(tau&3)+4*i,4)}, {vr(vQ+40*(j&1)+8*X+4*i,4)}, {d if (j or i) else 0}',
                          [('W', tau & 3, i), ('X', j & 1, X, i)])
    pre = xr(0, 0) + wr(0) + xr(0, 1) + xr(0, 2) + xr(0, 3) + xr(0, 4) + wr(1) + wr(2)
    for j in range(9):
        b0 = gs[(j, 0)]
        for tau in range(3, 8):
            lo = gs[(j, tau - 3)] + 1
            s.seq(wr(tau), lo, lo + 7)
        bar = b0 + 52
        vm = 13 if j + 1 <= 7 else (4 if j + 1 == 8 else None)
        s.put(bar, 's_waitcnt ' + (f'vmcnt({vm}) ' if vm is not None else '') + 'lgkmcnt(0)')
        s.put(bar, 's_barrier')
        if j < 8:
            dlt = QBUF if ((j + 1) % 3) else (-2*QBUF) & 0xffffffff
            s.seq([f'v_add_u32 {vr(rg)}, {dlt:#x}, {vr(rg)}' for rg in (vXa, vWa, vWa+1, vXc, vWa+2, vWa+3)], bar - 4, bar - 1)
            gq = s.seq(xr(j+1, 0) + wr(0) + xr(j+1, 1) + xr(j+1, 2) + xr(j+1, 3) + xr(j+1, 4), bar + 1, bar + 12)
            gq = s.seq(wr(1), max(gq, gs[(j, 6)] + 1), b0 + 71)
            s.seq(wr(2), max(gq, gs[(j, 7)] + 1), b0 + 71)
        if j + 3 <= 8:
            dma = qchunk_dma(j + 3)
        elif j == 6:
            dma = pair_const(0)
        elif j == 7:
            dma = pair_const(1)
        else:
            dma = sum((pair_const(u) for u in range(2, PD)), [])
        if j < 8:
            gq = bar + 1
            for x in dma:
                gq = s.place(x, gq, bar + 66)
                if x.startswith('buffer'):
                    gq += OPT['qsp'] if j < 6 else 7
            assert gq < bar + 70, gq - bar
        else:
            lastdma = dma
    body = g.L[weave_from:]
    first_acc = next(k for k, x in enumerate(body) if 'v_accvgpr_write_b32 a0,' in x)
    head, accw = body[:first_acc], body[first_acc:]
    del g.L[weave_from:]
    g.L += head
    d1 = qchunk_dma(1)
    for k, x in enumerate(accw):
        g.L.append(x)
        if k % 4 == 3 and d1:
            g(d1.pop(0))
    g.many(d1)
    gq = 0
    for x in qchunk_dma(2):
        gq = s.place(x, gq, 50)
        if x.startswith('buffer'):
            gq += 3
    stamp(g, 2)
    g('s_waitcnt vmcnt(13)')
    g('s_barrier')
    stamp(g, 3)
    if OPT['stamp'] & 2:
        for j in (1, 2, 3, 4, 6, 7, 8):
            s.put(gs[(j, 0)], f's_memtime {sr(sST + 2*nstamp[0], 2)}')
            nstamp[0] += 1
    g.many([x for x, _ in pre])
    gq = gs[(8, 0)] + 53
    while lastdma and gq < len(s.mf):
        x = lastdma.pop(0)
        s.put(gq, x)
        if x.startswith('buffer'):
            gq += 1
    s.resolve(pending=[(tag, -8) for _, tag in pre], look=5, mind=4)
    s.emit(g)
    stamp(g, 4)
    g.many(lastdma)
    stamp(g, 7)
    g.c('---- scale by log2(e)/sqrt(128), round to bf16, exchange the shared tile')
    def conv(srcA, dst):
        for k in range(4):
            g(f'v_pk_mul_f32 {vr(srcA+2*k,2)}, {vr(srcA+2*k,2)}, {sr(sC,2)}')
        for k in range(4):
            g(f'v_cvt_pk_bf16_f32 {vr(dst+k)}, {vr(srcA+2*k)}, {vr(srcA+2*k+1)}')
    def swaps(dst):
        g(f'v_permlane16_swap_b32 {vr(dst)}, {vr(dst+2)}')
        g(f'v_permlane16_swap_b32 {vr(dst+1)}, {vr(dst+3)}')
    conv(acc(4, 0), vQ + 64)
    conv(acc(4, 2), vQ + 68)
    g(f's_lshl_b32 {sr(sT0)}, {sr(sW)}, 11')
    g(f's_add_u32 {sr(sT0)}, {sr(sT0)}, {EXCH}')
    g(f'v_add_u32 {vr(vXa)}, {sr(sT0)}, {vr(vL16)}')
    swaps(vQ + 64); swaps(vQ + 68)
    g(f's_and_b32 {sr(sT0)}, {sr(sT0)}, {~4095 & 0xffffffff:#x}')
    g(f'v_add_u32 {vr(17)}, {sr(sT0)}, {vr(vL16)}')
    g(f'ds_write_b128 {vr(vXa)}, {vr(vQ+64,4)}')
    g(f'ds_write_b128 {vr(vXa)}, {vr(vQ+68,4)} offset:1024')
    stamp(g, 4)
    g(f's_bitcmp1_b32 {sr(sW)}, 0')
    g('s_cbranch_scc1 L1_conv_odd')
    for p in range(2):
        prev = None
        for X in range(4):
            for il in range(4):
                dst = vQ + 16*X + 4*(il ^ (2*p))
                conv(acc(X, 2*il), dst)
                if prev is not None:
                    swaps(prev)
                prev = dst
        g('s_nop 1')
        swaps(prev)
        if p == 0:
            g('s_branch L1_conv_done')
            g.label('L1_conv_odd')
    g.label('L1_conv_done')
    g(f's_mov_b32 {sr(sSlot)}, 0')
    g.many(addr_update())
    stamp(g, 4)
    g(f's_waitcnt vmcnt({8*(PD-1)}) lgkmcnt(0)')
    stamp(g, 4)
    g('s_barrier')
    stamp(g, 5)
    for i in range(4):
        g(kread(0, i))
    for i in range(4):
        g(f'ds_read_b128 {vr(vQ+64+4*i,4)}, {vr(17)} offset:{i*1024}')
    g.c('---- stand-in for the row max: exact max over the first 16 keys this wave sees (checked at the end)')
    vR = vT
    vM = vT + 20
    g('s_waitcnt lgkmcnt(4)')
    for c in range(5):
        if c == 4:
            g('s_waitcnt lgkmcnt(0)')
        for i in range(4):
            g(qk_mf(c, i, '0', vR + 4*c)[0])
    g('s_nop 3')
    for X in range(5):
        g(f'v_max3_f32 {vr(vM+X)}, {vr(vR+4*X)}, {vr(vR+4*X+1)}, {vr(vR+4*X+2)}')
    for X in range(5):
        g(f'v_max_f32 {vr(vM+X)}, {vr(vM+X)}, {vr(vR+4*X+3)}')
    def setneg():
        for sw in ('v_permlane32_swap_b32', 'v_permlane16_swap_b32'):
            for X in range(5):
                g(f'v_mov_b32 {vr(vM+5+X)}, {vr(vM+X)}')
            g('s_nop 0')
            for X in range(5):
                g(f'{sw} {vr(vM+5+X)}, {vr(vM+X)}')
            g('s_nop 0')
            for X in range(5):
                g(f'v_max_f32 {vr(vM+X)}, {vr(vM+X)}, {vr(vM+5+X)}')
        for X in range(5):
            for r in range(4):
                g(f'v_sub_f32 {vr(vNEG+4*X+r)}, 0, {vr(vM+X)}')
    setneg()
    stamp(g, 4)
    g('s_lshr_b32 s4, s2, 3')
    g(f's_mul_i32 {sr(sQG)}, s4, 57')
    g(f's_lshr_b32 {sr(sQG)}, {sr(sQG)}, 9')
    g(f's_mul_i32 s6, {sr(sQG)}, 9')
    g(f's_sub_u32 {sr(sNG)}, s4, s6')
    g(f's_mul_i32 {sr(sRot)}, {sr(sQG)}, 3')
    g(f's_add_u32 {sr(sRot)}, {sr(sRot)}, {sr(sNG)}')
    g(f's_mul_i32 {sr(sRot)}, {sr(sRot)}, {(OPT["k2_PH"]*256)//9 + 1}')
    g(f's_lshr_b32 {sr(sRot)}, {sr(sRot)}, 8')
    g(f's_lshl_b32 s5, {sr(sNG)}, 7')
    g(f's_add_u32 {sr(sX)}, s96, s5')
    g(f's_addc_u32 {sr(sX+1)}, s97, 0')
    g(f's_sub_u32 {sr(sX+2)}, {4096*1152}, s5')
    g(f's_cmp_ge_u32 {sr(sQG)}, 3')
    g(f's_cselect_b32 {sr(sX+2)}, 0, {sr(sX+2)}')
    g(f'v_bfe_u32 v18, {vr(vL16)}, 6, 3')
    g(f'v_add_u32 v18, {sr(sW1K)}, v18')
    g('v_mul_u32_u24 v18, 1152, v18')
    g(f'v_lshrrev_b32 v19, 9, {vr(vL16)}')
    g('v_lshl_add_u32 v18, v19, 6, v18')
    g(f'v_bfe_u32 v19, {vr(vL16)}, 8, 1')
    g('v_lshlrev_b32 v19, 5, v19')
    g(f'v_and_b32 v20, 48, {vr(vL16)}')
    g('v_xor_b32 v19, v19, v20')
    g('v_add_u32 v17, v19, v18')
    g.label('L1_main')
    g.c('entry: pair 0 visible, raw scores of key tile 0 in vR, pairs 1..4 issued, O = l = 0, -m set')
    for i in range(4):
        g(kread(1, i))
    for X in range(5):
        for r in range(4):
            g(f'v_add_f32 {vr(vR+4*X+r)}, {vr(vR+4*X+r)}, {vr(vNEG+4*X)}')
    g(f's_mov_b32 {sr(sOff)}, {PD*16384}')
    g(f's_mov_b32 {sr(sCnt)}, 0')
    squad = lambda c: vR + 4*c if c < 5 else (vP + 40 + 4*(c - 5) if c < 15 else vS + 4*(c - 15))
    s = Sched(cap=3)
    for c in range(5, 18):
        for i in range(4):
            s.add(*qk_mf(c, i, None, squad(c)))
    s.seq([(kread(2, i), ('K', 0, i)) for i in range(4)], 0, 6)
    s.seq([(kread(3, i), ('K', 1, i)) for i in range(4)], 21, 28)
    BARP = 38
    s.seq(dst_update() + slot_update(), 8, 24)
    s.put(BARP, f's_waitcnt vmcnt({VMW}) lgkmcnt(0)')
    s.put(BARP, 's_barrier')
    s.seq(addr_update(), BARP - 6, BARP - 1)
    s.seq([(kread(0, i), ('K', 0, i)) for i in range(4)] +
          [(vread(dt, a, jj), ('V', dt, a)) for dt in range(2) for a in range(2) for jj in range(2)], BARP + 1, 51)
    flat = []
    prev = None
    for c in range(18):
        ex, cv = softmax_ops(c, 0, squad(c))
        lo = 0 if c < 5 else 4*(c - 5) + 9
        flat += [(lo, ex[0])] + ([(lo, prev)] if prev else []) + [(lo, ex[1]), (lo, ex[2]), (lo, cv[0]), (lo, ex[3])]
        prev = cv[1]
    tailops = []
    gq = 0
    nm = len(s.mf)
    for lo, x in flat:
        gq = max(gq, lo)
        while gq < nm and s.load(gq) + s.cost(x) > 4:
            gq += 1
        if gq >= nm:
            tailops.append(x)
        else:
            s.put(gq, x)
    tailops += ['s_nop 0', prev]
    stA, BA = build_stage(0)
    stB, BB = build_stage(1)
    if not OPT['nodma']:
        gq = s.place(f's_mov_b32 m0, {sr(sT1)}', BARP + 1, 51, cap=5) + 1
        for j in range(4):
            gq = s.place(dma_kv('K', j, sOff), gq, 51, cap=5) + 1
    add_dma(stA, BA, stB)
    add_dma(stB, BB, stA)
    pend = s.resolve(pending=[(('K', 1, i), -12) for i in range(4)], look=5, mind=4)
    s.emit(g)
    g.many(tailops)
    g('s_waitcnt lgkmcnt(0)')
    import copy
    carry = []
    for it in range(2):
        a, b = copy.deepcopy(stA), copy.deepcopy(stB)
        c1 = a.resolve(pending=carry)
        carry2 = b.resolve(pending=c1)
        if it == 1:
            assert carry2 == carry, (carry, carry2)
        carry = carry2
    print('stageA', a.loads(), file=sys.stderr)
    print('stageB', b.loads(), file=sys.stderr)
    a.put(150, f's_add_u32 {sr(sCnt)}, {sr(sCnt)}, 1')
    a.put(152, f's_cmp_eq_u32 {sr(sCnt)}, 16')
    assert not any(x[0].startswith('s_') and 'cmp' not in x[0] and 'wait' not in x[0] for x in a.gaps[152])
    stamp(g, 5)
    g.raw('.p2align 6')
    g.label('L1_loop')
    a.emit(g)
    g('s_cbranch_scc1 L1_tail')
    b.emit(g)
    g('s_branch L1_loop')
    g.label('L1_tail')
    stamp(g, 5)
    s = Sched(cap=3)
    for j in range(9):
        s.add(*sum_mf(j, 1))
    for j in range(72):
        s.add(*pv_mf(j, 1))
    for dt in range(2, 8):
        lo = 0 if dt < 4 else 9 + 9*(dt - 4) + 9
        s.seq([(vread(dt, a_, jj), ('V', dt & 3, a_)) for a_ in range(2) for jj in range(2)], lo, lo + 8)
    PH = OPT['k2_PH']; DO = OPT['DO']
    sWO, sO2, sOUT, sDB = sX, sWQ, sK, sV
    RNG = [0, 1, 6, 7, 2, 3, 5, 4, 8, 9]
    vWo = 17
    def kstep(st):
        return [f's_add_u32 {sr(sT0)}, {sr(sRot)}, {st & (PH-1)}',
                f's_and_b32 {sr(sT0)}, {sr(sT0)}, {PH-1}',
                f's_add_u32 {sr(sT0)}, {sr(sT0)}, {st & ~(PH-1)}']
    def wo_loads(st):
        w = kstep(st) + [f's_add_u32 m0, {sr(sW4K)}, {RNG[st % 10]*16384}', f's_mul_i32 {sr(sKw)}, {sr(sT0)}, 36864']
        for p in range(4):
            if p:
                w.append(f's_add_u32 {sr(sKw)}, {sr(sKw)}, 8192')
            w.append(f'buffer_load_dwordx4 {vr(vWo)}, {sr(sWO,4)}, {sr(sKw)} offen' + (f' offset:{p*1024}' if p else '') + f'{pol("pwo")} lds')
        return w
    gq = 0
    for st in range(4):
        for x in wo_loads(st):
            gq = s.place(x, gq, 60)
            if x.startswith('buffer'):
                gq += 1
    vl = vT + 32
    seq = [(0, f'v_add_u32 {vr(19)}, {sr(sW4K)}, {vr(vL16)}'), (0, f'v_add_u32 {vr(19)}, {4*SLOT}, {vr(19)}'),
           (0, f'v_lshrrev_b32 {vr(20)}, 2, {vr(vL16)}'), (0, f'v_add_u32 {vr(20)}, {2*SLOT}, {vr(20)}'),
           (0, f'v_add_u32 {vr(21)}, {sr(sW4K)}, {vr(20)}')]
    seq += [(14, f'v_accvgpr_read_b32 {vr(vl+X)}, {ar(aL+4*X)}') for X in range(5)]
    seq += [(14, f'v_cmp_nle_f32_e64 {d}, {vr(vl+X)}, {sr(sThr)}') for X, d in enumerate(('vcc', 's[4:5]', 's[6:7]', 's[28:29]', 's[30:31]'))]
    seq += [(14, f'v_rcp_f32 {vr(vl+X)}, {vr(vl+X)}') for X in range(4)]
    seq += [('S', ['s_or_b64 s[4:5], s[4:5], vcc', 's_or_b64 s[4:5], s[4:5], s[6:7]', 's_or_b64 s[28:29], s[28:29], s[30:31]',
                   's_or_b64 s[4:5], s[4:5], s[28:29]', 's_cselect_b32 s28, 1, 0',
                   f's_lshl_b32 s4, {sr(sW)}, 19', f's_add_u32 s5, s4, {131072}', f's_add_u32 s6, s4, {2*131072}', f's_add_u32 s7, s4, {3*131072}'])]
    seq += [(0, f'v_mov_b32 {vr(18)}, s28')]
    seq += [('S', ['s_waitcnt vmcnt(16)', f'ds_write_b32 {vr(21)}, {vr(vl+4)}', f'ds_write_b32 {vr(21)}, {vr(vNEG+16)} offset:256',
                   f'ds_write_b32 {vr(21)}, {vr(18)} offset:512'])]
    nf = 0
    for i in range(4):
        for X in range(4):
            rdy = 9 + 9*(2*i + 1) + 2*X + 1 + 5
            b = vP + 8*(nf % 5); d = vT + 4*(nf % 8); nf += 1
            seq += [(rdy, f'v_accvgpr_read_b32 {vr(b+r)}, {ar(aO+32*X+8*i+r)}') for r in range(8)]
            seq += [(rdy, f'v_mul_f32 {vr(b+r)}, {vr(b+r)}, {vr(vl+X)}') for r in range(8)]
            seq += [(rdy, f'v_cvt_pk_bf16_f32 {vr(d+k)}, {vr(b+2*k)}, {vr(b+2*k+1)}') for k in range(4)]
            seq += [('S', [f'buffer_store_dwordx4 {vr(d,4)}, {vr(vL16)}, {sr(sO,4)}, {sr(4+X)} offen offset:{i*1024}{pol("pos")}'])]
        seq += [('S', [f'ds_write_b128 {vr(19)}, {ar(aO+128+4*dt,4)} offset:{(dt>>2)*16384+(dt&3)*1024}' for dt in (2*i, 2*i+1)])]
    rest = []
    gq = 0
    nm = len(s.mf)
    lastdma_gap = max(x for x in range(nm) if any(t_.endswith('lds') for t_, _ in s.gaps[x]))
    for lo, x in seq:
        if lo == 'S':
            gq += 1
            if any('s_or_b64' in y or 'vmcnt' in y for y in x):
                gq = max(gq, lastdma_gap + 1)
            if gq >= nm:
                rest += x
            else:
                for y in x:
                    s.put(gq, y)
            continue
        gq = max(gq, lo)
        while gq < nm and s.load(gq) + s.cost(x) > 4:
            gq += 1
        if gq >= nm:
            rest.append(x)
        else:
            s.put(gq, x)
    s.resolve(pending=c1)
    print('tail', s.loads(), len(rest), file=sys.stderr)
    g('s_nop 0')
    s.emit(g)
    stamp(g, 4)
    g.c('---- epilogue')
    dsw = [x for x in rest if x.startswith('ds_write')]
    rest = [x for x in rest if not x.startswith('ds_write')]
    g.many(rest[:10])
    g.many(dsw)
    g.many(rest[10:])
    stamp(g, 4)
    g('s_waitcnt lgkmcnt(0)')
    g('s_barrier')
    for u in range(4):
        g(f'ds_read_b32 {vr(vS+u)}, {vr(20)} offset:{u*4096+512}')
    g(f'v_xor_b32 {vr(22)}, 4096, {vr(21)}')
    g(f'ds_read_b32 {vr(vS+4)}, {vr(22)}')
    g(f'ds_read_b32 {vr(vS+5)}, {vr(22)} offset:256')
    g(f's_and_b32 {sr(sT0)}, {sr(sW)}, 1')
    g(f's_lshl_b32 {sr(sT0)}, {sr(sT0)}, 14')
    g(f'v_add_u32 {vr(19)}, {sr(sT0)}, {vr(19)}')
    g(f'v_xor_b32 {vr(23)}, 4096, {vr(19)}')
    vA = vP + 40
    for j in range(4):
        g(f'ds_read_b128 {vr(vA+4*j,4)}, {vr(19)} offset:{j*1024}')
        g(f'ds_read_b128 {vr(vA+16+4*j,4)}, {vr(23)} offset:{j*1024}')
    g('s_waitcnt lgkmcnt(8)')
    g(f'v_or_b32 {vr(vS)}, {vr(vS)}, {vr(vS+1)}')
    g(f'v_or3_b32 {vr(vS)}, {vr(vS)}, {vr(vS+2)}, {vr(vS+3)}')
    g(f'v_min_f32 {vr(vS+6)}, {vr(vS+5)}, {vr(vNEG+16)}')
    g(f'v_readfirstlane_b32 {sr(sT0)}, {vr(vS)}')
    g(f'v_sub_f32 {vr(vS+8)}, {vr(vS+6)}, {vr(vNEG+16)}')
    g(f'v_sub_f32 {vr(vS+10)}, {vr(vS+6)}, {vr(vS+5)}')
    g(f's_andn2_b32 {sr(sT0)}, {sr(sT0)}, {sr(sPass)}')
    g('s_cbranch_scc1 L1_fallback')
    g(f'v_exp_f32 {vr(vS+8)}, {vr(vS+8)}')
    g(f'v_exp_f32 {vr(vS+10)}, {vr(vS+10)}')
    g(f's_lshr_b32 s4, {sr(sW)}, 1')
    g(f'v_mul_f32 {vr(vS+6)}, {vr(vS+8)}, {vr(vl+4)}')
    g(f'v_fmac_f32 {vr(vS+6)}, {vr(vS+10)}, {vr(vS+4)}')
    g(f'v_rcp_f32 {vr(vS+6)}, {vr(vS+6)}')
    g('s_lshl_b32 s4, s4, 17')
    g(f'v_mul_f32 {vr(vS+8)}, {vr(vS+8)}, {vr(vS+6)}')
    g(f'v_mul_f32 {vr(vS+10)}, {vr(vS+10)}, {vr(vS+6)}')
    g(f's_and_b32 s5, {sr(sW)}, 1')
    g('s_lshl_b32 s5, s5, 11')
    g('s_add_u32 s4, s4, s5')
    g(f's_add_u32 s4, s4, {16*131072}')
    g('s_waitcnt lgkmcnt(0)')
    for k in range(8):
        g(f'v_pk_mul_f32 {vr(vA+2*k,2)}, {vr(vA+2*k,2)}, {vr(vS+8,2)} op_sel_hi:[1,0]')
    for k in range(8):
        g(f'v_pk_fma_f32 {vr(vA+2*k,2)}, {vr(vA+16+2*k,2)}, {vr(vS+10,2)}, {vr(vA+2*k,2)} op_sel_hi:[1,0,1]')
    for k in range(8):
        g(f'v_cvt_pk_bf16_f32 {vr(vA+32+k)}, {vr(vA+2*k)}, {vr(vA+2*k+1)}')
    g(f'buffer_store_dwordx4 {vr(vA+32,4)}, {vr(vL16)}, {sr(sO,4)}, s4 offen{pol("pos")}')
    g(f'buffer_store_dwordx4 {vr(vA+36,4)}, {vr(vL16)}, {sr(sO,4)}, s4 offen offset:1024{pol("pos")}')
    stamp(g, 5)
    g.c('---- hand-off: all O stores of this workgroup are write-through and drained, then one counter add per workgroup')
    g(f's_mov_b32 {sr(sDB)}, s94')
    g(f's_mov_b32 {sr(sDB+1)}, s95')
    g(f's_mov_b32 {sr(sDB+2)}, 32')
    g(f's_mov_b32 {sr(sDB+3)}, 0x20000')
    g('s_and_b32 s3, s2, 7')
    g('s_mul_i32 s7, s3, 3')
    g(f's_add_u32 s7, s7, {sr(sQG)}')
    g(f's_mul_i32 s4, s7, {6*131072}')
    g(f's_add_u32 {sr(sO2)}, s36, s4')
    g(f's_addc_u32 {sr(sO2+1)}, s37, 0')
    g(f's_mov_b32 {sr(sO2+2)}, {6*131072}')
    g(f's_mul_i32 s4, s7, {96*1152}')
    g(f's_lshl_b32 s5, {sr(sNG)}, 7')
    g('s_add_u32 s4, s4, s5')
    g(f's_add_u32 {sr(sOUT)}, s98, s4')
    g(f's_addc_u32 {sr(sOUT+1)}, s99, 0')
    g(f's_sub_u32 {sr(sOUT+2)}, {2304*1152}, s4')
    g('s_lshl_b32 s3, s3, 2')
    vOo, vRa = 2, 8
    vOF = 24
    vWF = vOF + 24*DO
    g(f's_lshl_b32 s4, {sr(sW)}, 15')
    g(f'v_add_u32 {vr(vOo)}, s4, {vr(vL16)}')
    for X in range(1, 6):
        g(f'v_add_u32 {vr(vOo+X)}, {X*131072}, {vr(vOo)}')
    g(f'v_bfe_u32 v14, {vr(vL16)}, 6, 3')
    g('v_lshlrev_b32 v14, 6, v14')
    g(f'v_lshrrev_b32 v15, 9, {vr(vL16)}')
    g('v_lshl_add_u32 v14, v15, 10, v14')
    g(f'v_bfe_u32 v16, {vr(vL16)}, 8, 1')
    g('v_lshl_add_u32 v14, v16, 5, v14')
    g(f'v_bfe_u32 v18, {vr(vL16)}, 4, 2')
    g('v_lshl_add_u32 v14, v18, 3, v14')
    g(f'v_add_u32 {vr(vRa)}, {sr(sW4K)}, v14')
    g(f'v_xor_b32 {vr(vRa+1)}, 32, {vr(vRa)}')
    for k in (1, 2):
        g(f'v_add_u32 {vr(vRa+2*k)}, {65536*k}, {vr(vRa)}')
        g(f'v_add_u32 {vr(vRa+2*k+1)}, {65536*k}, {vr(vRa+1)}')
    g('v_mov_b32 v19, 1')
    g('s_waitcnt vmcnt(0)')
    stamp(g, 5)
    g('s_barrier')
    g(f's_cmp_lg_u32 {sr(sW)}, 0')
    g('s_cbranch_scc1 L1_nosig')
    g('s_mov_b64 exec, 1')
    g(f'buffer_atomic_add v19, off, {sr(sDB,4)}, {sr(sB4)} sc1')
    g('s_mov_b64 exec, -1')
    g.label('L1_nosig')
    g(f's_cmp_ge_u32 {sr(sQG)}, 3')
    g('s_cbranch_scc1 ' + ('L1_fin' if OPT['stamp'] else 'L1_done'))
    vq = []
    for st in range(4, 10):
        g.many(wo_loads(st))
        vq += [('w', st)] * 4
    g(f's_cmp_lg_u32 {sr(sW)}, 0')
    g('s_cbranch_scc1 L1_go')
    g(f's_mov_b32 {sr(sCnt)}, 0')
    g.label('L1_poll')
    g(f'buffer_load_dword v19, off, {sr(sDB,4)}, s3 sc1')
    g(f's_add_u32 {sr(sCnt)}, {sr(sCnt)}, 1')
    g('s_waitcnt vmcnt(0)')
    g('v_readfirstlane_b32 s4, v19')
    g(f's_cmp_gt_u32 {sr(sCnt)}, 400000')
    g('s_cbranch_scc1 L1_go')
    g('s_cmp_ge_u32 s4, 32')
    g('s_cbranch_scc1 L1_go')
    g('s_sleep 1')
    g('s_branch L1_poll')
    g.label('L1_go')
    g('s_barrier')
    stamp(g, 5)
    g.c('---- output projection: 96 x 64 tile, K split over the 4 waves')
    def o_loads(st):
        sl = st % DO
        return kstep(st) + [f's_lshl_b32 {sr(sKo)}, {sr(sT0)}, 10'], \
               [f'buffer_load_dwordx4 {vr(vOF+24*sl+4*X,4)}, {vr(vOo+X)}, {sr(sO2,4)}, {sr(sKo)} offen{pol("pol")}' for X in range(6)]
    for st in range(DO):
        a_, o = o_loads(st)
        g.many(a_ + o)
        vq += [('o', st)] * 6
    def reads(st):
        r = RNG[st % 10]
        b = vWF + 16*(st & 1)
        return [f'ds_read_b64_tr_b16 {vr(b+4*nt+2*jj,2)}, {vr(vRa+2*(r>>2)+(nt&1))} offset:{(r&3)*16384+jj*2048+(nt>>1)*512}' for nt in range(4) for jj in range(2)]
    def vwait(tags):
        idx = [k for k, tg in enumerate(vq) if tg in tags]
        return len(vq) - 1 - idx[-1] if idx else 63
    g.many(reads(0))
    NS = 32
    for st in range(NS):
        sl = st % DO
        if st + 1 < NS:
            n1 = vwait([('w', st + 1)])
            n2 = vwait([('o', st)])
            if n1 < 63 and n1 > n2:
                g(f's_waitcnt vmcnt({min(n1, 63)})')
            elif n1 < 63:
                g(f's_waitcnt vmcnt({n1})')
            g.many(reads(st + 1))
            g(f's_waitcnt vmcnt({min(n2, 63)}) lgkmcnt(8)')
        else:
            g('s_waitcnt vmcnt(0) lgkmcnt(0)')
        w = wo_loads(st + 10) if st + 10 < NS else []
        a_, o = o_loads(st + DO) if st + DO < NS else ([], [])
        b = vWF + 16*(st & 1)
        for X in range(6):
            for nt in range(4):
                d = ar(4*(4*X + nt), 4)
                g(f'{MF} {d}, {vr(b+4*nt,4)}, {vr(vOF+24*sl+4*X,4)}, {d if st else 0}')
                m = 4*X + nt
                if m < 2:
                    g.many(a_[2*m:2*m+2])
                elif o and m >= 5 and nt == 1:
                    g(o.pop(0)); vq.append(('o', st + DO))
                elif w:
                    k = 0
                    while w and k < 2:
                        x = w.pop(0); g(x); k += 1
                        if x.startswith('buffer'):
                            vq.append(('w', st + 10)); break
        if o:
            g('s_nop 0')
            g(o.pop(0)); vq.append(('o', st + DO))
        assert not o and not w
    stamp(g, 5)
    g(f'v_add_u32 v9, {sr(sW4K)}, {vr(vL16)}')
    g('v_add_u32 v10, 65536, v9')
    g(f'v_bfe_u32 v11, {vr(vL16)}, 4, 4')
    g('v_mul_u32_u24 v11, 1152, v11')
    g('v_lshl_add_u32 v11, v15, 4, v11')
    g('v_lshl_add_u32 v11, v16, 5, v11')
    g('s_nop 1')
    for j in range(24):
        r = j >> 2
        g(f'ds_write_b128 {"v9" if r < 4 else "v10"}, {ar(4*j,4)} offset:{(r&3)*16384+(j&3)*1024}')
    for e in range(3):
        g(f's_mul_i32 s4, {sr(sW)}, 3')
        g(f's_add_u32 s4, s4, {e}')
        g('s_lshr_b32 s5, s4, 1')
        g('s_and_b32 s4, s4, 1')
        g('s_lshl_b32 s6, s5, 14')
        g('s_lshl_b32 s7, s4, 11')
        g('s_add_u32 s6, s6, s7')
        g(f'v_add_u32 {vr(12+e)}, s6, {vr(vL16)}')
        g('s_mul_i32 s5, s5, 18432')
        g('s_lshl_b32 s4, s4, 6')
        g(f's_add_u32 {sr(44+e)}, s4, s5')
    g('s_waitcnt lgkmcnt(0)')
    g('s_barrier')
    for u in range(4):
        for j in range(6):
            g(f'ds_read_b128 {vr(24+24*u+4*j,4)}, {vr(12+(j>>1))} offset:{u*4096+(j&1)*1024}')
    g('s_waitcnt lgkmcnt(12)')
    for k in range(12):
        g(f'v_pk_add_f32 {vr(24+2*k,2)}, {vr(24+2*k,2)}, {vr(48+2*k,2)}')
    g('s_waitcnt lgkmcnt(0)')
    for k in range(12):
        g(f'v_pk_add_f32 {vr(72+2*k,2)}, {vr(72+2*k,2)}, {vr(96+2*k,2)}')
    for k in range(12):
        g(f'v_pk_add_f32 {vr(24+2*k,2)}, {vr(24+2*k,2)}, {vr(72+2*k,2)}')
    for k in range(12):
        g(f'v_cvt_pk_bf16_f32 {vr(120+k)}, {vr(24+2*k)}, {vr(24+2*k+1)}')
    g('s_nop 1')
    for e in range(3):
        g(f'v_permlane16_swap_b32 {vr(120+4*e)}, {vr(122+4*e)}')
        g(f'v_permlane16_swap_b32 {vr(121+4*e)}, {vr(123+4*e)}')
    for e in range(3):
        g(f'buffer_store_dwordx4 {vr(120+4*e,4)}, v11, {sr(sOUT,4)}, {sr(44+e)} offen')
    if OPT['stamp']:
        g('s_waitcnt vmcnt(0)')
        stamp(g, 5)
        g.label('L1_fin')
        emit_stamps(g, 36, 0)
    g.label('L1_done')
    g('s_endpgm')
    g.c('---- fallback: the stand-in was unsafe.  Scan all keys for the true row max, then redo the main pass.')
    g.label('L1_fallback')
    g(f's_mov_b32 {sr(sPass)}, 1')
    g('s_waitcnt vmcnt(0) lgkmcnt(0)')
    for X in range(5):
        g(f'v_mov_b32 {vr(vM+X)}, 0xff800000')
    g(f's_mov_b32 {sr(sOff)}, 0')
    g(f's_mov_b32 {sr(sSlot)}, 0')
    g.many(addr_update())
    g.label('L1_scan')
    g('s_barrier')
    g(f's_mov_b32 m0, {sr(sW4K)}')
    g('s_nop 0')
    for j in range(4):
        g(dma_kv('K', j, sOff))
    g(f's_add_u32 {sr(sOff)}, {sr(sOff)}, 16384')
    g('s_waitcnt vmcnt(0)')
    g('s_barrier')
    for kt in range(4):
        for i in range(4):
            g(kread(kt, i, aK))
        g('s_waitcnt lgkmcnt(0)')
        for c in range(5):
            for i in range(4):
                g(qk_mf(c, i, '0', vR + 4*c)[0])
        g('s_nop 7')
        for X in range(5):
            g(f'v_max3_f32 {vr(vM+X)}, {vr(vM+X)}, {vr(vR+4*X)}, {vr(vR+4*X+1)}')
            g(f'v_max3_f32 {vr(vM+X)}, {vr(vM+X)}, {vr(vR+4*X+2)}, {vr(vR+4*X+3)}')
    g(f's_cmp_lt_u32 {sr(sOff)}, 524288')
    g('s_cbranch_scc1 L1_scan')
    g('s_barrier')
    for u in range(PD):
        g.many(pair_const(u))
    setneg()
    for r in range(180):
        g(f'v_accvgpr_write_b32 {ar(aO+r)}, 0')
    g(f's_waitcnt vmcnt({8*(PD-1)})')
    g('s_barrier')
    for i in range(4):
        g(kread(0, i))
    g('s_waitcnt lgkmcnt(0)')
    for c in range(5):
        for i in range(4):
            g(qk_mf(c, i, '0', vR + 4*c)[0])
    g('s_nop 7')
    g('s_branch L1_main')
    g.label('L1_end')

def emit_stamps(g, sws, kidx):
    n = nstamp[0]
    assert n <= 13
    g(f's_memrealtime {sr(sRT+2, 2)}')
    g('s_waitcnt lgkmcnt(0)')
    g(f's_add_u32 s8, {sr(sws)}, {STAMP_OFF + kidx*(1<<20)}')
    g(f's_addc_u32 s9, {sr(sws+1)}, 0')
    g('s_mov_b32 s10, 0x100000')
    g('s_mov_b32 s11, 0x20000')
    g('s_lshl_b32 s4, s2, 2')
    g(f's_add_u32 s4, s4, {sr(sW)}')
    g('s_lshl_b32 s4, s4, 7')
    g('s_mov_b64 exec, 1')
    g('v_mov_b32 v2, 0')
    for reg, off in [(sST+2*i, 8*i) for i in range(n)] + [(sRT, 104), (sRT+2, 112)]:
        g(f'v_mov_b32 v4, {sr(reg)}')
        g(f'v_mov_b32 v5, {sr(reg+1)}')
        g(f'buffer_store_dwordx2 v[4:5], v2, s[8:11], s4 offen offset:{off}')
        g('s_nop 1')
    if OPT['dbg']:
        g('s_mov_b32 s8, s94'); g('s_mov_b32 s9, s95'); g('s_mov_b32 s10, 64')
        g(f's_cmp_ge_u32 {sr(sQG)}, 3'); g('s_cselect_b32 s10, 0, s10')
        pairs = [(sRT, sRT+2, 1), (sST, sST+2*5, 1), (sST+2*5, sST+2*6, 1), (sST+2*5, sST+2*6, -1), (sST+2*6, sST+2*8, 1), (sST+2*8, sST+2*9, 1), (sST+2*9, sST+2*10, 1), (sST, sST+2*11, 1)]
        for k, (a, b, sg) in enumerate(pairs):
            g(f's_sub_u32 s5, {sr(b)}, {sr(a)}' if sg > 0 else f's_sub_u32 s5, {sr(a)}, {sr(b)}')
            g('v_mov_b32 v4, s5')
            g(f'buffer_atomic_umax v4, off, s[8:11], 0 offset:{32+4*k} sc1')
            g('s_nop 1')
        nstamp[0] = 0
        return
    g('s_getreg_b32 s5, hwreg(HW_REG_XCC_ID)')
    g('v_mov_b32 v4, s5')
    g('buffer_store_dword v4, v2, s[8:11], s4 offen offset:120')
    print('stamps', kidx, n, file=sys.stderr)
    nstamp[0] = 0

def kd(name, nv, acc):
    return f'''.p2align 6
.amdhsa_kernel {name}
  .amdhsa_next_free_vgpr {nv}
  .amdhsa_next_free_sgpr 102
  .amdhsa_accum_offset {acc}
  .amdhsa_group_segment_fixed_size 0
  .amdhsa_kernarg_size 64
  .amdhsa_user_sgpr_count 2
  .amdhsa_user_sgpr_kernarg_segment_ptr 1
  .amdhsa_system_sgpr_workgroup_id_x 1
  .amdhsa_float_denorm_mode_32 3
.end_amdhsa_kernel'''

def main():
    here = os.path.dirname(os.path.abspath(__file__))
    g = G()
    kernel1(g)
    out = open(here + '/header3.txt').read()
    out += '.amdgcn_target "amdgcn-amd-amdhsa--gfx950"\n.text\n'
    out += '\n'.join(g.L) + '\n'
    out += '.section .rodata,"a"\n' + kd(KN, 512, 256) + '\n'
    open(sys.argv[1], 'w').write(out)

main()
```

```python
import sys, math, struct, re, os

OPT = dict(stamp=0, force_fallback=0, k2_D=6, k2_PH=8, nodma=0, map=1, qrot=0, pd=3, qsp=4, ipf=1, DO=3, NP=20, PQ=14, chain=0, touch=0, qcap=2, BAR=110, wt=1, wtn=3, dbg=0, rt=0,
           px=0, pwq=0, pos=2, pol=2, pwo=0, pkv=1, wopf=0)
for a in sys.argv[2:]:
    k, v = a.split('=')
    assert k in OPT, k
    OPT[k] = int(v)
POL = ['', ' nt', ' sc1', ' sc0 sc1', ' sc1 nt', ' sc0 sc1 nt', ' sc0']
pol = lambda k: POL[OPT[k]]

def f2u(x):
    return struct.unpack('<I', struct.pack('<f', x))[0]

class G:
    def __init__(self):
        self.L = []
    def __call__(self, s):
        self.L.append('    ' + s)
    def many(self, xs):
        for x in xs:
            self(x)
    def label(self, s):
        self.L.append(s + ':')
    def c(self, s):
        self.L.append('    ; ' + s)
    def raw(self, s):
        self.L.append(s)

vr = lambda b, n=1: f'v{b}' if n == 1 else f'v[{b}:{b+n-1}]'
ar = lambda b, n=1: f'a{b}' if n == 1 else f'a[{b}:{b+n-1}]'
sr = lambda b, n=1: f's{b}' if n == 1 else f's[{b}:{b+n-1}]'
MF = 'v_mfma_f32_16x16x32_bf16'
STAMP_OFF = 32 << 20
KN = 'standalone__mha_block_cached__near_ridge_kernel'

class Sched:
    def __init__(self, cap=2):
        self.mf = []
        self.gaps = []
        self.cap = cap
    def add(self, text, needs=()):
        self.mf.append((text, tuple(needs)))
        self.gaps.append([])
        return len(self.mf) - 1
    @staticmethod
    def cost(t):
        return 2 if t.startswith('v_exp') else 1
    def load(self, g):
        return sum(self.cost(t) for t, _ in self.gaps[g])
    def put(self, g, text, tag=None):
        self.gaps[g].append((text, tag))
        return g
    def place(self, text, lo, hi, tag=None, cap=None):
        cap = cap or self.cap
        hi = min(hi, len(self.mf) - 1)
        assert lo <= hi, (text, lo, hi)
        for g in range(lo, hi + 1):
            if self.load(g) + self.cost(text) <= cap:
                return self.put(g, text, tag)
        best = min(range(lo, hi + 1), key=self.load)
        return self.put(best, text, tag)
    def seq(self, texts, lo, hi, step=0):
        g = lo
        for t in texts:
            tag = None
            if isinstance(t, tuple):
                t, tag = t
            g = self.place(t, g, hi, tag) + step
        return g
    def order(self, g):
        a = [x for x in self.gaps[g] if not x[0].startswith('v_')]
        b = [x for x in self.gaps[g] if x[0].startswith('v_')]
        return a + b
    def resolve(self, pending=(), look=6, mind=5):
        n = len(self.mf)
        waits = {}
        def issued_upto(g):
            out = list(pending)
            for x in range(g):
                out += [(tag, x) for t, tag in self.order(x) if t.startswith('ds_')]
            return out
        done = 0
        fixed = {}
        for x in range(n):
            for t, _ in self.gaps[x]:
                if 'lgkmcnt(0)' in t:
                    fixed[x] = True
        for m in range(n):
            if (m - 1) in fixed:
                done = max(done, len(issued_upto(m - 1)))
            iss = issued_upto(m)
            last = -1
            for tag in self.mf[m][1]:
                idx = [k for k, (tg, _) in enumerate(iss) if tg == tag]
                if idx:
                    last = max(last, idx[-1])
            if last >= done:
                lg = iss[last][1]
                if m == 0:
                    pos = -1
                else:
                    cands = [p for p in range(m - 1, max(m - 12, lg, -1), -1) if p - lg >= mind and self.load(p) < self.cap]
                    pos = cands[0] if cands else m - 1
                    assert pos > lg, (self.mf[m], lg)
                cur = issued_upto(max(pos, 0))
                need = last + 1
                while need < len(cur) and cur[need][1] <= pos - look:
                    need += 1
                cnt = min(len(cur) - need, 15)
                done = len(cur) - cnt
                w = (f's_waitcnt lgkmcnt({cnt})', None)
                if pos < 0:
                    waits[-1] = w[0]
                else:
                    self.gaps[pos].insert(0, w)
        self.pre = waits.get(-1)
        allops = issued_upto(n)
        return [(tag, g - n) for tag, g in allops[done:]]
    def emit(self, g):
        if getattr(self, 'pre', None):
            g(self.pre)
        for m in range(len(self.mf)):
            g(self.mf[m][0])
            for t, _ in self.order(m):
                g(t)
    def loads(self):
        return ''.join(str(self.load(x)) for x in range(len(self.mf)))

sX, sWQ, sK, sV, sO = 8, 12, 16, 20, 24
sW, sW4K, sW1K = 38, 39, 56
sT0, sT1, sT2 = 40, 41, 42
sSlot, sOld, sOff, sCnt, sPass = 43, 44, 45, 46, 47
sCx, sCw, sCh = 48, 49, 50
sC = 54
sThr = 58
sB4 = 57
sRot, sKo, sKw, sQG, sNG = 48, 49, 50, 51, 52
sST, sRT = 60, 90
vL16, vXvo, vW0, vW1, vKV0, vKV1 = 1, 2, 3, 4, 5, 6
vKb, vVb = 7, 9
vXa, vXc, vWa = 11, 12, 13
vKa, vVa = 11, 13
vQ = 24
vACC = 104
vNEG = 104
vP = 124
vS = 204
vT = 216
aO, aL, aONE, aK, aV = 0, 160, 180, 184, 216
QBUF, XB, SLOT = 53248, 36864, 32768
EXCH = 16384

nstamp = [0]
def stamp(g, mode=1):
    if OPT['stamp'] & mode:
        if nstamp[0] == 0:
            g(f's_memrealtime {sr(sRT, 2)}')
        g(f's_memtime {sr(sST + 2*nstamp[0], 2)}' if not OPT['rt'] else f's_memrealtime {sr(sST + 2*nstamp[0], 2)} ; s_memtime')
        nstamp[0] += 1

def dma_kv(kind, j, soff):
    srd = sK if kind == 'K' else sV
    off = f' offset:{j*1024}' if j else ''
    return f'buffer_load_dwordx4 {vr(vKV1 if j & 1 else vKV0)}, {sr(srd,4)}, {sr(soff)} offen{off}{pol("pkv")} lds'

def pair_const(u):
    slot = (u % 5) * SLOT
    out = [f's_add_u32 m0, {sr(sW4K)}, {slot}', f's_mov_b32 {sr(sT0)}, {u*16384}']
    out += [dma_kv('K', j, sT0) for j in range(4)]
    if u > 0:
        out += [f's_add_u32 m0, {sr(sW4K)}, {slot+16384}', 's_nop 0']
        out += [dma_kv('V', j, sT0) for j in range(4)]
    return out

sXC = [None, 48, 49, 50, 51, 52, 53, 86, 87]
sWC = [None, 88, 89, 59]
sW9K = 44
vXvo1 = 21
def qchunk_dma(j):
    out = []
    buf = (j % 3) * QBUF
    so = lambda r: '0' if r is None else sr(r)
    off = lambda p: f' offset:{(p&3)*1024}' if p & 3 else ''
    out.append(f's_add_u32 m0, {sr(sW4K)}, {buf + XB}')
    out.append('s_nop 0')
    for p in range(4):
        out.append(f'buffer_load_dwordx4 {vr(vW1 if p & 2 else vW0)}, {sr(sWQ,4)}, {so(sWC[p])} offen{off(p)}{pol("pwq")} lds')
    fill = [f's_add_u32 {sr(sWQ)}, {sr(sWQ)}, 524288', f's_addc_u32 {sr(sWQ+1)}, {sr(sWQ+1)}, 0']
    out += fill
    for p in range(9):
        if p & 3 == 0:
            out.append(f's_add_u32 m0, {sr(sW9K)}, {buf + p*1024}')
            out.append('s_nop 0')
        out.append(f'buffer_load_dwordx4 {vr(vXvo1 if p & 1 else vXvo)}, {sr(sX,4)}, {so(sXC[p])} offen{off(p)}{pol("px")} lds')
    out += [f's_add_u32 {sr(sX)}, {sr(sX)}, 128', f's_addc_u32 {sr(sX+1)}, {sr(sX+1)}, 0']
    return out

def kread(kt, i, dst=None):
    dst = aK + 16*(kt & 1) if dst is None else dst
    return f'ds_read_b128 {ar(dst+4*i,4)}, {vr(vKa+(kt>>1))} offset:{i*256+(kt&1)*4096}'
def vread(dt, a, jj):
    return f'ds_read_b64_tr_b16 {ar(aV+8*(dt&3)+4*a+2*jj,2)}, {vr(vVa+2*a+(dt&1))} offset:{16384+jj*4096+(dt>>1)*256}'
def Preg(buf, X, a):
    return vP + 40*buf + 8*X + 4*a

CHAINS = [(kt, X) for kt in range(4) for X in range(5 if kt < 2 else 4)]
PVS = [(dt, X, a) for dt in range(8) for X in range(5) for a in range(2 if X < 4 else 1)]
SUMS = [(X, a) for X in range(5) for a in range(2 if X < 4 else 1)]

def qk_mf(c, i, cinit=None, dst=None):
    kt, X = CHAINS[c]
    d = vr(vS + 4*(c % 3) if dst is None else dst, 4)
    ci = vr(vNEG + 4*X, 4) if cinit is None else cinit
    return f'{MF} {d}, {ar(aK+16*(kt&1)+4*i,4)}, {vr(vQ+16*X+4*i,4)}, {d if i else ci}', [('K', kt & 1, i)]
def pv_mf(j, buf):
    dt, X, a = PVS[j]
    o = ar(aO + 32*X + 4*dt, 4)
    return f'{MF} {o}, {ar(aV+8*(dt&3)+4*a,4)}, {vr(Preg(buf,X,a),4)}, {o}', [('V', dt & 3, a)]
def sum_mf(j, buf):
    X, a = SUMS[j]
    o = ar(aL + 4*X, 4)
    return f'{MF} {o}, {ar(aONE,4)}, {vr(Preg(buf,X,a),4)}, {o}', []
def softmax_ops(c, buf, src=None):
    kt, X = CHAINS[c]
    S = vS + 4*(c % 3) if src is None else src
    P = Preg(buf, X, kt >> 1) + 2*(kt & 1)
    ex = [f'v_exp_f32 {vr(S+r)}, {vr(S+r)}' for r in range(4)]
    cv = [f'v_cvt_pk_bf16_f32 {vr(P+k)}, {vr(S+2*k)}, {vr(S+2*k+1)}' for k in range(2)]
    return ex, cv

PD = OPT['pd']
WT = OPT['wt']
VMW = 8*(PD - 2) + (PD - 1)*WT
sTo = 100
vTo = 22
sWT = 28
def wo_touch():
    return [f'buffer_load_dword v23, {vr(vTo)}, {sr(sWT,4)}, {sr(sTo+1)} offen', f's_add_u32 {sr(sTo)}, {sr(sTo)}, 262144',
            f's_cmp_ge_i32 {sr(sTo)}, 0', f's_cselect_b32 {sr(sWT+2)}, {4096*1152}, 0', f's_cselect_b32 {sr(sTo+1)}, {sr(sTo)}, 0']
sDst = sOld
def slot_update():
    return [f's_add_u32 {sr(sSlot)}, {sr(sSlot)}, {SLOT}',
            f's_sub_u32 {sr(sT0)}, {sr(sSlot)}, {5*SLOT}',
            f's_min_u32 {sr(sSlot)}, {sr(sSlot)}, {sr(sT0)}']
def dst_update():
    if PD == 5:
        return [f's_add_u32 {sr(sT1)}, {sr(sSlot)}, {sr(sW4K)}']
    return [f's_add_u32 {sr(sT1)}, {sr(sSlot)}, {PD*SLOT}',
            f's_sub_u32 {sr(sT0)}, {sr(sT1)}, {5*SLOT}',
            f's_min_u32 {sr(sT1)}, {sr(sT1)}, {sr(sT0)}',
            f's_add_u32 {sr(sT1)}, {sr(sT1)}, {sr(sW4K)}']
def addr_update():
    return [f'v_add_u32 {vr(vKa)}, {sr(sSlot)}, {vr(vKb)}',
            f'v_add_u32 {vr(vVa)}, {sr(sSlot)}, {vr(vVb)}',
            f'v_add_u32 {vr(vVa+2)}, {sr(sSlot)}, {vr(vVb+1)}',
            f'v_xor_b32 {vr(vVa+1)}, 32, {vr(vVa)}',
            f'v_xor_b32 {vr(vVa+3)}, 32, {vr(vVa+2)}',
            f'v_add_u32 {vr(vKa+1)}, {sr(sSlot)}, {vr(vKb+1)}']

def build_stage(buf):
    s = Sched()
    for c in range(18):
        for i in range(4):
            s.add(*qk_mf(c, i))
        for j in range(4):
            s.add(*pv_mf(4*c + j, buf))
    for j in range(9):
        s.add(*sum_mf(j, buf))
    for c in range(18):
        ex, cv = softmax_ops(c, buf ^ 1)
        for r in range(4):
            s.put(8*c + 9 + 2*r, ex[r])
        s.put(8*c + 12, cv[0])
        s.put(8*c + 16, cv[1])
    BAR = OPT['BAR']
    assert s.load(BAR) == 0
    s.put(BAR, f's_waitcnt vmcnt({VMW})' + (' lgkmcnt(0)' if PD == 5 else ''))
    s.put(BAR, 's_barrier')
    first = lambda dt: 8*((9*dt) >> 2) + 4 + ((9*dt) & 3)
    lastu = lambda dt: 8*((9*dt+8) >> 2) + 4 + ((9*dt+8) & 3)
    au = addr_update()
    if not OPT['nodma']:
        s.put(0, f's_add_u32 m0, {sr(sT1)}, 16384')
    gk = {}
    gk[1] = s.seq([(kread(1, i), ('K', 1, i)) for i in range(4)], 0, 20)
    gv = {}
    gv[2] = s.seq([(vread(2, a, jj), ('V', 2, a)) for a in range(2) for jj in range(2)], 0, 20)
    gs_ = s.seq(dst_update() + slot_update(), 1, 30)
    for kt, lo in ((2, 37), (3, 77)):
        gk[kt] = s.seq([(kread(kt, i), ('K', kt & 1, i)) for i in range(4)], lo, lo + 24, 1)
    for dt in range(3, 8):
        lo = max(first(dt) - 44, lastu(dt - 4) + 1 if dt >= 4 else 0, 0)
        gv[dt] = s.seq([(vread(dt, a, jj), ('V', dt & 3, a)) for a in range(2) for jj in range(2)], lo, min(lo + 22, BAR - 6), 1)
    s.place(au[0], max(gs_, gk[1]) + 1, BAR - 1)
    s.place(au[5], gk[3] + 1, 150)
    ga = s.seq(au[1:3], gv[6] + 1, BAR - 1)
    gb = s.seq(au[3:5], max(gv[7], ga) + 1, BAR + 12)
    s.seq([(kread(0, i), ('K', 0, i)) for i in range(4)], BAR + 1, 140, 1)
    s.seq([(vread(0, a, jj), ('V', 0, a)) for a in range(2) for jj in range(2)], max(BAR + 1, lastu(4) + 1), 146, 1)
    s.seq([(vread(1, a, jj), ('V', 1, a)) for a in range(2) for jj in range(2)], max(gb + 1, lastu(5) + 1, 128), 152, 1)
    if not OPT['nodma']:
        g = 12
        for j in range(4):
            g = s.place(dma_kv('V', j, sOff), g, g + 10) + 8
        s.place(f's_add_u32 {sr(sOff)}, {sr(sOff)}, 16384', g - 6, g + 12)
        for k in range(WT):
            wt_ = wo_touch()
            g = s.seq(wt_[:2], g, BAR - 2) + 1
            while True:
                free = [x for x in range(g, g + 6) for _ in range(2 - s.load(x))][:3]
                span = range(free[0], free[-1] + 1) if len(free) == 3 else None
                if span and not any(t.startswith('s_') and not t.startswith('s_wait') for x in span for t, _ in s.gaps[x]):
                    break
                g += 1
            for x, t in zip(free, wt_[2:]):
                s.put(x, t)
            s.noscc = getattr(s, 'noscc', []) + list(span)
            g = free[-1] + 12
        g = s.place(f's_mov_b32 m0, {sr(sT1)}', 64, BAR + 8) + 1
        g = max(g, BAR + 8)
        for j in range(4):
            g = s.place(dma_kv('K', j, sOff), g, min(g + 10, 152)) + 6
    assert s.load(150) == 0
    s.put(150, 's_waitcnt lgkmcnt(0)')
    return s, BAR

def code_prefetch(g, start, end, srd, vtmp, vdst):
    g(f's_getpc_b64 {sr(srd,2)}')
    g.label(f'Lpc_{start[:4]}')
    g(f's_mov_b32 {sr(srd+2)}, {end}-Lpc_{start[:4]}')
    g(f's_mov_b32 {sr(srd+3)}, 0x20000')
    g(f'v_lshlrev_b32 {vr(vtmp)}, 7, v0')
    g('s_bfe_u32 s7, s2, 0x10003')
    g('s_lshl_b32 s7, s7, 15')
    g(f'buffer_load_dword {vr(vdst)}, {vr(vtmp)}, {sr(srd,4)}, s7 offen')

def kernel1(g):
    g.raw(f'.globl {KN}\n.p2align 8\n.type {KN},@function')
    g.label(KN)
    g('s_cmp_ge_u32 s2, 256')
    g('s_cbranch_scc1 L1_done')
    stamp(g, 3)
    g('s_load_dwordx4 s[28:31], s[0:1], 0')
    g('s_load_dwordx4 s[32:35], s[0:1], 16')
    g('s_load_dwordx2 s[36:37], s[0:1], 56')
    g('s_load_dwordx4 s[96:99], s[0:1], 32')
    g('s_load_dwordx2 s[94:95], s[0:1], 48')
    t = lambda i: vr(vQ + i)
    g(f'v_lshrrev_b32 {t(0)}, 6, v0')
    g(f'v_and_b32 {t(1)}, 63, v0')
    g(f'v_readfirstlane_b32 {sr(sW)}, {t(0)}')
    if OPT['ipf']:
        code_prefetch(g, 'attn_kernel', 'L1_end', 24, 23, 22)
    if OPT['map'] == 0:
        g('s_and_b32 s3, s2, 7')
        g('s_lshr_b32 s4, s2, 3')
    else:
        g('s_and_b32 s3, s2, 1'); g('s_lshl_b32 s3, s3, 2'); g('s_bfe_u32 s5, s2, 0x20003'); g('s_add_u32 s3, s3, s5')
        g('s_bfe_u32 s4, s2, 0x20001'); g('s_lshl_b32 s4, s4, 3'); g('s_lshr_b32 s6, s2, 5'); g('s_add_u32 s4, s4, s6')
    for p in range(1, 9):
        g(f's_mov_b32 {sr(sXC[p])}, {p*9216 - (p&3)*1024}')
    for p in range(1, 4):
        g(f's_mov_b32 {sr(sWC[p])}, {p*31744}')
    g(f's_mul_i32 {sr(sW9K)}, {sr(sW)}, 9216')
    g(f's_lshl_b32 {sr(sW1K)}, {sr(sW)}, 10')
    g(f's_lshl_b32 {sr(sW4K)}, {sr(sW)}, 12')
    g(f'v_and_b32 {t(2)}, 3, {t(1)}')
    g(f'v_bfe_u32 {t(3)}, {t(1)}, 2, 2')
    g(f'v_lshrrev_b32 {t(4)}, 4, {t(1)}')
    g(f'v_lshlrev_b32 {t(8)}, 6, {t(4)}')
    g(f'v_lshl_add_u32 {t(8)}, {t(2)}, 4, {t(8)}')
    g(f'v_lshl_add_u32 {t(9)}, {t(3)}, 13, {t(8)}')
    g(f'v_lshl_add_u32 {vr(vW0)}, {t(0)}, 17, {t(9)}')
    g(f'v_xor_b32 {vr(vW1)}, 48, {vr(vW0)}')
    g(f'v_bfe_u32 {t(7)}, {t(1)}, 2, 3')
    g(f'v_mul_u32_u24 {t(9)}, 72, {t(0)}')
    g(f'v_add_u32 {t(9)}, {t(9)}, {t(7)}')
    g(f'v_mul_u32_u24 {t(9)}, 1152, {t(9)}')
    g(f'v_and_b32 {t(6)}, 1, {t(0)}')
    g(f'v_lshlrev_b32 {t(10)}, 1, {t(6)}')
    g(f'v_xor_b32 {t(10)}, {t(10)}, {t(2)}')
    g(f'v_lshl_add_u32 {t(9)}, {t(10)}, 4, {t(9)}')
    g(f'v_lshrrev_b32 {t(5)}, 5, {t(1)}')
    g(f'v_lshl_add_u32 {vr(vXvo)}, {t(5)}, 6, {t(9)}')
    g(f'v_xor_b32 {vr(vXvo1)}, 32, {vr(vXvo)}')
    g('s_mul_i32 s6, s3, 331776')
    g('s_lshl_b32 s7, s4, 8')
    g(f's_mov_b32 {sr(sX+2)}, {331776-1024}')
    g(f's_mov_b32 {sr(sX+3)}, 0x20000')
    g(f's_mov_b32 {sr(sWQ+2)}, {63*8192+256}')
    g(f's_mov_b32 {sr(sWQ+3)}, 0x20000')
    g('s_waitcnt lgkmcnt(0)')
    stamp(g, 3)
    g(f's_add_u32 {sr(sX)}, s28, s6')
    g(f's_addc_u32 {sr(sX+1)}, s29, 0')
    g(f's_add_u32 {sr(sWQ)}, s34, s7')
    g(f's_addc_u32 {sr(sWQ+1)}, s35, 0')
    if OPT['dbg'] in (3, 4):
        g('s_mov_b32 s20, s94'); g('s_mov_b32 s21, s95'); g('s_mov_b32 s22, 256'); g('s_mov_b32 s23, 0x20000')
        g(f's_not_b32 s5, {sr(sRT)}'); g('v_mov_b32 v21, s5')
        g(f's_cmp_lg_u32 {sr(sW)}, 0'); g('s_cselect_b32 s22, 0, s22')
        g('s_mov_b64 exec, 1')
        g('buffer_atomic_umax v21, off, s[20:23], 0 offset:128 sc1')
        g('s_mov_b64 exec, -1')
    g.many(qchunk_dma(0))
    stamp(g, 2)
    weave_from = len(g.L)
    g('s_lshl_b32 s5, s3, 5')
    g('s_add_u32 s5, s5, s4')
    g('s_lshl_b32 s6, s5, 19')
    g(f's_add_u32 {sr(sK)}, s30, s6')
    g(f's_addc_u32 {sr(sK+1)}, s31, 0')
    g(f's_mov_b32 {sr(sK+2)}, 524288')
    g(f's_mov_b32 {sr(sK+3)}, 0x20000')
    g(f's_add_u32 {sr(sV)}, s32, s6')
    g(f's_addc_u32 {sr(sV+1)}, s33, 0')
    g(f's_sub_u32 {sr(sV)}, {sr(sV)}, 16384')
    g(f's_subb_u32 {sr(sV+1)}, {sr(sV+1)}, 0')
    g(f's_mov_b32 {sr(sV+2)}, {524288+16384}')
    g(f's_mov_b32 {sr(sV+3)}, 0x20000')
    g(f's_mul_i32 s5, s3, {18*131072}')
    g('s_lshl_b32 s6, s4, 12')
    g('s_add_u32 s5, s5, s6')
    g(f's_add_u32 {sr(sO)}, s36, s5')
    g(f's_addc_u32 {sr(sO+1)}, s37, 0')
    g(f's_mov_b32 {sr(sO+2)}, {17*131072+4096}')
    g(f's_mov_b32 {sr(sO+3)}, 0x20000')
    g(f'v_lshlrev_b32 {vr(vL16)}, 4, {t(1)}')
    g(f'v_lshl_add_u32 {t(9)}, {t(3)}, 8, {t(8)}')
    g(f'v_lshl_add_u32 {vr(vKV0)}, {t(0)}, 12, {t(9)}')
    g(f'v_xor_b32 {vr(vKV1)}, 48, {vr(vKV0)}')
    g(f'v_and_b32 {t(11)}, 1, {t(4)}')
    g(f'v_lshl_or_b32 {t(12)}, {t(11)}, 1, {t(5)}')
    g(f'v_and_b32 {t(13)}, 1, {t(3)}')
    g(f'v_mul_u32_u24 {t(13)}, 3, {t(13)}')
    g(f'v_xor_b32 {t(12)}, {t(12)}, {t(13)}')
    g(f'v_lshlrev_b32 {t(12)}, 4, {t(12)}')
    g(f'v_lshl_add_u32 {t(12)}, {t(2)}, 6, {t(12)}')
    g(f'v_lshl_add_u32 {t(12)}, {t(3)}, 10, {t(12)}')
    g(f'v_lshl_add_u32 {vr(vKb)}, {t(6)}, 13, {t(12)}')
    g(f'v_xor_b32 {vr(vKb+1)}, 8192, {vr(vKb)}')
    g(f'v_mul_u32_u24 {t(13)}, 3, {t(11)}')
    g(f'v_lshrrev_b32 {t(14)}, 1, {t(2)}')
    g(f'v_xor_b32 {t(13)}, {t(13)}, {t(14)}')
    g(f'v_lshlrev_b32 {t(13)}, 4, {t(13)}')
    g(f'v_and_b32 {t(14)}, 1, {t(2)}')
    g(f'v_lshl_add_u32 {t(13)}, {t(14)}, 3, {t(13)}')
    g(f'v_lshl_add_u32 {t(13)}, {t(3)}, 6, {t(13)}')
    g(f'v_lshl_add_u32 {t(14)}, {t(4)}, 10, {t(13)}')
    g(f'v_lshl_add_u32 {vr(vVb)}, {t(6)}, 13, {t(14)}')
    g(f'v_xor_b32 {vr(vVb+1)}, 8192, {vr(vVb)}')
    g(f'v_lshl_add_u32 {t(14)}, {t(4)}, 11, {t(13)}')
    g(f'v_lshl_add_u32 {t(14)}, {t(6)}, 9, {t(14)}')
    g(f'v_add_u32 {vr(vWa)}, {XB}, {t(14)}')
    g(f'v_xor_b32 {vr(vWa+1)}, 32, {vr(vWa)}')
    g(f'v_xor_b32 {vr(vWa+2)}, 512, {vr(vWa)}')
    g(f'v_xor_b32 {vr(vWa+3)}, 512, {vr(vWa+1)}')
    g(f'v_bfe_u32 {t(14)}, {t(1)}, 3, 1')
    g(f'v_lshlrev_b32 {t(15)}, 1, {t(14)}')
    g(f'v_xor_b32 {t(15)}, {t(15)}, {t(4)}')
    g(f'v_lshlrev_b32 {t(15)}, 4, {t(15)}')
    g(f'v_lshl_add_u32 {t(15)}, {t(14)}, 10, {t(15)}')
    g(f'v_and_b32 {t(14)}, 7, {t(1)}')
    g(f'v_lshl_add_u32 {t(15)}, {t(14)}, 6, {t(15)}')
    g(f'v_lshl_add_u32 {vr(vXa)}, {t(0)}, 13, {t(15)}')
    g(f'v_lshrrev_b32 {t(14)}, 1, {t(0)}')
    g(f'v_lshl_add_u32 {t(15)}, {t(14)}, 11, {t(15)}')
    g(f'v_add_u32 {vr(vXc)}, 32768, {t(15)}')
    cs = f2u(math.log2(math.e) / math.sqrt(128.0))
    g(f's_mov_b32 {sr(sC)}, {cs:#x}')
    g(f's_mov_b32 {sr(sC+1)}, {cs:#x}')
    g(f's_mov_b32 {sr(sPass)}, 0')
    g(f's_lshl_b32 {sr(sB4)}, s3, 2')
    g(f's_mov_b32 {sr(sThr)}, {f2u(-1.0 if OPT["force_fallback"] else 2.0**24):#x}')
    g(f'v_cmp_eq_u32 vcc, 0, {t(2)}')
    g(f'v_mov_b32 {t(14)}, 0x3f803f80')
    g('s_nop 0')
    g(f'v_cndmask_b32 {t(14)}, 0, {t(14)}, vcc')
    for r in range(4):
        g(f'v_accvgpr_write_b32 {ar(aONE+r)}, {t(14)}')
    for r in range(180):
        g(f'v_accvgpr_write_b32 {ar(aO+r)}, 0')
    g.c('---- Q projection: Q^T = wq_h^T x_b^T, 9 chunks of 64, 3-deep LDS ring')
    def xread(j, X, i):
        a = vXa if X < 4 else vXc
        off = i*512 + (X*2048 if X < 4 else 0)
        return (f'ds_read_b128 {vr(vQ+40*(j&1)+8*X+4*i,4)}, {vr(a)} offset:{off}', ('X', j & 1, X, i))
    def wread(tau, i, jj):
        return (f'ds_read_b64_tr_b16 {ar(aV+8*(tau&3)+4*i+2*jj,2)}, {vr(vWa+2*(tau>>2)+(tau&1))} offset:{i*8192+jj*1024+((tau>>1)&1)*256}', ('W', tau & 3, i))
    wr = lambda tau: [wread(tau, i, jj) for i in range(2) for jj in range(2)]
    xr = lambda j, X: [xread(j, X, i) for i in range(2)]
    s = Sched(cap=OPT['qcap'])
    gs = {}
    def acc(X, tau):
        return vACC + 32*X + 4*tau
    for j in range(9):
        for tau in range(8):
            gs[(j, tau)] = len(s.mf)
            for X in range(5 if tau < 4 else 4):
                for i in range(2):
                    d = vr(acc(X, tau), 4)
                    s.add(f'{MF} {d}, {ar(aV+8*(tau&3)+4*i,4)}, {vr(vQ+40*(j&1)+8*X+4*i,4)}, {d if (j or i) else 0}',
                          [('W', tau & 3, i), ('X', j & 1, X, i)])
    def weave(dma, lo, hi, sp):
        gq = lo
        k = 0
        while k < len(dma):
            x = dma[k]
            if x == 's_nop 0':
                gq += 1
            elif x.startswith('s_add_u32') and k + 1 < len(dma) and dma[k+1].startswith('s_addc'):
                while s.load(gq) > 0 and gq < hi:
                    gq += 1
                s.put(gq, x); s.put(gq, dma[k+1]); k += 1
            else:
                gq = s.place(x, gq, hi)
                if x.startswith('buffer'):
                    gq += sp if not (k + 1 < len(dma) and dma[k+1].startswith('s_')) else max(sp - 2, 1)
            k += 1
        return gq
    NT_ = 2 if OPT['touch'] else 0
    dmas = []
    pre = xr(0, 0) + wr(0) + xr(0, 1) + xr(0, 2) + xr(0, 3) + xr(0, 4) + wr(1) + wr(2)
    for j in range(9):
        b0 = gs[(j, 0)]
        for tau in range(3, 8):
            lo = gs[(j, tau - 3)] + 1
            s.seq(wr(tau), lo, lo + 7)
        bar = b0 + 52
        vm = (13 + (NT_ if j == 0 else 0)) if j + 1 <= 7 else (4 if j + 1 == 8 else None)
        s.put(bar, 's_waitcnt ' + (f'vmcnt({vm}) ' if vm is not None else '') + 'lgkmcnt(0)')
        s.put(bar, 's_barrier')
        if j < 8:
            dlt = QBUF if ((j + 1) % 3) else (-2*QBUF) & 0xffffffff
            s.seq([f'v_add_u32 {vr(rg)}, {dlt:#x}, {vr(rg)}' for rg in (vXa, vWa, vWa+1, vXc, vWa+2, vWa+3)], bar - 5, bar - 1)
            gq = s.seq(xr(j+1, 0) + wr(0) + xr(j+1, 1) + xr(j+1, 2) + xr(j+1, 3) + xr(j+1, 4), bar + 1, bar + 12)
            gq = s.seq(wr(1), max(gq, gs[(j, 6)] + 1), b0 + 71)
            s.seq(wr(2), max(gq, gs[(j, 7)] + 1), b0 + 71)
        if j + 3 <= 8:
            dma = qchunk_dma(j + 3)
        elif j == 6:
            dma = pair_const(0)
        elif j == 7:
            dma = pair_const(1)
        else:
            dma = sum((pair_const(u) for u in range(2, PD)), [])
        if j < 8:
            dmas.append((dma, bar + 1, bar + 70, OPT['qsp'] if j < 6 else 7))
        else:
            lastdma = dma
    body = g.L[weave_from:]
    first_acc = next(k for k, x in enumerate(body) if 'v_accvgpr_write_b32 a0,' in x)
    head, accw = body[:first_acc], body[first_acc:]
    del g.L[weave_from:]
    g.L += head
    d1 = qchunk_dma(1)
    for k, x in enumerate(accw):
        g.L.append(x)
        if k % 7 == 6 and d1:
            g(d1.pop(0))
    g.many(d1)
    if OPT['touch']:
        g.c('L2 warm-up: one touch per 128-byte line of this workgroup share of the later x / wq chunks')
        g(f's_sub_u32 s28, {sr(sX)}, 256'); g(f's_subb_u32 s29, {sr(sX+1)}, 0'); g('s_mov_b32 s30, 331776'); g('s_mov_b32 s31, 0x20000')
        g(f's_mov_b32 s32, {sr(sWQ)}'); g(f's_mov_b32 s33, {sr(sWQ+1)}'); g(f's_mov_b32 s34, {447*8192+256}'); g('s_mov_b32 s35, 0x20000')
        g('v_mul_u32_u24 v18, 1821, v0')
        g('v_lshrrev_b32 v18, 16, v18')
        g('v_mul_u32_u24 v19, 36, v18')
        g('v_sub_u32 v19, v0, v19')
        g('v_mul_u32_u24 v19, 1152, v19')
        g('v_lshl_add_u32 v19, v18, 7, v19')
        g('s_lshr_b32 s5, s2, 5'); g(f's_mul_i32 s5, s5, {36*1152}'); g('s_add_u32 s5, s5, 256')
        g('v_lshrrev_b32 v18, 1, v0')
        g('v_lshlrev_b32 v18, 15, v18')
        g('v_and_b32 v20, 1, v0')
        g('v_lshl_add_u32 v18, v20, 7, v18')
        g('s_bfe_u32 s6, s2, 0x20003'); g('s_lshl_b32 s6, s6, 13')
        g('buffer_load_dword v20, v19, s[28:31], s5 offen')
        g('buffer_load_dword v23, v18, s[32:35], s6 offen')
    assert weave(qchunk_dma(2), 0, 50, 3) <= 51
    for d_, lo_, hi_, sp_ in dmas:
        e_ = weave(d_, lo_, hi_, sp_)
        assert e_ <= hi_ + 8, (e_, hi_)
    stamp(g, 2)
    g(f's_waitcnt vmcnt({13 + NT_})')
    g('s_barrier')
    stamp(g, 3)
    if OPT['stamp'] & 2:
        for j in (1, 2, 3, 4, 6, 7, 8):
            s.put(gs[(j, 0)], f's_memtime {sr(sST + 2*nstamp[0], 2)}')
            nstamp[0] += 1
    g.many([x for x, _ in pre])
    gq = gs[(8, 0)] + 53
    while lastdma and gq < len(s.mf):
        x = lastdma.pop(0)
        s.put(gq, x)
        if x.startswith('buffer'):
            gq += 5
    s.resolve(pending=[(tag, -8) for _, tag in pre], look=5, mind=4)
    print('qproj', s.loads()[144:300], file=sys.stderr)
    s.emit(g)
    stamp(g, 7)
    g.c('---- scale by log2(e)/sqrt(128), round to bf16, exchange the shared tile')
    def conv(srcA, dst):
        for k in range(4):
            g(f'v_pk_mul_f32 {vr(srcA+2*k,2)}, {vr(srcA+2*k,2)}, {sr(sC,2)}')
        for k in range(4):
            g(f'v_cvt_pk_bf16_f32 {vr(dst+k)}, {vr(srcA+2*k)}, {vr(srcA+2*k+1)}')
    def swaps(dst):
        g(f'v_permlane16_swap_b32 {vr(dst)}, {vr(dst+2)}')
        g(f'v_permlane16_swap_b32 {vr(dst+1)}, {vr(dst+3)}')
    conv(acc(4, 0), vQ + 64)
    conv(acc(4, 2), vQ + 68)
    g(f's_lshl_b32 {sr(sT2)}, {sr(sW)}, 11')
    g(f's_add_u32 {sr(sT2)}, {sr(sT2)}, {EXCH}')
    g(f'v_add_u32 {vr(vXa)}, {sr(sT2)}, {vr(vL16)}')
    swaps(vQ + 64); swaps(vQ + 68)
    g(f's_and_b32 {sr(sT2)}, {sr(sT2)}, {~4095 & 0xffffffff:#x}')
    g(f'v_add_u32 {vr(17)}, {sr(sT2)}, {vr(vL16)}')
    g(f'ds_write_b128 {vr(vXa)}, {vr(vQ+64,4)}')
    g(f'ds_write_b128 {vr(vXa)}, {vr(vQ+68,4)} offset:1024')
    stamp(g, 4)
    g(f's_bitcmp1_b32 {sr(sW)}, 0')
    g('s_cbranch_scc1 L1_conv_odd')
    for p in range(2):
        prev = None
        ld = list(lastdma)
        for X in range(4):
            for il in range(4):
                dst = vQ + 16*X + 4*(il ^ (2*p))
                if il % (4 if PD == 3 else 1) == 0:
                    while ld:
                        x = ld.pop(0); g(x)
                        if x.startswith('buffer'):
                            break
                conv(acc(X, 2*il), dst)
                if prev is not None:
                    swaps(prev)
                prev = dst
        g('s_nop 1')
        swaps(prev)
        g.many(ld)
        if p == 0:
            g('s_branch L1_conv_done')
            g.label('L1_conv_odd')
    g.label('L1_conv_done')
    g(f's_mov_b32 {sr(sSlot)}, 0')
    g.many(addr_update())
    stamp(g, 4)
    g(f's_waitcnt vmcnt({8*(PD-1)}) lgkmcnt(0)')
    stamp(g, 4)
    g('s_barrier')
    stamp(g, 5)
    for i in range(4):
        g(kread(0, i))
    for i in range(4):
        g(f'ds_read_b128 {vr(vQ+64+4*i,4)}, {vr(17)} offset:{i*1024}')
    g.c('---- stand-in for the row max: exact max over the first 16 keys this wave sees (checked at the end)')
    vR = vT
    vM = vT + 20
    g('s_waitcnt lgkmcnt(4)')
    for c in range(5):
        if c == 4:
            g('s_waitcnt lgkmcnt(0)')
        for i in range(4):
            g(qk_mf(c, i, '0', vR + 4*c)[0])
    g('s_nop 3')
    for X in range(5):
        g(f'v_max3_f32 {vr(vM+X)}, {vr(vR+4*X)}, {vr(vR+4*X+1)}, {vr(vR+4*X+2)}')
    for X in range(5):
        g(f'v_max_f32 {vr(vM+X)}, {vr(vM+X)}, {vr(vR+4*X+3)}')
    def setneg():
        for sw in ('v_permlane32_swap_b32', 'v_permlane16_swap_b32'):
            for X in range(5):
                g(f'v_mov_b32 {vr(vM+5+X)}, {vr(vM+X)}')
            g('s_nop 0')
            for X in range(5):
                g(f'{sw} {vr(vM+5+X)}, {vr(vM+X)}')
            g('s_nop 0')
            for X in range(5):
                g(f'v_max_f32 {vr(vM+X)}, {vr(vM+X)}, {vr(vM+5+X)}')
        for X in range(5):
            for r in range(4):
                g(f'v_sub_f32 {vr(vNEG+4*X+r)}, 0, {vr(vM+X)}')
    setneg()
    stamp(g, 4)
    g('s_lshr_b32 s4, s2, 3')
    g(f's_mul_i32 {sr(sQG)}, s4, 57')
    g(f's_lshr_b32 {sr(sQG)}, {sr(sQG)}, 9')
    g(f's_mul_i32 s6, {sr(sQG)}, 9')
    g(f's_sub_u32 {sr(sNG)}, s4, s6')
    g(f's_mul_i32 {sr(sRot)}, {sr(sQG)}, 3')
    g(f's_add_u32 {sr(sRot)}, {sr(sRot)}, {sr(sNG)}')
    g(f's_mul_i32 {sr(sRot)}, {sr(sRot)}, {(OPT["k2_PH"]*256)//9 + 1}')
    g(f's_lshr_b32 {sr(sRot)}, {sr(sRot)}, 8')
    g(f's_lshl_b32 s5, {sr(sNG)}, 7')
    g(f's_add_u32 {sr(sX)}, s96, s5')
    g(f's_addc_u32 {sr(sX+1)}, s97, 0')
    g(f's_sub_u32 {sr(sX+2)}, {4096*1152}, s5')
    g(f's_cmp_ge_u32 {sr(sQG)}, 3')
    g(f's_cselect_b32 {sr(sX+2)}, 0, {sr(sX+2)}')
    g(f'v_bfe_u32 v18, {vr(vL16)}, 6, 3')
    g(f'v_add_u32 v18, {sr(sW1K)}, v18')
    g('v_mul_u32_u24 v18, 1152, v18')
    g(f'v_lshrrev_b32 v19, 9, {vr(vL16)}')
    g('v_lshl_add_u32 v18, v19, 6, v18')
    g(f'v_bfe_u32 v19, {vr(vL16)}, 8, 1')
    g('v_lshlrev_b32 v19, 5, v19')
    g(f'v_and_b32 v20, 48, {vr(vL16)}')
    g('v_xor_b32 v19, v19, v20')
    g('v_add_u32 v17, v19, v18')
    g.label('L1_main')
    g.c('entry: pair 0 visible, raw scores of key tile 0 in vR, pairs 1..4 issued, O = l = 0, -m set')
    for i in range(4):
        g(kread(1, i))
    for X in range(5):
        for r in range(4):
            g(f'v_add_f32 {vr(vR+4*X+r)}, {vr(vR+4*X+r)}, {vr(vNEG+4*X)}')
    g(f's_mov_b32 {sr(sOff)}, {PD*16384}')
    if WT:
        g(f's_mov_b32 {sr(sTo)}, {(-(31*WT - OPT["wtn"])*262144) & 0xffffffff:#x}')
        g(f's_mov_b32 {sr(sWT)}, s96'); g(f's_mov_b32 {sr(sWT+1)}, s97'); g(f's_mov_b32 {sr(sWT+2)}, 0'); g(f's_mov_b32 {sr(sWT+3)}, 0x20000'); g(f's_mov_b32 {sr(sTo+1)}, 0')
        g(f's_mul_i32 s4, {sr(sW)}, 1179648'); g('s_lshr_b32 s5, s2, 3'); g('s_lshl_b32 s5, s5, 13'); g('s_add_u32 s4, s4, s5')
        g(f'v_lshlrev_b32 {vr(vTo)}, 3, {vr(vL16)}')
        g(f'v_add_u32 {vr(vTo)}, s4, {vr(vTo)}')
    g(f's_mov_b32 {sr(sCnt)}, 0')
    squad = lambda c: vR + 4*c if c < 5 else (vP + 40 + 4*(c - 5) if c < 15 else vS + 4*(c - 15))
    s = Sched(cap=3)
    for c in range(5, 18):
        for i in range(4):
            s.add(*qk_mf(c, i, None, squad(c)))
    s.seq([(kread(2, i), ('K', 0, i)) for i in range(4)], 0, 6)
    s.seq([(kread(3, i), ('K', 1, i)) for i in range(4)], 21, 28)
    BARP = 38
    s.seq(dst_update() + slot_update(), 8, 24)
    s.put(BARP, f's_waitcnt vmcnt({8*(PD-2)}) lgkmcnt(0)')
    s.put(BARP, 's_barrier')
    s.seq(addr_update(), BARP - 6, BARP - 1)
    s.seq([(kread(0, i), ('K', 0, i)) for i in range(4)] +
          [(vread(dt, a, jj), ('V', dt, a)) for dt in range(2) for a in range(2) for jj in range(2)], BARP + 1, 51)
    flat = []
    prev = None
    for c in range(18):
        ex, cv = softmax_ops(c, 0, squad(c))
        lo = 0 if c < 5 else 4*(c - 5) + 9
        flat += [(lo, ex[0])] + ([(lo, prev)] if prev else []) + [(lo, ex[1]), (lo, ex[2]), (lo, cv[0]), (lo, ex[3])]
        prev = cv[1]
    tailops = []
    gq = 0
    nm = len(s.mf)
    for lo, x in flat:
        gq = max(gq, lo)
        while gq < nm and s.load(gq) + s.cost(x) > 4:
            gq += 1
        if gq >= nm:
            tailops.append(x)
        else:
            s.put(gq, x)
    tailops += ['s_nop 0', prev]
    stA, BA = build_stage(0)
    stB, BB = build_stage(1)
    if not OPT['nodma']:
        assert PD == 3 or WT == 0
        for k in range(WT):
            s.put(BARP + 1, wo_touch()[0])
        gq = s.place(f's_mov_b32 m0, {sr(sT1)}', BARP + 1, 51, cap=5) + 1
        for j in range(4):
            gq = s.place(dma_kv('K', j, sOff), gq, 51, cap=5) + 1
    pend = s.resolve(pending=[(('K', 1, i), -12) for i in range(4)], look=5, mind=4)
    s.emit(g)
    g.many(tailops)
    g('s_waitcnt lgkmcnt(0)')
    import copy
    carry = []
    for it in range(2):
        a, b = copy.deepcopy(stA), copy.deepcopy(stB)
        c1 = a.resolve(pending=carry)
        carry2 = b.resolve(pending=c1)
        if it == 1:
            assert carry2 == carry, (carry, carry2)
        carry = carry2
    print('stageA', a.loads(), file=sys.stderr)
    print('stageB', b.loads(), file=sys.stderr)
    a.place(f's_add_u32 {sr(sCnt)}, {sr(sCnt)}, 1', 112, 148)
    a.put(150, f's_cmp_eq_u32 {sr(sCnt)}, 16')
    assert not any(x[0].startswith('s_') and 'cmp' not in x[0] and 'wait' not in x[0] for x in a.gaps[150] + a.gaps[151] + a.gaps[152])
    stamp(g, 5)
    g.raw('.p2align 6')
    g.label('L1_loop')
    a.emit(g)
    g('s_cbranch_scc1 L1_tail')
    b.emit(g)
    g('s_branch L1_loop')
    g.label('L1_tail')
    stamp(g, 5)
    s = Sched(cap=3)
    for j in range(9):
        s.add(*sum_mf(j, 1))
    for j in range(72):
        s.add(*pv_mf(j, 1))
    for dt in range(2, 8):
        lo = 0 if dt < 4 else 9 + 9*(dt - 4) + 9
        s.seq([(vread(dt, a_, jj), ('V', dt & 3, a_)) for a_ in range(2) for jj in range(2)], lo, lo + 8)
    PH = OPT['k2_PH']; DO = OPT['DO']
    sWO, sO2, sOUT, sDB = sX, sWQ, sK, sV
    RNG = [0, 1, 6, 7, 2, 3, 5, 4, 8, 9]
    vWo = 17
    def kstep(st):
        return [f's_add_u32 {sr(sT0)}, {sr(sRot)}, {st & (PH-1)}',
                f's_and_b32 {sr(sT0)}, {sr(sT0)}, {PH-1}',
                f's_add_u32 {sr(sT0)}, {sr(sT0)}, {st & ~(PH-1)}']
    def wo_loads(st):
        w = kstep(st) + [f's_add_u32 m0, {sr(sW4K)}, {RNG[st % 10]*16384}', f's_mul_i32 {sr(sKw)}, {sr(sT0)}, 36864']
        for p in range(4):
            if p:
                w.append(f's_add_u32 {sr(sKw)}, {sr(sKw)}, 8192')
            w.append(f'buffer_load_dwordx4 {vr(vWo)}, {sr(sWO,4)}, {sr(sKw)} offen' + (f' offset:{p*1024}' if p else '') + f'{pol("pwo")} lds')
        return w
    gq = 0
    for st in range(4):
        for x in wo_loads(st):
            gq = s.place(x, gq, 60)
            if x.startswith('buffer'):
                gq += 1
    vl = vT + 32
    seq = [(0, f'v_add_u32 {vr(19)}, {sr(sW4K)}, {vr(vL16)}'), (0, f'v_add_u32 {vr(19)}, {4*SLOT}, {vr(19)}'),
           (0, f'v_lshrrev_b32 {vr(20)}, 2, {vr(vL16)}'), (0, f'v_add_u32 {vr(20)}, {2*SLOT}, {vr(20)}'),
           (0, f'v_add_u32 {vr(21)}, {sr(sW4K)}, {vr(20)}')]
    seq += [(14, f'v_accvgpr_read_b32 {vr(vl+X)}, {ar(aL+4*X)}') for X in range(5)]
    seq += [(14, f'v_cmp_nle_f32_e64 {d}, {vr(vl+X)}, {sr(sThr)}') for X, d in enumerate(('vcc', 's[4:5]', 's[6:7]', 's[28:29]', 's[30:31]'))]
    seq += [(14, f'v_rcp_f32 {vr(vl+X)}, {vr(vl+X)}') for X in range(4)]
    seq += [('S', ['s_or_b64 s[4:5], s[4:5], vcc', 's_or_b64 s[4:5], s[4:5], s[6:7]', 's_or_b64 s[28:29], s[28:29], s[30:31]',
                   's_or_b64 s[4:5], s[4:5], s[28:29]', 's_cselect_b32 s28, 1, 0',
                   f's_lshl_b32 s4, {sr(sW)}, 19', f's_add_u32 s5, s4, {131072}', f's_add_u32 s6, s4, {2*131072}', f's_add_u32 s7, s4, {3*131072}'])]
    seq += [(0, f'v_mov_b32 {vr(18)}, s28')]
    seq += [('S', ['s_waitcnt vmcnt(16)', f'ds_write_b32 {vr(21)}, {vr(vl+4)}', f'ds_write_b32 {vr(21)}, {vr(vNEG+16)} offset:256',
                   f'ds_write_b32 {vr(21)}, {vr(18)} offset:512'])]
    nf = 0
    for i in range(4):
        for X in range(4):
            rdy = 9 + 9*(2*i + 1) + 2*X + 1 + 5
            b = vP + 8*(nf % 5); d = vT + 4*(nf % 8); nf += 1
            seq += [(rdy, f'v_accvgpr_read_b32 {vr(b+r)}, {ar(aO+32*X+8*i+r)}') for r in range(8)]
            seq += [(rdy, f'v_mul_f32 {vr(b+r)}, {vr(b+r)}, {vr(vl+X)}') for r in range(8)]
            seq += [(rdy, f'v_cvt_pk_bf16_f32 {vr(d+k)}, {vr(b+2*k)}, {vr(b+2*k+1)}') for k in range(4)]
            seq += [('S', [f'buffer_store_dwordx4 {vr(d,4)}, {vr(vL16)}, {sr(sO,4)}, {sr(4+X)} offen offset:{i*1024}{pol("pos")}'])]
        seq += [('S', [f'ds_write_b128 {vr(19)}, {ar(aO+128+4*dt,4)} offset:{(dt>>2)*16384+(dt&3)*1024}' for dt in (2*i, 2*i+1)])]
    rest = []
    gq = 0
    nm = len(s.mf)
    lastdma_gap = max(x for x in range(nm) if any(t_.endswith('lds') for t_, _ in s.gaps[x]))
    for lo, x in seq:
        if lo == 'S':
            gq += 1
            if any('s_or_b64' in y or 'vmcnt' in y for y in x):
                gq = max(gq, lastdma_gap + 1)
            if gq >= nm:
                rest += x
            else:
                for y in x:
                    s.put(gq, y)
            continue
        gq = max(gq, lo)
        while gq < nm and s.load(gq) + s.cost(x) > 4:
            gq += 1
        if gq >= nm:
            rest.append(x)
        else:
            s.put(gq, x)
    s.resolve(pending=c1)
    print('tail', s.loads(), len(rest), file=sys.stderr)
    g('s_nop 0')
    s.emit(g)
    stamp(g, 4)
    g.c('---- epilogue')
    dsw = [x for x in rest if x.startswith('ds_write')]
    rest = [x for x in rest if not x.startswith('ds_write')]
    g.many(rest[:10])
    g.many(dsw)
    g.many(rest[10:])
    stamp(g, 4)
    g('s_waitcnt lgkmcnt(0)')
    g('s_barrier')
    for u in range(4):
        g(f'ds_read_b32 {vr(vS+u)}, {vr(20)} offset:{u*4096+512}')
    g(f'v_xor_b32 {vr(22)}, 4096, {vr(21)}')
    g(f'ds_read_b32 {vr(vS+4)}, {vr(22)}')
    g(f'ds_read_b32 {vr(vS+5)}, {vr(22)} offset:256')
    g(f's_and_b32 {sr(sT0)}, {sr(sW)}, 1')
    g(f's_lshl_b32 {sr(sT0)}, {sr(sT0)}, 14')
    g(f'v_add_u32 {vr(19)}, {sr(sT0)}, {vr(19)}')
    g(f'v_xor_b32 {vr(23)}, 4096, {vr(19)}')
    vA = vP + 40
    for j in range(4):
        g(f'ds_read_b128 {vr(vA+4*j,4)}, {vr(19)} offset:{j*1024}')
        g(f'ds_read_b128 {vr(vA+16+4*j,4)}, {vr(23)} offset:{j*1024}')
    g('s_waitcnt lgkmcnt(8)')
    g(f'v_or_b32 {vr(vS)}, {vr(vS)}, {vr(vS+1)}')
    g(f'v_or3_b32 {vr(vS)}, {vr(vS)}, {vr(vS+2)}, {vr(vS+3)}')
    g(f'v_min_f32 {vr(vS+6)}, {vr(vS+5)}, {vr(vNEG+16)}')
    g(f'v_readfirstlane_b32 {sr(sT0)}, {vr(vS)}')
    g(f'v_sub_f32 {vr(vS+8)}, {vr(vS+6)}, {vr(vNEG+16)}')
    g(f'v_sub_f32 {vr(vS+10)}, {vr(vS+6)}, {vr(vS+5)}')
    g(f's_andn2_b32 {sr(sT0)}, {sr(sT0)}, {sr(sPass)}')
    g('s_cbranch_scc1 L1_fallback')
    g(f'v_exp_f32 {vr(vS+8)}, {vr(vS+8)}')
    g(f'v_exp_f32 {vr(vS+10)}, {vr(vS+10)}')
    g(f's_lshr_b32 s4, {sr(sW)}, 1')
    g(f'v_mul_f32 {vr(vS+6)}, {vr(vS+8)}, {vr(vl+4)}')
    g(f'v_fmac_f32 {vr(vS+6)}, {vr(vS+10)}, {vr(vS+4)}')
    g(f'v_rcp_f32 {vr(vS+6)}, {vr(vS+6)}')
    g('s_lshl_b32 s4, s4, 17')
    g(f'v_mul_f32 {vr(vS+8)}, {vr(vS+8)}, {vr(vS+6)}')
    g(f'v_mul_f32 {vr(vS+10)}, {vr(vS+10)}, {vr(vS+6)}')
    g(f's_and_b32 s5, {sr(sW)}, 1')
    g('s_lshl_b32 s5, s5, 11')
    g('s_add_u32 s4, s4, s5')
    g(f's_add_u32 s4, s4, {16*131072}')
    g('s_waitcnt lgkmcnt(0)')
    for k in range(8):
        g(f'v_pk_mul_f32 {vr(vA+2*k,2)}, {vr(vA+2*k,2)}, {vr(vS+8,2)} op_sel_hi:[1,0]')
    for k in range(8):
        g(f'v_pk_fma_f32 {vr(vA+2*k,2)}, {vr(vA+16+2*k,2)}, {vr(vS+10,2)}, {vr(vA+2*k,2)} op_sel_hi:[1,0,1]')
    for k in range(8):
        g(f'v_cvt_pk_bf16_f32 {vr(vA+32+k)}, {vr(vA+2*k)}, {vr(vA+2*k+1)}')
    g(f'buffer_store_dwordx4 {vr(vA+32,4)}, {vr(vL16)}, {sr(sO,4)}, s4 offen{pol("pos")}')
    g(f'buffer_store_dwordx4 {vr(vA+36,4)}, {vr(vL16)}, {sr(sO,4)}, s4 offen offset:1024{pol("pos")}')
    stamp(g, 5)
    g.c('---- hand-off: all O stores of this workgroup are write-through and drained, then one counter add per workgroup')
    g(f's_mov_b32 {sr(sDB)}, s94')
    g(f's_mov_b32 {sr(sDB+1)}, s95')
    g(f's_mov_b32 {sr(sDB+2)}, 32')
    g(f's_mov_b32 {sr(sDB+3)}, 0x20000')
    g('s_and_b32 s3, s2, 7')
    g('s_mul_i32 s7, s3, 3')
    g(f's_add_u32 s7, s7, {sr(sQG)}')
    g(f's_mul_i32 s4, s7, {6*131072}')
    g(f's_add_u32 {sr(sO2)}, s36, s4')
    g(f's_addc_u32 {sr(sO2+1)}, s37, 0')
    g(f's_mov_b32 {sr(sO2+2)}, {6*131072}')
    g(f's_mul_i32 s4, s7, {96*1152}')
    g(f's_lshl_b32 s5, {sr(sNG)}, 7')
    g('s_add_u32 s4, s4, s5')
    g(f's_add_u32 {sr(sOUT)}, s98, s4')
    g(f's_addc_u32 {sr(sOUT+1)}, s99, 0')
    g(f's_sub_u32 {sr(sOUT+2)}, {2304*1152}, s4')
    g('s_lshl_b32 s3, s3, 2')
    vOo, vRa = 2, 8
    vOF = 24
    vWF = vOF + 24*DO
    g(f's_lshl_b32 s4, {sr(sW)}, 15')
    g(f'v_add_u32 {vr(vOo)}, s4, {vr(vL16)}')
    for X in range(1, 6):
        g(f'v_add_u32 {vr(vOo+X)}, {X*131072}, {vr(vOo)}')
    g(f'v_bfe_u32 v14, {vr(vL16)}, 6, 3')
    g('v_lshlrev_b32 v14, 6, v14')
    g(f'v_lshrrev_b32 v15, 9, {vr(vL16)}')
    g('v_lshl_add_u32 v14, v15, 10, v14')
    g(f'v_bfe_u32 v16, {vr(vL16)}, 8, 1')
    g('v_lshl_add_u32 v14, v16, 5, v14')
    g(f'v_bfe_u32 v18, {vr(vL16)}, 4, 2')
    g('v_lshl_add_u32 v14, v18, 3, v14')
    g(f'v_add_u32 {vr(vRa)}, {sr(sW4K)}, v14')
    g(f'v_xor_b32 {vr(vRa+1)}, 32, {vr(vRa)}')
    for k in (1, 2):
        g(f'v_add_u32 {vr(vRa+2*k)}, {65536*k}, {vr(vRa)}')
        g(f'v_add_u32 {vr(vRa+2*k+1)}, {65536*k}, {vr(vRa+1)}')
    g('v_mov_b32 v19, 1')
    for st in range(4, 7):
        g.many(wo_loads(st))
    g('s_waitcnt vmcnt(0)')
    stamp(g, 5)
    g('s_barrier')
    g(f's_cmp_lg_u32 {sr(sW)}, 0')
    g('s_cbranch_scc1 L1_nosig')
    g('s_mov_b64 exec, 1')
    g(f'buffer_atomic_add v19, off, {sr(sDB,4)}, {sr(sB4)} sc1')
    g('s_mov_b64 exec, -1')
    g.label('L1_nosig')
    g(f's_cmp_ge_u32 {sr(sQG)}, 3')
    g('s_cbranch_scc1 ' + ('L1_fin' if OPT['stamp'] else 'L1_done'))
    NP = OPT['NP']; NS = 32
    nvs = (256 - vWF) // 16
    assert NP <= 10 + nvs
    def wreg(st, k, n):
        sl = st % NP
        return ar(96 + 16*sl + k, n) if sl < 10 else vr(vWF + 16*(sl - 10) + k, n)
    def reads(st):
        r = RNG[st % 10]
        return [f'ds_read_b64_tr_b16 {wreg(st, 4*nt+2*jj, 2)}, {vr(vRa+2*(r>>2)+(nt&1))} offset:{(r&3)*16384+jj*2048+(nt>>1)*512}' for nt in range(4) for jj in range(2)]
    vq = []
    def vwait(tags):
        idx = [k for k, tg in enumerate(vq) if tg in tags]
        return len(vq) - 1 - idx[-1] if idx else None
    g(f's_cmp_lg_u32 {sr(sW)}, 0')
    g(f's_cselect_b32 {sr(sDB+2)}, 0, 32')
    g.many(reads(0))
    for st in range(7, 10):
        g.many(wo_loads(st))
        vq += [('w', st)] * 4
    g.c('wo fragments of the first steps move into registers while the other workgroups finish')
    for st in range(NP):
        if st + 1 < NP:
            n = vwait([('w', st + 1)])
            if n is not None:
                g(f's_waitcnt vmcnt({n})')
            g.many(reads(st + 1))
            g('s_waitcnt lgkmcnt(8)')
        else:
            g('s_waitcnt lgkmcnt(0)')
        if st == OPT['PQ']:
            g(f'buffer_load_dword v19, off, {sr(sDB,4)}, s3 sc1')
            vq.append(('p', 0))
        if st + 10 < NS:
            g.many(wo_loads(st + 10))
            vq += [('w', st + 10)] * 4
    stamp(g, 5)
    g(f's_cmp_lg_u32 {sr(sW)}, 0')
    g('s_cbranch_scc1 L1_go')
    g(f's_mov_b32 {sr(sCnt)}, 0')
    g(f's_waitcnt vmcnt({vwait([("p", 0)])})')
    g.label('L1_poll')
    g('v_readfirstlane_b32 s4, v19')
    g(f's_add_u32 {sr(sCnt)}, {sr(sCnt)}, 1')
    g(f's_cmp_gt_u32 {sr(sCnt)}, 400000')
    g('s_cbranch_scc1 L1_go')
    g('s_cmp_ge_u32 s4, 32')
    g('s_cbranch_scc1 L1_go')
    g(f'buffer_load_dword v19, off, {sr(sDB,4)}, s3 sc1')
    g('s_sleep 1')
    g('s_waitcnt vmcnt(0)')
    g('s_branch L1_poll')
    g.label('L1_go')
    g('s_barrier')
    stamp(g, 5)
    g.c('---- output projection: 96 x 64 tile, K split over the 4 waves')
    def o_loads(st):
        sl = st % DO
        return kstep(st) + [f's_lshl_b32 {sr(sKo)}, {sr(sT0)}, 10'], \
               [f'buffer_load_dwordx4 {vr(vOF+24*sl+4*X,4)}, {vr(vOo+X)}, {sr(sO2,4)}, {sr(sKo)} offen{pol("pol")}' for X in range(6)]
    def o_pair(st):
        a0, o0 = o_loads(st)
        a1, o1 = o_loads(st + 1)
        a1[-1] = a1[-1].replace(sr(sKo), sr(53)); o1 = [y.replace(sr(sKo) + ' ', sr(53) + ' ') for y in o1]
        return a0 + a1, [z for X in range(6) for z in ((o0[X], (st, X)), (o1[X], (st, X)))]
    if OPT['chain']:
        for st in range(0, DO, 2):
            a_, o = o_pair(st)
            g.many(a_)
            for y, tg in o:
                g(y); vq.append(('o', tg))
    else:
        for st in range(DO):
            a_, o = o_loads(st)
            g.many(a_ + o)
            vq += [('o', st)] * 6
    if OPT['chain']:
        assert DO == 4 and NP % 2 == 0
        sKo2 = 53
        for st in range(0, NS, 2):
            rs = [x for x in (st - 2 + NP, st - 1 + NP) if st >= 2 and x < NS]
            ws = [x for x in (st - 4 + NP + 10, st - 3 + NP + 10) if st >= 4 and x < NS]
            need = [('o', (st, 0))] + [('w', x) for x in rs]
            g(f's_waitcnt vmcnt({min(vwait(need), 63)}) lgkmcnt(0)')
            rd = sum((reads(x) for x in rs), [])
            w = sum(([(y, x) for y in wo_loads(x)] for x in ws), [])
            a_, o = [], []
            if st + DO < NS:
                a_, o = o_pair(st + DO)
            m = 0
            for X in range(6):
                for nt in range(4):
                    for e in range(2):
                        d = ar(4*(4*X + nt), 4)
                        g(f'{MF} {d}, {wreg(st+e, 4*nt, 4)}, {vr(vOF+24*((st+e) % DO)+4*X,4)}, {d if (st or e) else 0}')
                        if (m & 7) == 7 and X < 5:
                            g(f's_waitcnt vmcnt({min(vwait([("o", (st, X + 1))]), 63)})')
                        elif m < 4:
                            g.many(a_[2*m:2*m+2])
                        elif o and m >= 9 and (m & 3) == 1:
                            y, tg = o.pop(0); g(y); vq.append(('o', tg))
                        elif rd:
                            g(rd.pop(0)); g(rd.pop(0))
                        elif w:
                            k = 0
                            while w and k < 2:
                                y, tg = w.pop(0); g(y); k += 1
                                if y.startswith('buffer'):
                                    vq.append(('w', tg)); break
                        m += 1
            if o:
                g('s_nop 0')
            while o:
                y, tg = o.pop(0); g(y); vq.append(('o', tg))
            assert not w and not rd
    else:
        for st in range(NS):
            sl = st % DO
            rs = st - 1 + NP
            ws = st - 2 + NP + 10
            need = [('o', st)] + ([('w', rs)] if st >= 1 and rs < NS else [])
            g(f's_waitcnt vmcnt({min(vwait(need), 63)}) lgkmcnt(0)')
            rd = reads(rs) if (st >= 1 and rs < NS) else []
            w = wo_loads(ws) if (st >= 2 and ws < NS) else []
            a_, o = o_loads(st + DO) if st + DO < NS else ([], [])
            for X in range(6):
                for nt in range(4):
                    d = ar(4*(4*X + nt), 4)
                    g(f'{MF} {d}, {wreg(st, 4*nt, 4)}, {vr(vOF+24*sl+4*X,4)}, {d if st else 0}')
                    m = 4*X + nt
                    if m < 2:
                        g.many(a_[2*m:2*m+2])
                    elif o and m >= 5 and nt == 1:
                        g(o.pop(0)); vq.append(('o', st + DO))
                    elif rd:
                        g(rd.pop(0)); g(rd.pop(0))
                    elif w:
                        k = 0
                        while w and k < 2:
                            x = w.pop(0); g(x); k += 1
                            if x.startswith('buffer'):
                                vq.append(('w', ws)); break
            if o:
                g('s_nop 0')
                g(o.pop(0)); vq.append(('o', st + DO))
            assert not o and not w and not rd
    stamp(g, 5)
    g(f'v_add_u32 v9, {sr(sW4K)}, {vr(vL16)}')
    g('v_add_u32 v10, 65536, v9')
    g(f'v_bfe_u32 v11, {vr(vL16)}, 4, 4')
    g('v_mul_u32_u24 v11, 1152, v11')
    g('v_lshl_add_u32 v11, v15, 4, v11')
    g('v_lshl_add_u32 v11, v16, 5, v11')
    g('s_nop 1')
    for j in range(24):
        r = j >> 2
        g(f'ds_write_b128 {"v9" if r < 4 else "v10"}, {ar(4*j,4)} offset:{(r&3)*16384+(j&3)*1024}')
    for e in range(3):
        g(f's_mul_i32 s4, {sr(sW)}, 3')
        g(f's_add_u32 s4, s4, {e}')
        g('s_lshr_b32 s5, s4, 1')
        g('s_and_b32 s4, s4, 1')
        g('s_lshl_b32 s6, s5, 14')
        g('s_lshl_b32 s7, s4, 11')
        g('s_add_u32 s6, s6, s7')
        g(f'v_add_u32 {vr(12+e)}, s6, {vr(vL16)}')
        g('s_mul_i32 s5, s5, 18432')
        g('s_lshl_b32 s4, s4, 6')
        g(f's_add_u32 {sr(44+e)}, s4, s5')
    g('s_waitcnt lgkmcnt(0)')
    g('s_barrier')
    for u in range(4):
        for j in range(6):
            g(f'ds_read_b128 {vr(24+24*u+4*j,4)}, {vr(12+(j>>1))} offset:{u*4096+(j&1)*1024}')
    g('s_waitcnt lgkmcnt(12)')
    for k in range(12):
        g(f'v_pk_add_f32 {vr(24+2*k,2)}, {vr(24+2*k,2)}, {vr(48+2*k,2)}')
    g('s_waitcnt lgkmcnt(0)')
    for k in range(12):
        g(f'v_pk_add_f32 {vr(72+2*k,2)}, {vr(72+2*k,2)}, {vr(96+2*k,2)}')
    for k in range(12):
        g(f'v_pk_add_f32 {vr(24+2*k,2)}, {vr(24+2*k,2)}, {vr(72+2*k,2)}')
    for k in range(12):
        g(f'v_cvt_pk_bf16_f32 {vr(120+k)}, {vr(24+2*k)}, {vr(24+2*k+1)}')
    g('s_nop 1')
    for e in range(3):
        g(f'v_permlane16_swap_b32 {vr(120+4*e)}, {vr(122+4*e)}')
        g(f'v_permlane16_swap_b32 {vr(121+4*e)}, {vr(123+4*e)}')
    for e in range(3):
        g(f'buffer_store_dwordx4 {vr(120+4*e,4)}, v11, {sr(sOUT,4)}, {sr(44+e)} offen')
    if OPT['stamp']:
        g('s_waitcnt vmcnt(0)')
        stamp(g, 5)
        g.label('L1_fin')
        emit_stamps(g, 36, 0)
    g.label('L1_done')
    g('s_endpgm')
    g.c('---- fallback: the stand-in was unsafe.  Scan all keys for the true row max, then redo the main pass.')
    g.label('L1_fallback')
    g(f's_mov_b32 {sr(sPass)}, 1')
    g('s_waitcnt vmcnt(0) lgkmcnt(0)')
    for X in range(5):
        g(f'v_mov_b32 {vr(vM+X)}, 0xff800000')
    g(f's_mov_b32 {sr(sOff)}, 0')
    g(f's_mov_b32 {sr(sSlot)}, 0')
    g.many(addr_update())
    g.label('L1_scan')
    g('s_barrier')
    g(f's_mov_b32 m0, {sr(sW4K)}')
    g('s_nop 0')
    for j in range(4):
        g(dma_kv('K', j, sOff))
    g(f's_add_u32 {sr(sOff)}, {sr(sOff)}, 16384')
    g('s_waitcnt vmcnt(0)')
    g('s_barrier')
    for kt in range(4):
        for i in range(4):
            g(kread(kt, i, aK))
        g('s_waitcnt lgkmcnt(0)')
        for c in range(5):
            for i in range(4):
                g(qk_mf(c, i, '0', vR + 4*c)[0])
        g('s_nop 7')
        for X in range(5):
            g(f'v_max3_f32 {vr(vM+X)}, {vr(vM+X)}, {vr(vR+4*X)}, {vr(vR+4*X+1)}')
            g(f'v_max3_f32 {vr(vM+X)}, {vr(vM+X)}, {vr(vR+4*X+2)}, {vr(vR+4*X+3)}')
    g(f's_cmp_lt_u32 {sr(sOff)}, 524288')
    g('s_cbranch_scc1 L1_scan')
    g('s_barrier')
    for u in range(PD):
        g.many(pair_const(u))
    setneg()
    for r in range(180):
        g(f'v_accvgpr_write_b32 {ar(aO+r)}, 0')
    g(f's_waitcnt vmcnt({8*(PD-1)})')
    g('s_barrier')
    for i in range(4):
        g(kread(0, i))
    g('s_waitcnt lgkmcnt(0)')
    for c in range(5):
        for i in range(4):
            g(qk_mf(c, i, '0', vR + 4*c)[0])
    g('s_nop 7')
    g('s_branch L1_main')
    g.label('L1_end')

def emit_stamps(g, sws, kidx):
    n = nstamp[0]
    assert n <= 13
    g(f's_memrealtime {sr(sRT+2, 2)}')
    g('s_waitcnt lgkmcnt(0)')
    if OPT['dbg'] >= 2:
        if OPT['dbg'] == 2:
            g(f's_sub_u32 s5, {sr(sRT+2)}, {sr(sRT)}')
        elif OPT['dbg'] in (3, 4):
            g('s_mov_b32 s22, 256')
            g('buffer_load_dword v21, off, s[20:23], 0 offset:128 sc1')
            g('s_waitcnt vmcnt(0)')
            g('v_readfirstlane_b32 s6, v21')
            g('s_nop 3')
            g('s_not_b32 s6, s6')
            g(f's_sub_u32 s5, {sr(sRT if OPT["dbg"] == 3 else sRT+2)}, s6')
            if OPT['dbg'] == 3:
                g('s_lshl_b32 s5, s5, 2')
        else:
            a, b = OPT['dbg'] // 100, OPT['dbg'] % 100
            g(f's_sub_u32 s5, {sr(sST+2*b)}, {sr(sST+2*a)}')
            g('s_lshr_b32 s5, s5, 4')
        if OPT['dbg'] != 3:
            g(f's_cmp_ge_u32 {sr(sQG)}, 3'); g('s_cselect_b32 s5, 0, s5')
        g('s_min_u32 s5, s5, 50000')
        g.label('L_spin')
        g('s_memrealtime s[6:7]')
        g('s_waitcnt lgkmcnt(0)')
        g(f's_sub_u32 s6, s6, {sr(sRT+2)}')
        g('s_cmp_lt_u32 s6, s5')
        g('s_cbranch_scc1 L_spin')
        nstamp[0] = 0
        return
    g(f's_add_u32 s8, {sr(sws)}, {STAMP_OFF + kidx*(1<<20)}')
    g(f's_addc_u32 s9, {sr(sws+1)}, 0')
    g('s_mov_b32 s10, 0x100000')
    g('s_mov_b32 s11, 0x20000')
    g('s_lshl_b32 s4, s2, 2')
    g(f's_add_u32 s4, s4, {sr(sW)}')
    g('s_lshl_b32 s4, s4, 7')
    g('s_mov_b64 exec, 1')
    g('v_mov_b32 v2, 0')
    for reg, off in [(sST+2*i, 8*i) for i in range(n)] + [(sRT, 104), (sRT+2, 112)]:
        g(f'v_mov_b32 v4, {sr(reg)}')
        g(f'v_mov_b32 v5, {sr(reg+1)}')
        g(f'buffer_store_dwordx2 v[4:5], v2, s[8:11], s4 offen offset:{off}')
        g('s_nop 1')
    if OPT['dbg']:
        g('s_mov_b32 s8, s94'); g('s_mov_b32 s9, s95'); g('s_mov_b32 s10, 64')
        g(f's_cmp_ge_u32 {sr(sQG)}, 3'); g('s_cselect_b32 s10, 0, s10')
        pairs = [(sRT, sRT+2, 1), (sST, sST+2*5, 1), (sST+2*5, sST+2*6, 1), (sST+2*5, sST+2*6, -1), (sST+2*6, sST+2*8, 1), (sST+2*8, sST+2*9, 1), (sST+2*9, sST+2*10, 1), (sST, sST+2*11, 1)]
        for k, (a, b, sg) in enumerate(pairs):
            g(f's_sub_u32 s5, {sr(b)}, {sr(a)}' if sg > 0 else f's_sub_u32 s5, {sr(a)}, {sr(b)}')
            g('v_mov_b32 v4, s5')
            g(f'buffer_atomic_umax v4, off, s[8:11], 0 offset:{32+4*k} sc1')
            g('s_nop 1')
        nstamp[0] = 0
        return
    g('s_getreg_b32 s5, hwreg(HW_REG_XCC_ID)')
    g('v_mov_b32 v4, s5')
    g('buffer_store_dword v4, v2, s[8:11], s4 offen offset:120')
    print('stamps', kidx, n, file=sys.stderr)
    nstamp[0] = 0

def kd(name, nv, acc):
    return f'''.p2align 6
.amdhsa_kernel {name}
  .amdhsa_next_free_vgpr {nv}
  .amdhsa_next_free_sgpr 102
  .amdhsa_accum_offset {acc}
  .amdhsa_group_segment_fixed_size 0
  .amdhsa_kernarg_size 64
  .amdhsa_user_sgpr_count 2
  .amdhsa_user_sgpr_kernarg_segment_ptr 1
  .amdhsa_system_sgpr_workgroup_id_x 1
  .amdhsa_float_denorm_mode_32 3
.end_amdhsa_kernel'''

def main():
    here = os.path.dirname(os.path.abspath(__file__))
    g = G()
    kernel1(g)
    out = open(here + '/header3.txt').read()
    out += '.amdgcn_target "amdgcn-amd-amdhsa--gfx950"\n.text\n'
    out += '\n'.join(g.L) + '\n'
    out += '.section .rodata,"a"\n' + kd(KN, 512, 256) + '\n'
    open(sys.argv[1], 'w').write(out)

main()
```

```python
import sys, math, struct, re, os

OPT = dict(stamp=0, force_fallback=0, k2_D=6, k2_PH=8, nodma=0, map=1, qrot=0, pd=3, qsp=4, ipf=1, RF=18, NP=20, PQ=14, NB=3, pout=0, touch=0, qcap=2, BAR=110, wt=1, wtn=3, wto=0, kw=0, ssig=2, spoll=0, CK=2, dbg=0, rt=0,
           px=0, pwq=0, pos=2, pol=2, pwo=0, pkv=1, wopf=0)
for a in sys.argv[2:]:
    k, v = a.split('=')
    assert k in OPT, k
    OPT[k] = int(v)
POL = ['', ' nt', ' sc1', ' sc0 sc1', ' sc1 nt', ' sc0 sc1 nt', ' sc0']
pol = lambda k: POL[OPT[k]]

def f2u(x):
    return struct.unpack('<I', struct.pack('<f', x))[0]

class G:
    def __init__(self):
        self.L = []
    def __call__(self, s):
        self.L.append('    ' + s)
    def many(self, xs):
        for x in xs:
            self(x)
    def label(self, s):
        self.L.append(s + ':')
    def c(self, s):
        self.L.append('    ; ' + s)
    def raw(self, s):
        self.L.append(s)

vr = lambda b, n=1: f'v{b}' if n == 1 else f'v[{b}:{b+n-1}]'
ar = lambda b, n=1: f'a{b}' if n == 1 else f'a[{b}:{b+n-1}]'
sr = lambda b, n=1: f's{b}' if n == 1 else f's[{b}:{b+n-1}]'
MF = 'v_mfma_f32_16x16x32_bf16'
STAMP_OFF = 32 << 20
KN = 'standalone__mha_block_cached__near_ridge_kernel'

class Sched:
    def __init__(self, cap=2):
        self.mf = []
        self.gaps = []
        self.cap = cap
    def add(self, text, needs=()):
        self.mf.append((text, tuple(needs)))
        self.gaps.append([])
        return len(self.mf) - 1
    @staticmethod
    def cost(t):
        return 2 if t.startswith('v_exp') else 1
    def load(self, g):
        return sum(self.cost(t) for t, _ in self.gaps[g])
    def put(self, g, text, tag=None):
        self.gaps[g].append((text, tag))
        return g
    def place(self, text, lo, hi, tag=None, cap=None):
        cap = cap or self.cap
        hi = min(hi, len(self.mf) - 1)
        assert lo <= hi, (text, lo, hi)
        for g in range(lo, hi + 1):
            if self.load(g) + self.cost(text) <= cap:
                return self.put(g, text, tag)
        best = min(range(lo, hi + 1), key=self.load)
        return self.put(best, text, tag)
    def seq(self, texts, lo, hi, step=0):
        g = lo
        for t in texts:
            tag = None
            if isinstance(t, tuple):
                t, tag = t
            g = self.place(t, g, hi, tag) + step
        return g
    def order(self, g):
        a = [x for x in self.gaps[g] if not x[0].startswith('v_')]
        b = [x for x in self.gaps[g] if x[0].startswith('v_')]
        return a + b
    def resolve(self, pending=(), look=6, mind=5):
        n = len(self.mf)
        waits = {}
        def issued_upto(g):
            out = list(pending)
            for x in range(g):
                out += [(tag, x) for t, tag in self.order(x) if t.startswith('ds_')]
            return out
        done = 0
        fixed = {}
        for x in range(n):
            for t, _ in self.gaps[x]:
                if 'lgkmcnt(0)' in t:
                    fixed[x] = True
        for m in range(n):
            if (m - 1) in fixed:
                done = max(done, len(issued_upto(m - 1)))
            iss = issued_upto(m)
            last = -1
            for tag in self.mf[m][1]:
                idx = [k for k, (tg, _) in enumerate(iss) if tg == tag]
                if idx:
                    last = max(last, idx[-1])
            if last >= done:
                lg = iss[last][1]
                if m == 0:
                    pos = -1
                else:
                    cands = [p for p in range(m - 1, max(m - 12, lg, -1), -1) if p - lg >= mind and self.load(p) < self.cap]
                    pos = cands[0] if cands else m - 1
                    assert pos > lg, (self.mf[m], lg)
                cur = issued_upto(max(pos, 0))
                need = last + 1
                while need < len(cur) and cur[need][1] <= pos - look:
                    need += 1
                cnt = min(len(cur) - need, 15)
                done = len(cur) - cnt
                w = (f's_waitcnt lgkmcnt({cnt})', None)
                if pos < 0:
                    waits[-1] = w[0]
                else:
                    self.gaps[pos].insert(0, w)
        self.pre = waits.get(-1)
        allops = issued_upto(n)
        return [(tag, g - n) for tag, g in allops[done:]]
    def emit(self, g):
        if getattr(self, 'pre', None):
            g(self.pre)
        for m in range(len(self.mf)):
            g(self.mf[m][0])
            for t, _ in self.order(m):
                g(t)
    def loads(self):
        return ''.join(str(self.load(x)) for x in range(len(self.mf)))

sX, sWQ, sK, sV, sO = 8, 12, 16, 20, 24
sW, sW4K, sW1K = 38, 39, 56
sT0, sT1, sT2 = 40, 41, 42
sSlot, sOld, sOff, sCnt, sPass = 43, 44, 45, 46, 47
sCx, sCw, sCh = 48, 49, 50
sC = 54
sThr = 58
sB4 = 57
sRot, sQG, sNG = 59, 88, 89
sRW = [48, 49, 50, 51, 52, 53, 86, 87]
sDB = 32
vWo = [2, 3, 4, 21]
vRb = 17
RNG = [6, 7, 8, 9, 4, 1, 3, 2, 0, 5]
NE = 7
sST, sRT = 60, 90
vL16, vXvo, vW0, vW1, vKV0, vKV1 = 1, 2, 3, 4, 5, 6
vKb, vVb = 7, 9
vXa, vXc, vWa = 11, 12, 13
vKa, vVa = 11, 13
vQ = 24
vACC = 104
vNEG = 104
vP = 124
vS = 204
vT = 216
aO, aL, aONE, aK, aV = 0, 160, 180, 184, 216
QBUF, XB, SLOT = 53248, 36864, 32768
EXCH = 16384

nstamp = [0]
def stamp(g, mode=1):
    if OPT['stamp'] & mode:
        if nstamp[0] == 0:
            g(f's_memrealtime {sr(sRT, 2)}')
        g(f's_memtime {sr(sST + 2*nstamp[0], 2)}' if not OPT['rt'] else f's_memrealtime {sr(sST + 2*nstamp[0], 2)} ; s_memtime')
        nstamp[0] += 1

def dma_kv(kind, j, soff):
    srd = sK if kind == 'K' else sV
    off = f' offset:{j*1024}' if j else ''
    return f'buffer_load_dwordx4 {vr(vKV1 if j & 1 else vKV0)}, {sr(srd,4)}, {sr(soff)} offen{off}{pol("pkv")} lds'

def pair_const(u):
    slot = (u % 5) * SLOT
    out = [f's_add_u32 m0, {sr(sW4K)}, {slot}', f's_mov_b32 {sr(sT0)}, {u*16384}']
    out += [dma_kv('K', j, sT0) for j in range(4)]
    if u > 0:
        out += [f's_add_u32 m0, {sr(sW4K)}, {slot+16384}', 's_nop 0']
        out += [dma_kv('V', j, sT0) for j in range(4)]
    return out

sXC = [None, 48, 49, 50, 51, 52, 53, 86, 87]
sWC = [None, 88, 89, 59]
sW9K = 44
vXvo1 = 21
def qchunk_dma(j):
    out = []
    buf = (j % 3) * QBUF
    so = lambda r: '0' if r is None else sr(r)
    off = lambda p: f' offset:{(p&3)*1024}' if p & 3 else ''
    out.append(f's_add_u32 m0, {sr(sW4K)}, {buf + XB}')
    out.append('s_nop 0')
    for p in range(4):
        out.append(f'buffer_load_dwordx4 {vr(vW1 if p & 2 else vW0)}, {sr(sWQ,4)}, {so(sWC[p])} offen{off(p)}{pol("pwq")} lds')
    fill = [f's_add_u32 {sr(sWQ)}, {sr(sWQ)}, 524288', f's_addc_u32 {sr(sWQ+1)}, {sr(sWQ+1)}, 0']
    out += fill
    for p in range(9):
        if p & 3 == 0:
            out.append(f's_add_u32 m0, {sr(sW9K)}, {buf + p*1024}')
            out.append('s_nop 0')
        out.append(f'buffer_load_dwordx4 {vr(vXvo1 if p & 1 else vXvo)}, {sr(sX,4)}, {so(sXC[p])} offen{off(p)}{pol("px")} lds')
    out += [f's_add_u32 {sr(sX)}, {sr(sX)}, 128', f's_addc_u32 {sr(sX+1)}, {sr(sX+1)}, 0']
    return out

def kread(kt, i, dst=None):
    dst = aK + 16*(kt & 1) if dst is None else dst
    return f'ds_read_b128 {ar(dst+4*i,4)}, {vr(vKa+(kt>>1))} offset:{i*256+(kt&1)*4096}'
def vread(dt, a, jj):
    return f'ds_read_b64_tr_b16 {ar(aV+8*(dt&3)+4*a+2*jj,2)}, {vr(vVa+2*a+(dt&1))} offset:{16384+jj*4096+(dt>>1)*256}'
def Preg(buf, X, a):
    return vP + 40*buf + 8*X + 4*a

CHAINS = [(kt, X) for kt in range(4) for X in range(5 if kt < 2 else 4)]
PVS = [(dt, X, a) for dt in range(8) for X in range(5) for a in range(2 if X < 4 else 1)]
SUMS = [(X, a) for X in range(5) for a in range(2 if X < 4 else 1)]

def qk_mf(c, i, cinit=None, dst=None):
    kt, X = CHAINS[c]
    d = vr(vS + 4*(c % 3) if dst is None else dst, 4)
    ci = vr(vNEG + 4*X, 4) if cinit is None else cinit
    return f'{MF} {d}, {ar(aK+16*(kt&1)+4*i,4)}, {vr(vQ+16*X+4*i,4)}, {d if i else ci}', [('K', kt & 1, i)]
def pv_mf(j, buf):
    dt, X, a = PVS[j]
    o = ar(aO + 32*X + 4*dt, 4)
    return f'{MF} {o}, {ar(aV+8*(dt&3)+4*a,4)}, {vr(Preg(buf,X,a),4)}, {o}', [('V', dt & 3, a)]
def sum_mf(j, buf):
    X, a = SUMS[j]
    o = ar(aL + 4*X, 4)
    return f'{MF} {o}, {ar(aONE,4)}, {vr(Preg(buf,X,a),4)}, {o}', []
def softmax_ops(c, buf, src=None):
    kt, X = CHAINS[c]
    S = vS + 4*(c % 3) if src is None else src
    P = Preg(buf, X, kt >> 1) + 2*(kt & 1)
    ex = [f'v_exp_f32 {vr(S+r)}, {vr(S+r)}' for r in range(4)]
    cv = [f'v_cvt_pk_bf16_f32 {vr(P+k)}, {vr(S+2*k)}, {vr(S+2*k+1)}' for k in range(2)]
    return ex, cv

PD = OPT['pd']
WT = OPT['wt']
VMW = 8*(PD - 2) + (PD - 1)*WT
sTo = 100
vTo = 22
sWT = 28
def wo_touch():
    return [f'buffer_load_dword v0, {vr(vTo)}, {sr(sWT,4)}, {sr(sTo+1)} offen sc1', f's_add_u32 {sr(sTo)}, {sr(sTo)}, 262144',
            f's_cmp_ge_i32 {sr(sTo)}, 0', f's_cselect_b32 {sr(sWT+2)}, {4096*1152}, {sr(sWT+2)}', f's_cselect_b32 {sr(sTo+1)}, {sr(sTo)}, 0'] + \
           ([f's_cselect_b64 {sr(sWT,2)}, s[96:97], {sr(sWT,2)}'] if OPT['kw'] else [])
sDst = sOld
def slot_update():
    return [f's_add_u32 {sr(sSlot)}, {sr(sSlot)}, {SLOT}',
            f's_sub_u32 {sr(sT0)}, {sr(sSlot)}, {5*SLOT}',
            f's_min_u32 {sr(sSlot)}, {sr(sSlot)}, {sr(sT0)}']
def dst_update():
    if PD == 5:
        return [f's_add_u32 {sr(sT1)}, {sr(sSlot)}, {sr(sW4K)}']
    return [f's_add_u32 {sr(sT1)}, {sr(sSlot)}, {PD*SLOT}',
            f's_sub_u32 {sr(sT0)}, {sr(sT1)}, {5*SLOT}',
            f's_min_u32 {sr(sT1)}, {sr(sT1)}, {sr(sT0)}',
            f's_add_u32 {sr(sT1)}, {sr(sT1)}, {sr(sW4K)}']
def addr_update():
    return [f'v_add_u32 {vr(vKa)}, {sr(sSlot)}, {vr(vKb)}',
            f'v_add_u32 {vr(vVa)}, {sr(sSlot)}, {vr(vVb)}',
            f'v_add_u32 {vr(vVa+2)}, {sr(sSlot)}, {vr(vVb+1)}',
            f'v_xor_b32 {vr(vVa+1)}, 32, {vr(vVa)}',
            f'v_xor_b32 {vr(vVa+3)}, 32, {vr(vVa+2)}',
            f'v_add_u32 {vr(vKa+1)}, {sr(sSlot)}, {vr(vKb+1)}']

def wo_loads(st):
    w = [f's_add_u32 m0, {sr(sW4K)}, {RNG[st % 10]*16384}', f's_add_u32 {sr(sT2)}, {sr(sRW[st & 7])}, {(st & ~7)*36864}']
    for p in range(4):
        w.append(f'buffer_load_dwordx4 {vr(vWo[p])}, {sr(sX,4)}, {sr(sT2)} offen' + (f' offset:{p*1024}' if p else '') + f'{pol("pwo")} lds')
    return w
def vfrag(dt, a):
    return (aV + 8*dt if dt < 4 else aK + 8*(dt - 4)) + 4*a
def vread_all(dt, a, jj):
    return (f'ds_read_b64_tr_b16 {ar(vfrag(dt,a)+2*jj,2)}, {vr(vVa+2*a+(dt&1))} offset:{16384+jj*4096+(dt>>1)*256}', ('F', dt, a))

def build_stage(buf, last=False):
    s = Sched()
    for c in range(18):
        for i in range(4):
            s.add(*qk_mf(c, i))
        for j in range(4):
            s.add(*pv_mf(4*c + j, buf))
    for j in range(9):
        s.add(*sum_mf(j, buf))
    for c in range(18):
        ex, cv = softmax_ops(c, buf ^ 1)
        for r in range(4):
            s.put(8*c + 9 + 2*r, ex[r])
        s.put(8*c + 12, cv[0])
        s.put(8*c + 16, cv[1])
    BAR = OPT['BAR']
    assert s.load(BAR) == 0
    s.put(BAR, f's_waitcnt vmcnt({VMW})' if not last else f's_waitcnt vmcnt({WT + 4 + 20}) lgkmcnt(0)')
    s.put(BAR, 's_barrier')
    first = lambda dt: 8*((9*dt) >> 2) + 4 + ((9*dt) & 3)
    lastu = lambda dt: 8*((9*dt+8) >> 2) + 4 + ((9*dt+8) & 3)
    au = addr_update()
    if not last:
        s.put(0, f's_add_u32 m0, {sr(sT1)}, 16384')
    gk = {}
    gk[1] = s.seq([(kread(1, i), ('K', 1, i)) for i in range(4)], 0, 20)
    gv = {}
    gv[2] = s.seq([(vread(2, a, jj), ('V', 2, a)) for a in range(2) for jj in range(2)], 0, 20)
    gs_ = s.seq(dst_update() + slot_update() if not last else [f's_mov_b32 {sr(sSlot)}, {2*SLOT}'], 1, 30)
    for kt, lo in ((2, 37), (3, 77)):
        gk[kt] = s.seq([(kread(kt, i), ('K', kt & 1, i)) for i in range(4)], lo, lo + 24, 1)
    for dt in range(3, 8):
        lo = max(first(dt) - 44, lastu(dt - 4) + 1 if dt >= 4 else 0, 0)
        gv[dt] = s.seq([(vread(dt, a, jj), ('V', dt & 3, a)) for a in range(2) for jj in range(2)], lo, min(lo + 22, BAR - 6), 1)
    if not last:
        s.place(au[0], max(gs_, gk[1]) + 1, BAR - 1)
        s.place(au[5], gk[3] + 1, 150)
    ga = s.seq(au[1:3], gv[6] + 1, BAR - 1)
    gb = s.seq(au[3:5], max(gv[7], ga) + 1, BAR + 12)
    if last:
        g = 3
        for st in range(5):
            for x in wo_loads(st):
                g = s.place(x, g, BAR - 1)
                if x.startswith('buffer'):
                    g += 2
                elif 'm0' in x:
                    g += 1
        g = BAR + 1
        for st in range(5, NE):
            for x in wo_loads(st):
                g = s.place(x, g, 150)
                if x.startswith('buffer') or 'm0' in x:
                    g += 1
        left = []
        g = max(BAR, gb) + 1
        for dt, lo in ((0, lastu(4) + 1), (1, lastu(5) + 1), (4, 109), (2, lastu(6) + 1), (5, 109), (3, lastu(7) + 1), (6, 141), (7, 141)):
            for a in range(2):
                for jj in range(2):
                    x, tag = vread_all(dt, a, jj)
                    g = max(g, lo)
                    while g < len(s.mf) and s.load(g) >= 2:
                        g += 1
                    if g < len(s.mf):
                        s.put(g, x, tag)
                    else:
                        left.append((x, tag))
        s.left = left
        return s, BAR
    s.seq([(kread(0, i), ('K', 0, i)) for i in range(4)], BAR + 1, 140, 1)
    s.seq([(vread(0, a, jj), ('V', 0, a)) for a in range(2) for jj in range(2)], max(BAR + 1, lastu(4) + 1), 146, 1)
    s.seq([(vread(1, a, jj), ('V', 1, a)) for a in range(2) for jj in range(2)], max(gb + 1, lastu(5) + 1, 128), 152, 1)
    g = 12
    for j in range(4):
        g = s.place(dma_kv('V', j, sOff), g, g + 10) + 8
    s.place(f's_add_u32 {sr(sOff)}, {sr(sOff)}, 16384', g - 6, g + 12)
    for k in range(WT):
        wt_ = wo_touch()
        g = s.seq(wt_[:2], g, BAR - 2) + 1
        while True:
            nn = len(wt_) - 2
            free = [x for x in range(g, g + 10) for _ in range(2 - s.load(x))][:nn]
            span = range(free[0], free[-1] + 1) if len(free) == nn else None
            if span and not any(t.startswith('s_') and not t.startswith('s_wait') for x in span for t, _ in s.gaps[x]):
                break
            g += 1
        for x, t in zip(free, wt_[2:]):
            s.put(x, t)
        g = free[-1] + 12
    g = s.place(f's_mov_b32 m0, {sr(sT1)}', 64, BAR + 8) + 1
    g = max(g, BAR + 8)
    for j in range(4):
        g = s.place(dma_kv('K', j, sOff), g, min(g + 10, 152)) + 6
    assert s.load(150) == 0
    s.put(150, 's_waitcnt lgkmcnt(0)')
    return s, BAR

def code_prefetch(g, start, end, srd, vtmp, vdst):
    g(f's_getpc_b64 {sr(srd,2)}')
    g.label(f'Lpc_{start[:4]}')
    g(f's_mov_b32 {sr(srd+2)}, {end}-Lpc_{start[:4]}')
    g(f's_mov_b32 {sr(srd+3)}, 0x20000')
    g(f'v_lshlrev_b32 {vr(vtmp)}, 7, v0')
    g('s_bfe_u32 s7, s2, 0x10003')
    g('s_lshl_b32 s7, s7, 15')
    g(f'buffer_load_dword {vr(vdst)}, {vr(vtmp)}, {sr(srd,4)}, s7 offen')

def kernel1(g):
    g.raw(f'.globl {KN}\n.p2align 8\n.type {KN},@function')
    g.label(KN)
    g('s_cmp_ge_u32 s2, 256')
    g('s_cbranch_scc1 L1_done')
    stamp(g, 3)
    g('s_load_dwordx4 s[28:31], s[0:1], 0')
    g('s_load_dwordx4 s[32:35], s[0:1], 16')
    g('s_load_dwordx2 s[36:37], s[0:1], 56')
    g('s_load_dwordx4 s[96:99], s[0:1], 32')
    g('s_load_dwordx2 s[94:95], s[0:1], 48')
    t = lambda i: vr(vQ + i)
    g(f'v_lshrrev_b32 {t(0)}, 6, v0')
    g(f'v_and_b32 {t(1)}, 63, v0')
    g(f'v_readfirstlane_b32 {sr(sW)}, {t(0)}')
    if OPT['ipf']:
        code_prefetch(g, 'attn_kernel', 'L1_end', 24, 23, 22)
    if OPT['map'] == 0:
        g('s_and_b32 s3, s2, 7')
        g('s_lshr_b32 s4, s2, 3')
    else:
        g('s_and_b32 s3, s2, 1'); g('s_lshl_b32 s3, s3, 2'); g('s_bfe_u32 s5, s2, 0x20003'); g('s_add_u32 s3, s3, s5')
        g('s_bfe_u32 s4, s2, 0x20001'); g('s_lshl_b32 s4, s4, 3'); g('s_lshr_b32 s6, s2, 5'); g('s_add_u32 s4, s4, s6')
    for p in range(1, 9):
        g(f's_mov_b32 {sr(sXC[p])}, {p*9216 - (p&3)*1024}')
    for p in range(1, 4):
        g(f's_mov_b32 {sr(sWC[p])}, {p*31744}')
    g(f's_mul_i32 {sr(sW9K)}, {sr(sW)}, 9216')
    g(f's_lshl_b32 {sr(sW1K)}, {sr(sW)}, 10')
    g(f's_lshl_b32 {sr(sW4K)}, {sr(sW)}, 12')
    g(f'v_and_b32 {t(2)}, 3, {t(1)}')
    g(f'v_bfe_u32 {t(3)}, {t(1)}, 2, 2')
    g(f'v_lshrrev_b32 {t(4)}, 4, {t(1)}')
    g(f'v_lshlrev_b32 {t(8)}, 6, {t(4)}')
    g(f'v_lshl_add_u32 {t(8)}, {t(2)}, 4, {t(8)}')
    g(f'v_lshl_add_u32 {t(9)}, {t(3)}, 13, {t(8)}')
    g(f'v_lshl_add_u32 {vr(vW0)}, {t(0)}, 17, {t(9)}')
    g(f'v_xor_b32 {vr(vW1)}, 48, {vr(vW0)}')
    g(f'v_bfe_u32 {t(7)}, {t(1)}, 2, 3')
    g(f'v_mul_u32_u24 {t(9)}, 72, {t(0)}')
    g(f'v_add_u32 {t(9)}, {t(9)}, {t(7)}')
    g(f'v_mul_u32_u24 {t(9)}, 1152, {t(9)}')
    g(f'v_and_b32 {t(6)}, 1, {t(0)}')
    g(f'v_lshlrev_b32 {t(10)}, 1, {t(6)}')
    g(f'v_xor_b32 {t(10)}, {t(10)}, {t(2)}')
    g(f'v_lshl_add_u32 {t(9)}, {t(10)}, 4, {t(9)}')
    g(f'v_lshrrev_b32 {t(5)}, 5, {t(1)}')
    g(f'v_lshl_add_u32 {vr(vXvo)}, {t(5)}, 6, {t(9)}')
    g(f'v_xor_b32 {vr(vXvo1)}, 32, {vr(vXvo)}')
    g('s_mul_i32 s6, s3, 331776')
    g('s_lshl_b32 s7, s4, 8')
    g(f's_mov_b32 {sr(sX+2)}, {331776-1024}')
    g(f's_mov_b32 {sr(sX+3)}, 0x20000')
    g(f's_mov_b32 {sr(sWQ+2)}, {63*8192+256}')
    g(f's_mov_b32 {sr(sWQ+3)}, 0x20000')
    g('s_waitcnt lgkmcnt(0)')
    stamp(g, 3)
    g(f's_add_u32 {sr(sX)}, s28, s6')
    g(f's_addc_u32 {sr(sX+1)}, s29, 0')
    g(f's_add_u32 {sr(sWQ)}, s34, s7')
    g(f's_addc_u32 {sr(sWQ+1)}, s35, 0')
    if OPT['dbg'] in (3, 4):
        g('s_mov_b32 s20, s94'); g('s_mov_b32 s21, s95'); g('s_mov_b32 s22, 256'); g('s_mov_b32 s23, 0x20000')
        g(f's_not_b32 s5, {sr(sRT)}'); g('v_mov_b32 v21, s5')
        g(f's_cmp_lg_u32 {sr(sW)}, 0'); g('s_cselect_b32 s22, 0, s22')
        g('s_mov_b64 exec, 1')
        g('buffer_atomic_umax v21, off, s[20:23], 0 offset:128 sc1')
        g('s_mov_b64 exec, -1')
    g.many(qchunk_dma(0))
    stamp(g, 2)
    weave_from = len(g.L)
    g('s_lshl_b32 s5, s3, 5')
    g('s_add_u32 s5, s5, s4')
    g('s_lshl_b32 s6, s5, 19')
    g(f's_add_u32 {sr(sK)}, s30, s6')
    g(f's_addc_u32 {sr(sK+1)}, s31, 0')
    g(f's_mov_b32 {sr(sK+2)}, 524288')
    g(f's_mov_b32 {sr(sK+3)}, 0x20000')
    g(f's_add_u32 {sr(sV)}, s32, s6')
    g(f's_addc_u32 {sr(sV+1)}, s33, 0')
    g(f's_sub_u32 {sr(sV)}, {sr(sV)}, 16384')
    g(f's_subb_u32 {sr(sV+1)}, {sr(sV+1)}, 0')
    g(f's_mov_b32 {sr(sV+2)}, {524288+16384}')
    g(f's_mov_b32 {sr(sV+3)}, 0x20000')
    g(f's_mul_i32 s5, s3, {18*131072}')
    g('s_lshl_b32 s6, s4, 12')
    g('s_add_u32 s5, s5, s6')
    g(f's_add_u32 {sr(sO)}, s36, s5')
    g(f's_addc_u32 {sr(sO+1)}, s37, 0')
    g(f's_mov_b32 {sr(sO+2)}, {17*131072+4096}')
    g(f's_mov_b32 {sr(sO+3)}, 0x20000')
    g(f'v_lshlrev_b32 {vr(vL16)}, 4, {t(1)}')
    g(f'v_lshl_add_u32 {t(9)}, {t(3)}, 8, {t(8)}')
    g(f'v_lshl_add_u32 {vr(vKV0)}, {t(0)}, 12, {t(9)}')
    g(f'v_xor_b32 {vr(vKV1)}, 48, {vr(vKV0)}')
    g(f'v_and_b32 {t(11)}, 1, {t(4)}')
    g(f'v_lshl_or_b32 {t(12)}, {t(11)}, 1, {t(5)}')
    g(f'v_and_b32 {t(13)}, 1, {t(3)}')
    g(f'v_mul_u32_u24 {t(13)}, 3, {t(13)}')
    g(f'v_xor_b32 {t(12)}, {t(12)}, {t(13)}')
    g(f'v_lshlrev_b32 {t(12)}, 4, {t(12)}')
    g(f'v_lshl_add_u32 {t(12)}, {t(2)}, 6, {t(12)}')
    g(f'v_lshl_add_u32 {t(12)}, {t(3)}, 10, {t(12)}')
    g(f'v_lshl_add_u32 {vr(vKb)}, {t(6)}, 13, {t(12)}')
    g(f'v_xor_b32 {vr(vKb+1)}, 8192, {vr(vKb)}')
    g(f'v_mul_u32_u24 {t(13)}, 3, {t(11)}')
    g(f'v_lshrrev_b32 {t(14)}, 1, {t(2)}')
    g(f'v_xor_b32 {t(13)}, {t(13)}, {t(14)}')
    g(f'v_lshlrev_b32 {t(13)}, 4, {t(13)}')
    g(f'v_and_b32 {t(14)}, 1, {t(2)}')
    g(f'v_lshl_add_u32 {t(13)}, {t(14)}, 3, {t(13)}')
    g(f'v_lshl_add_u32 {t(13)}, {t(3)}, 6, {t(13)}')
    g(f'v_lshl_add_u32 {t(14)}, {t(4)}, 10, {t(13)}')
    g(f'v_lshl_add_u32 {vr(vVb)}, {t(6)}, 13, {t(14)}')
    g(f'v_xor_b32 {vr(vVb+1)}, 8192, {vr(vVb)}')
    g(f'v_lshl_add_u32 {t(14)}, {t(4)}, 11, {t(13)}')
    g(f'v_lshl_add_u32 {t(14)}, {t(6)}, 9, {t(14)}')
    g(f'v_add_u32 {vr(vWa)}, {XB}, {t(14)}')
    g(f'v_xor_b32 {vr(vWa+1)}, 32, {vr(vWa)}')
    g(f'v_xor_b32 {vr(vWa+2)}, 512, {vr(vWa)}')
    g(f'v_xor_b32 {vr(vWa+3)}, 512, {vr(vWa+1)}')
    g(f'v_bfe_u32 {t(14)}, {t(1)}, 3, 1')
    g(f'v_lshlrev_b32 {t(15)}, 1, {t(14)}')
    g(f'v_xor_b32 {t(15)}, {t(15)}, {t(4)}')
    g(f'v_lshlrev_b32 {t(15)}, 4, {t(15)}')
    g(f'v_lshl_add_u32 {t(15)}, {t(14)}, 10, {t(15)}')
    g(f'v_and_b32 {t(14)}, 7, {t(1)}')
    g(f'v_lshl_add_u32 {t(15)}, {t(14)}, 6, {t(15)}')
    g(f'v_lshl_add_u32 {vr(vXa)}, {t(0)}, 13, {t(15)}')
    g(f'v_lshrrev_b32 {t(14)}, 1, {t(0)}')
    g(f'v_lshl_add_u32 {t(15)}, {t(14)}, 11, {t(15)}')
    g(f'v_add_u32 {vr(vXc)}, 32768, {t(15)}')
    cs = f2u(math.log2(math.e) / math.sqrt(128.0))
    g(f's_mov_b32 {sr(sC)}, {cs:#x}')
    g(f's_mov_b32 {sr(sC+1)}, {cs:#x}')
    g(f's_mov_b32 {sr(sPass)}, 0')
    g(f's_lshl_b32 {sr(sB4)}, s3, 2')
    g(f's_mov_b32 {sr(sThr)}, {f2u(-1.0 if OPT["force_fallback"] else 2.0**24):#x}')
    g(f'v_cmp_eq_u32 vcc, 0, {t(2)}')
    g(f'v_mov_b32 {t(14)}, 0x3f803f80')
    g('s_nop 0')
    g(f'v_cndmask_b32 {t(14)}, 0, {t(14)}, vcc')
    for r in range(4):
        g(f'v_accvgpr_write_b32 {ar(aONE+r)}, {t(14)}')
    for r in range(180):
        g(f'v_accvgpr_write_b32 {ar(aO+r)}, 0')
    g.c('---- Q projection: Q^T = wq_h^T x_b^T, 9 chunks of 64, 3-deep LDS ring')
    def xread(j, X, i):
        a = vXa if X < 4 else vXc
        off = i*512 + (X*2048 if X < 4 else 0)
        return (f'ds_read_b128 {vr(vQ+40*(j&1)+8*X+4*i,4)}, {vr(a)} offset:{off}', ('X', j & 1, X, i))
    def wread(tau, i, jj):
        return (f'ds_read_b64_tr_b16 {ar(aV+8*(tau&3)+4*i+2*jj,2)}, {vr(vWa+2*(tau>>2)+(tau&1))} offset:{i*8192+jj*1024+((tau>>1)&1)*256}', ('W', tau & 3, i))
    wr = lambda tau: [wread(tau, i, jj) for i in range(2) for jj in range(2)]
    xr = lambda j, X: [xread(j, X, i) for i in range(2)]
    s = Sched(cap=OPT['qcap'])
    gs = {}
    def acc(X, tau):
        return vACC + 32*X + 4*tau
    for j in range(9):
        for tau in range(8):
            gs[(j, tau)] = len(s.mf)
            for X in range(5 if tau < 4 else 4):
                for i in range(2):
                    d = vr(acc(X, tau), 4)
                    s.add(f'{MF} {d}, {ar(aV+8*(tau&3)+4*i,4)}, {vr(vQ+40*(j&1)+8*X+4*i,4)}, {d if (j or i) else 0}',
                          [('W', tau & 3, i), ('X', j & 1, X, i)])
    def weave(dma, lo, hi, sp):
        gq = lo
        k = 0
        while k < len(dma):
            x = dma[k]
            if x == 's_nop 0':
                gq += 1
            elif x.startswith('s_add_u32') and k + 1 < len(dma) and dma[k+1].startswith('s_addc'):
                while s.load(gq) > 0 and gq < hi:
                    gq += 1
                s.put(gq, x); s.put(gq, dma[k+1]); k += 1
            else:
                gq = s.place(x, gq, hi)
                if x.startswith('buffer'):
                    gq += sp if not (k + 1 < len(dma) and dma[k+1].startswith('s_')) else max(sp - 2, 1)
            k += 1
        return gq
    NT_ = 2 if OPT['touch'] else 0
    dmas = []
    pre = xr(0, 0) + wr(0) + xr(0, 1) + xr(0, 2) + xr(0, 3) + xr(0, 4) + wr(1) + wr(2)
    for j in range(9):
        b0 = gs[(j, 0)]
        for tau in range(3, 8):
            lo = gs[(j, tau - 3)] + 1
            s.seq(wr(tau), lo, lo + 7)
        bar = b0 + 52
        vm = (13 + (NT_ if j == 0 else 0)) if j + 1 <= 7 else (4 if j + 1 == 8 else None)
        s.put(bar, 's_waitcnt ' + (f'vmcnt({vm}) ' if vm is not None else '') + 'lgkmcnt(0)')
        s.put(bar, 's_barrier')
        if j < 8:
            dlt = QBUF if ((j + 1) % 3) else (-2*QBUF) & 0xffffffff
            s.seq([f'v_add_u32 {vr(rg)}, {dlt:#x}, {vr(rg)}' for rg in (vXa, vWa, vWa+1, vXc, vWa+2, vWa+3)], bar - 5, bar - 1)
            gq = s.seq(xr(j+1, 0) + wr(0) + xr(j+1, 1) + xr(j+1, 2) + xr(j+1, 3) + xr(j+1, 4), bar + 1, bar + 12)
            gq = s.seq(wr(1), max(gq, gs[(j, 6)] + 1), b0 + 71)
            s.seq(wr(2), max(gq, gs[(j, 7)] + 1), b0 + 71)
        if j + 3 <= 8:
            dma = qchunk_dma(j + 3)
        elif j == 6:
            dma = pair_const(0)
        elif j == 7:
            dma = pair_const(1)
        else:
            dma = sum((pair_const(u) for u in range(2, PD)), [])
        if j < 8:
            dmas.append((dma, bar + 1, bar + 70, OPT['qsp'] if j < 6 else 7))
        else:
            lastdma = dma
    body = g.L[weave_from:]
    first_acc = next(k for k, x in enumerate(body) if 'v_accvgpr_write_b32 a0,' in x)
    head, accw = body[:first_acc], body[first_acc:]
    del g.L[weave_from:]
    g.L += head
    d1 = qchunk_dma(1)
    for k, x in enumerate(accw):
        g.L.append(x)
        if k % 7 == 6 and d1:
            g(d1.pop(0))
    g.many(d1)
    if OPT['touch']:
        g.c('L2 warm-up: one touch per 128-byte line of this workgroup share of the later x / wq chunks')
        g(f's_sub_u32 s28, {sr(sX)}, 256'); g(f's_subb_u32 s29, {sr(sX+1)}, 0'); g('s_mov_b32 s30, 331776'); g('s_mov_b32 s31, 0x20000')
        g(f's_mov_b32 s32, {sr(sWQ)}'); g(f's_mov_b32 s33, {sr(sWQ+1)}'); g(f's_mov_b32 s34, {447*8192+256}'); g('s_mov_b32 s35, 0x20000')
        g('v_mul_u32_u24 v18, 1821, v0')
        g('v_lshrrev_b32 v18, 16, v18')
        g('v_mul_u32_u24 v19, 36, v18')
        g('v_sub_u32 v19, v0, v19')
        g('v_mul_u32_u24 v19, 1152, v19')
        g('v_lshl_add_u32 v19, v18, 7, v19')
        g('s_lshr_b32 s5, s2, 5'); g(f's_mul_i32 s5, s5, {36*1152}'); g('s_add_u32 s5, s5, 256')
        g('v_lshrrev_b32 v18, 1, v0')
        g('v_lshlrev_b32 v18, 15, v18')
        g('v_and_b32 v20, 1, v0')
        g('v_lshl_add_u32 v18, v20, 7, v18')
        g('s_bfe_u32 s6, s2, 0x20003'); g('s_lshl_b32 s6, s6, 13')
        g('buffer_load_dword v20, v19, s[28:31], s5 offen')
        g('buffer_load_dword v23, v18, s[32:35], s6 offen')
    assert weave(qchunk_dma(2), 0, 50, 3) <= 51
    for d_, lo_, hi_, sp_ in dmas:
        e_ = weave(d_, lo_, hi_, sp_)
        assert e_ <= hi_ + 8, (e_, hi_)
    pc = [['s_lshr_b32 s4, s2, 3'], [f's_mul_i32 {sr(sQG)}, s4, 57'], [f's_lshr_b32 {sr(sQG)}, {sr(sQG)}, 9'],
          [f's_mul_i32 s6, {sr(sQG)}, 9'], [f's_sub_u32 {sr(sNG)}, s4, s6'],
          [f's_mul_i32 {sr(sRot)}, {sr(sQG)}, 3'], [f's_add_u32 {sr(sRot)}, {sr(sRot)}, {sr(sNG)}'],
          [f's_mul_i32 {sr(sRot)}, {sr(sRot)}, {(8*256)//9 + 1}'], [f's_lshr_b32 {sr(sRot)}, {sr(sRot)}, 8'],
          [f's_lshl_b32 s5, {sr(sNG)}, 7'],
          [f's_add_u32 {sr(sX)}, s96, s5', f's_addc_u32 {sr(sX+1)}, s97, 0'],
          [f's_sub_u32 {sr(sX+2)}, {4096*1152}, s5'],
          [f's_cmp_ge_u32 {sr(sQG)}, 3', f's_cselect_b32 {sr(sX+2)}, 0, {sr(sX+2)}']]
    for k in range(8):
        pc += [[f's_add_u32 s4, {sr(sRot)}, {k}'], ['s_and_b32 s4, s4, 7'], [f's_mul_i32 {sr(sRW[k])}, s4, 36864']]
    pc += [['s_and_b32 s3, s2, 7'], ['s_mul_i32 s7, s3, 3'], [f's_add_u32 s7, s7, {sr(sQG)}'], [f's_mul_i32 s4, s7, {6*131072}'],
           [f's_add_u32 {sr(sWQ)}, s36, s4', f's_addc_u32 {sr(sWQ+1)}, s37, 0'], [f's_mov_b32 {sr(sWQ+2)}, {6*131072}'],
           [f's_mul_i32 s4, s7, {96*1152}'], ['s_add_u32 s4, s4, s5'],
           ['s_add_u32 s98, s98, s4', 's_addc_u32 s99, s99, 0'], [f's_sub_u32 {sr(sW9K)}, {2304*1152}, s4'],
           ['s_lshl_b32 s3, s3, 2'],
           [f's_mov_b32 {sr(sDB)}, s94'], [f's_mov_b32 {sr(sDB+1)}, s95'], [f's_mov_b32 {sr(sDB+3)}, 0x20000'],
           [f's_cmp_lg_u32 {sr(sW)}, 0', f's_cselect_b32 {sr(sDB+2)}, 0, 160']]
    pv_ = [f'v_bfe_u32 v18, {vr(vL16)}, 6, 3', f'v_add_u32 v20, {sr(sW1K)}, v18', 'v_mul_u32_u24 v20, 1152, v20',
           f'v_lshrrev_b32 v19, 9, {vr(vL16)}', 'v_lshl_add_u32 v20, v19, 6, v20',
           'v_lshlrev_b32 v18, 6, v18', 'v_lshl_add_u32 v18, v19, 10, v18',
           f'v_bfe_u32 v19, {vr(vL16)}, 8, 1', 'v_lshlrev_b32 v19, 5, v19', 'v_add_u32 v18, v18, v19',
           f'v_and_b32 v17, 48, {vr(vL16)}', 'v_xor_b32 v19, v19, v17', f'v_add_u32 {vr(vWo[0])}, v19, v20']
    pv_ += [f'v_add_u32 {vr(vWo[p])}, {8192*p}, {vr(vWo[0])}' for p in range(1, 4)]
    pv_ += ['v_lshrrev_b32 v17, 1, v17', 'v_add_u32 v17, v17, v18', f'v_add_u32 {vr(vRb)}, {sr(sW4K)}, v17']
    gq = gs[(7, 0)]
    for grp in pc:
        while s.load(gq) + len(grp) > 2:
            gq += 1
        for x in grp:
            s.put(gq, x)
    assert gq < gs[(8, 0)] + 50
    s.seq(pv_, gs[(7, 0)], gs[(8, 0)] + 60)
    stamp(g, 2)
    g(f's_waitcnt vmcnt({13 + NT_})')
    g('s_barrier')
    stamp(g, 3)
    if OPT['stamp'] & 2:
        for j in (1, 2, 3, 4, 6, 7, 8):
            s.put(gs[(j, 0)], f's_memtime {sr(sST + 2*nstamp[0], 2)}')
            nstamp[0] += 1
    g.many([x for x, _ in pre])
    gq = gs[(8, 0)] + 53
    while lastdma and gq < len(s.mf):
        x = lastdma.pop(0)
        s.put(gq, x)
        if x.startswith('buffer'):
            gq += 5
    s.resolve(pending=[(tag, -8) for _, tag in pre], look=5, mind=4)
    print('qproj', s.loads()[144:300], file=sys.stderr)
    s.emit(g)
    stamp(g, 7)
    g.c('---- scale by log2(e)/sqrt(128), round to bf16, exchange the shared tile')
    def conv(srcA, dst):
        for k in range(4):
            g(f'v_pk_mul_f32 {vr(srcA+2*k,2)}, {vr(srcA+2*k,2)}, {sr(sC,2)}')
        for k in range(4):
            g(f'v_cvt_pk_bf16_f32 {vr(dst+k)}, {vr(srcA+2*k)}, {vr(srcA+2*k+1)}')
    def swaps(dst):
        g(f'v_permlane16_swap_b32 {vr(dst)}, {vr(dst+2)}')
        g(f'v_permlane16_swap_b32 {vr(dst+1)}, {vr(dst+3)}')
    conv(acc(4, 0), vQ + 64)
    conv(acc(4, 2), vQ + 68)
    g(f's_lshl_b32 {sr(sT2)}, {sr(sW)}, 11')
    g(f's_add_u32 {sr(sT2)}, {sr(sT2)}, {EXCH}')
    g(f'v_add_u32 {vr(vXa)}, {sr(sT2)}, {vr(vL16)}')
    swaps(vQ + 64); swaps(vQ + 68)
    g(f's_and_b32 {sr(sT2)}, {sr(sT2)}, {~4095 & 0xffffffff:#x}')
    g(f'v_add_u32 {vr(18)}, {sr(sT2)}, {vr(vL16)}')
    g(f'ds_write_b128 {vr(vXa)}, {vr(vQ+64,4)}')
    g(f'ds_write_b128 {vr(vXa)}, {vr(vQ+68,4)} offset:1024')
    stamp(g, 4)
    g(f's_bitcmp1_b32 {sr(sW)}, 0')
    g('s_cbranch_scc1 L1_conv_odd')
    for p in range(2):
        prev = None
        ld = list(lastdma)
        for X in range(4):
            for il in range(4):
                dst = vQ + 16*X + 4*(il ^ (2*p))
                if il % (4 if PD == 3 else 1) == 0:
                    while ld:
                        x = ld.pop(0); g(x)
                        if x.startswith('buffer'):
                            break
                conv(acc(X, 2*il), dst)
                if prev is not None:
                    swaps(prev)
                prev = dst
        g('s_nop 1')
        swaps(prev)
        g.many(ld)
        if p == 0:
            g('s_branch L1_conv_done')
            g.label('L1_conv_odd')
    g.label('L1_conv_done')
    g(f's_mov_b32 {sr(sSlot)}, 0')
    g.many(addr_update())
    stamp(g, 4)
    g(f's_waitcnt vmcnt({8*(PD-1)}) lgkmcnt(0)')
    stamp(g, 4)
    g('s_barrier')
    stamp(g, 5)
    for i in range(4):
        g(kread(0, i))
    for i in range(4):
        g(f'ds_read_b128 {vr(vQ+64+4*i,4)}, {vr(18)} offset:{i*1024}')
    g.c('---- stand-in for the row max: exact max over the first 16 keys this wave sees (checked at the end)')
    vR = vT
    vM = vT + 20
    g('s_waitcnt lgkmcnt(4)')
    for c in range(5):
        if c == 4:
            g('s_waitcnt lgkmcnt(0)')
        for i in range(4):
            g(qk_mf(c, i, '0', vR + 4*c)[0])
    g('s_nop 3')
    for X in range(5):
        g(f'v_max3_f32 {vr(vM+X)}, {vr(vR+4*X)}, {vr(vR+4*X+1)}, {vr(vR+4*X+2)}')
    for X in range(5):
        g(f'v_max_f32 {vr(vM+X)}, {vr(vM+X)}, {vr(vR+4*X+3)}')
    def setneg():
        for sw in ('v_permlane32_swap_b32', 'v_permlane16_swap_b32'):
            for X in range(5):
                g(f'v_mov_b32 {vr(vM+5+X)}, {vr(vM+X)}')
            g('s_nop 0')
            for X in range(5):
                g(f'{sw} {vr(vM+5+X)}, {vr(vM+X)}')
            g('s_nop 0')
            for X in range(5):
                g(f'v_max_f32 {vr(vM+X)}, {vr(vM+X)}, {vr(vM+5+X)}')
        for X in range(5):
            for r in range(4):
                g(f'v_sub_f32 {vr(vNEG+4*X+r)}, 0, {vr(vM+X)}')
    setneg()
    stamp(g, 4)
    g.label('L1_main')
    g.c('entry: pair 0 visible, raw scores of key tile 0 in vR, pairs 1..4 issued, O = l = 0, -m set')
    for i in range(4):
        g(kread(1, i))
    for X in range(5):
        for r in range(4):
            g(f'v_add_f32 {vr(vR+4*X+r)}, {vr(vR+4*X+r)}, {vr(vNEG+4*X)}')
    g(f's_mov_b32 {sr(sOff)}, {PD*16384}')
    if WT:
        g(f's_mov_b32 {sr(sTo)}, {(-(30*WT - OPT["wtn"])*262144) & 0xffffffff:#x}')
        g(f's_mov_b32 {sr(sWT)}, s96'); g(f's_mov_b32 {sr(sWT+1)}, s97'); g(f's_mov_b32 {sr(sWT+2)}, 0'); g(f's_mov_b32 {sr(sWT+3)}, 0x20000'); g(f's_mov_b32 {sr(sTo+1)}, 0')
        g(f's_mul_i32 s4, {sr(sW)}, 1179648'); g('s_lshr_b32 s5, s2, 3'); g('s_lshl_b32 s5, s5, 13'); g('s_add_u32 s4, s4, s5'); g(f's_add_u32 s4, s4, {OPT["wto"]*1152}')
        if OPT['kw']:
            g(f's_getpc_b64 {sr(sWT,2)}')
            g.label('Lpc_kw')
            g('s_lshr_b32 s5, s2, 3'); g('s_lshl_b32 s5, s5, 2'); g(f's_add_u32 s5, s5, {sr(sW)}'); g('s_lshl_b32 s5, s5, 8')
            g('s_min_u32 s5, s5, L1_done-L1_last-256')
            g('s_add_u32 s5, s5, L1_last-Lpc_kw')
            g(f's_add_u32 {sr(sWT)}, {sr(sWT)}, s5'); g(f's_addc_u32 {sr(sWT+1)}, {sr(sWT+1)}, 0')
            g(f's_sub_u32 {sr(sWT)}, {sr(sWT)}, s4'); g(f's_subb_u32 {sr(sWT+1)}, {sr(sWT+1)}, 0')
            g(f's_add_u32 {sr(sWT+2)}, s4, 256')
        g(f'v_lshlrev_b32 {vr(vTo)}, 3, {vr(vL16)}')
        g(f'v_add_u32 {vr(vTo)}, s4, {vr(vTo)}')
    g(f's_mov_b32 {sr(sCnt)}, 0')
    squad = lambda c: vR + 4*c if c < 5 else (vP + 40 + 4*(c - 5) if c < 15 else vS + 4*(c - 15))
    s = Sched(cap=3)
    for c in range(5, 18):
        for i in range(4):
            s.add(*qk_mf(c, i, None, squad(c)))
    s.seq([(kread(2, i), ('K', 0, i)) for i in range(4)], 0, 6)
    s.seq([(kread(3, i), ('K', 1, i)) for i in range(4)], 21, 28)
    BARP = 38
    s.seq(dst_update() + slot_update(), 8, 24)
    s.put(BARP, f's_waitcnt vmcnt({8*(PD-2)}) lgkmcnt(0)')
    s.put(BARP, 's_barrier')
    s.seq(addr_update(), BARP - 6, BARP - 1)
    s.seq([(kread(0, i), ('K', 0, i)) for i in range(4)] +
          [(vread(dt, a, jj), ('V', dt, a)) for dt in range(2) for a in range(2) for jj in range(2)], BARP + 1, 51)
    flat = []
    prev = None
    for c in range(18):
        ex, cv = softmax_ops(c, 0, squad(c))
        lo = 0 if c < 5 else 4*(c - 5) + 9
        flat += [(lo, ex[0])] + ([(lo, prev)] if prev else []) + [(lo, ex[1]), (lo, ex[2]), (lo, cv[0]), (lo, ex[3])]
        prev = cv[1]
    tailops = []
    gq = 0
    nm = len(s.mf)
    for lo, x in flat:
        gq = max(gq, lo)
        while gq < nm and s.load(gq) + s.cost(x) > 4:
            gq += 1
        if gq >= nm:
            tailops.append(x)
        else:
            s.put(gq, x)
    tailops += ['s_nop 0', prev]
    stA, BA = build_stage(0)
    stB, BB = build_stage(1)
    if True:
        assert PD == 3
        for k in range(WT):
            s.put(BARP + 1, wo_touch()[0])
        gq = s.place(f's_mov_b32 m0, {sr(sT1)}', BARP + 1, 51, cap=5) + 1
        for j in range(4):
            gq = s.place(dma_kv('K', j, sOff), gq, 51, cap=5) + 1
    pend = s.resolve(pending=[(('K', 1, i), -12) for i in range(4)], look=5, mind=4)
    s.emit(g)
    g.many(tailops)
    g('s_waitcnt lgkmcnt(0)')
    import copy
    carry = []
    for it in range(2):
        a, b = copy.deepcopy(stA), copy.deepcopy(stB)
        c1 = a.resolve(pending=carry)
        carry2 = b.resolve(pending=c1)
        if it == 1:
            assert carry2 == carry, (carry, carry2)
        carry = carry2
    print('stageA', a.loads(), file=sys.stderr)
    print('stageB', b.loads(), file=sys.stderr)
    b.place(f's_add_u32 {sr(sCnt)}, {sr(sCnt)}, 1', 112, 148)
    b.put(150, f's_cmp_lt_u32 {sr(sCnt)}, 15')
    assert not any(x[0].startswith('s_') and 'cmp' not in x[0] and 'wait' not in x[0] for x in b.gaps[150] + b.gaps[151] + b.gaps[152])
    stamp(g, 5)
    g.raw('.p2align 6')
    g.label('L1_loop')
    a.emit(g)
    b.emit(g)
    g('s_cbranch_scc1 L1_loop')
    g.label('L1_last')
    g.c('---- last stage: its free load slots bring in the first wo steps')
    z, _ = build_stage(0, last=True)
    c1 = z.resolve(pending=carry)
    print('stageZ', z.loads(), len(z.left), file=sys.stderr)
    z.emit(g)
    stamp(g, 13)
    g.c('---- tail: PV of the last 64 keys, tile by tile, woven with normalisation and the O stores')
    s = Sched(cap=3)
    done = {}
    def addpv(X, dts):
        for dt in dts:
            for a_ in range(2 if X < 4 else 1):
                o = ar(aO + 32*X + 4*dt, 4)
                done[(X, dt)] = s.add(f'{MF} {o}, {ar(vfrag(dt,a_),4)}, {vr(Preg(1,X,a_),4)}, {o}', [('F', dt, a_)])
    def addsum(js):
        for j in js:
            done[('l', SUMS[j][0])] = s.add(*sum_mf(j, 1))
    addsum((0, 1)); addpv(0, (0, 1)); addsum(range(2, 9)); addpv(0, range(2, 8)); addpv(4, range(8))
    for X in (1, 2, 3):
        addpv(X, range(8))
    gl = s.seq(z.left, 0, 8) if z.left else 0
    gw = 0
    sO2, sOUT = sWQ, sK
    vRa = 11
    vl = vT + 32
    LAT = 4
    seq = [('S', [f's_lshl_b32 s4, {sr(sW)}, 19', f's_add_u32 s5, s4, {131072}']),
           ('S', [f's_add_u32 s6, s4, {2*131072}', f's_add_u32 s7, s4, {3*131072}']),
           (done[('l', 0)] + LAT, f'v_accvgpr_read_b32 {vr(vl)}, {ar(aL)}'),
           (0, f'v_cmp_nle_f32_e64 vcc, {vr(vl)}, {sr(sThr)}'), (0, f'v_rcp_f32 {vr(vl)}, {vr(vl)}')]
    vA = vQ
    wr_half = lambda h: [f'ds_write_b128 {vr(19)}, {ar(aO+128+16*h+4*k,4)} offset:{k*1024}' for k in range(4)]
    mid = {0: [(done[('l', X)] + LAT, f'v_accvgpr_read_b32 {vr(vl+X)}, {ar(aL+4*X)}') for X in range(1, 5)] +
              [(0, f'v_cmp_nle_f32_e64 {d}, {vr(vl+1+X)}, {sr(sThr)}') for X, d in enumerate(('s[40:41]', 's[100:101]', 's[28:29]', 's[30:31]'))] +
              [(0, f'v_rcp_f32 {vr(vl+X)}, {vr(vl+X)}') for X in range(1, 4)] +
              [('S', ['s_or_b64 s[40:41], s[40:41], vcc', 's_or_b64 s[40:41], s[40:41], s[100:101]', 's_or_b64 s[28:29], s[28:29], s[30:31]']),
               ('S', ['s_or_b64 s[40:41], s[40:41], s[28:29]', 's_cselect_b32 s28, 1, 0']),
               (0, 'v_mov_b32 v18, s28')],
           1: [(0, f'v_add_u32 {vr(19)}, {sr(sW4K)}, {vr(vL16)}'), (0, f'v_add_u32 {vr(19)}, {SLOT}, {vr(19)}'),
               (0, f'v_lshrrev_b32 {vr(20)}, 2, {vr(vL16)}'), (0, f'v_add_u32 {vr(22)}, {sr(sW4K)}, {vr(20)}'),
               ('S', [f'ds_write_b32 {vr(22)}, {vr(vl+4)}', f'ds_write_b32 {vr(22)}, {vr(vNEG+16)} offset:256', f'ds_write_b32 {vr(22)}, v18 offset:512'])],
           2: [(gl + 1, f'v_mov_b32 {vr(vRa)}, {vr(vRb)}'), (0, f'v_xor_b32 {vr(vRa+1)}, 32, {vr(vRb)}')] +
              [(0, f'v_add_u32 {vr(vRa+2*k+e)}, {65536*k}, {vr(vRa+e)}') for k in (1, 2) for e in range(2)],
           3: [(done[(4, 7)] + LAT, f'v_xor_b32 {vr(22)}, 4096, {vr(22)}'),
               ('S', [f's_bitcmp1_b32 {sr(sW)}, 0', 's_cbranch_scc1 L1_wr_odd'] + wr_half(1) + ['s_branch L1_wr_done', 'L1_wr_odd:'] + wr_half(0) + ['L1_wr_done:']),
               (0, f'v_xor_b32 {vr(19)}, 4096, {vr(19)}')],
           6: [('S', ['s_waitcnt lgkmcnt(0)', 's_barrier']),
               ('S', [f'ds_read_b32 {vr(vS+u)}, {vr(20)} offset:{u*4096+512}' for u in range(4)]),
               ('S', [f'ds_read_b32 {vr(vS+4)}, {vr(22)}', f'ds_read_b32 {vr(vS+5)}, {vr(22)} offset:256'])],
           8: [('S', ['s_waitcnt lgkmcnt(0)']),
               (0, f'v_or_b32 {vr(vS)}, {vr(vS)}, {vr(vS+1)}'), (0, f'v_or3_b32 {vr(vS)}, {vr(vS)}, {vr(vS+2)}, {vr(vS+3)}'),
               (0, f'v_min_f32 {vr(vS+6)}, {vr(vS+5)}, {vr(vNEG+16)}'),
               (0, f'v_readfirstlane_b32 {sr(sT0)}, {vr(vS)}'),
               (0, f'v_sub_f32 {vr(vS+8)}, {vr(vS+6)}, {vr(vNEG+16)}'), (0, f'v_sub_f32 {vr(vS+10)}, {vr(vS+6)}, {vr(vS+5)}'),
               ('S', [f's_andn2_b32 {sr(sT0)}, {sr(sT0)}, {sr(sPass)}', 's_cbranch_scc1 L1_fallback']),
               (0, f'v_exp_f32 {vr(vS+8)}, {vr(vS+8)}'), (0, f'v_exp_f32 {vr(vS+10)}, {vr(vS+10)}'),
               ('S', [f'ds_read_b128 {vr(vA+16+4*j,4)}, {vr(19)} offset:{j*1024}' for j in range(4)])],
           9: [(0, f'v_mul_f32 {vr(vS+6)}, {vr(vS+8)}, {vr(vl+4)}'), (0, f'v_fmac_f32 {vr(vS+6)}, {vr(vS+10)}, {vr(vS+4)}'),
               (0, f'v_rcp_f32 {vr(vS+6)}, {vr(vS+6)}')],
           10: [(0, f'v_mul_f32 {vr(vS+8)}, {vr(vS+8)}, {vr(vS+6)}'), (0, f'v_mul_f32 {vr(vS+10)}, {vr(vS+10)}, {vr(vS+6)}'),
               ('S', [f's_lshr_b32 s28, {sr(sW)}, 1', 's_lshl_b32 s28, s28, 17', f's_and_b32 s29, {sr(sW)}, 1']),
               ('S', ['s_lshl_b32 s29, s29, 11', 's_add_u32 s28, s28, s29', f's_add_u32 s28, s28, {16*131072}'])]}
    nf = 0
    for X in range(4):
        for i in range(4):
            rdy = done[(X, 2*i + 1)] + LAT
            b_ = vP + 8*(nf % 4); d = vT + 4*(nf % 8)
            seq += [(rdy, f'v_accvgpr_read_b32 {vr(b_+r)}, {ar(aO+32*X+8*i+r)}') for r in range(8)]
            seq += [('M', b_, vl + X)]
            seq += [(rdy, f'v_cvt_pk_bf16_f32 {vr(d+k)}, {vr(b_+2*k)}, {vr(b_+2*k+1)}') for k in range(4)]
            seq += [('S', [f'buffer_store_dwordx4 {vr(d,4)}, {vr(vL16)}, {sr(sO,4)}, {sr(4+X)} offen offset:{i*1024}{pol("pos")}'])]
            seq += mid.get(nf, [])
            nf += 1
    rest = []
    gq = 0
    nm = len(s.mf)
    TC = 5
    def putv(lo, x):
        nonlocal gq
        gq = max(gq, lo)
        while gq < nm and s.load(gq) + s.cost(x) > TC:
            gq += 1
        if gq >= nm:
            rest.append(x)
        else:
            s.put(gq, x)
    for item in seq:
        if item[0] == 'S':
            gq += 1
            if any('s_or_b64' in y for y in item[1]):
                gq = max(gq, gw + 1)
            if gq >= nm:
                rest += item[1]
            else:
                for y in item[1]:
                    s.put(gq, y)
        elif item[0] == 'M':
            b_, rc = item[1], item[2]
            if gq >= nm:
                sel = 'op_sel_hi:[1,0]' if rc % 2 == 0 else 'op_sel:[0,1]'
                rest += [f'v_pk_mul_f32 {vr(b_+2*k,2)}, {vr(b_+2*k,2)}, {vr(rc & ~1,2)} {sel}' for k in range(4)]
            else:
                for r in range(8):
                    putv(0, f'v_mul_f32 {vr(b_+r)}, {vr(b_+r)}, {vr(rc)}')
        else:
            putv(*item)
    if OPT['stamp'] & 8:
        for gp in (12, 24, 36, 48, 60, 72):
            s.put(gp, f's_memtime {sr(sST + 2*nstamp[0], 2)}')
            nstamp[0] += 1
    s.resolve(pending=c1)
    print('tail', s.loads(), len(rest), file=sys.stderr)
    g('s_nop 0')
    s.emit(g)
    stamp(g, 8)
    g.many(rest)
    stamp(g, 8)
    g(f's_bitcmp1_b32 {sr(sW)}, 0')
    g('s_cbranch_scc1 L1_rd_odd')
    for r in range(16):
        g(f'v_accvgpr_read_b32 {vr(vA+r)}, {ar(aO+128+r)}')
    g('s_branch L1_rd_done')
    g.label('L1_rd_odd')
    for r in range(16):
        g(f'v_accvgpr_read_b32 {vr(vA+r)}, {ar(aO+144+r)}')
    g.label('L1_rd_done')
    g('s_waitcnt lgkmcnt(0)')
    for k in range(8):
        g(f'v_pk_mul_f32 {vr(vA+2*k,2)}, {vr(vA+2*k,2)}, {vr(vS+8,2)} op_sel_hi:[1,0]')
    for k in range(8):
        g(f'v_pk_fma_f32 {vr(vA+2*k,2)}, {vr(vA+16+2*k,2)}, {vr(vS+10,2)}, {vr(vA+2*k,2)} op_sel_hi:[1,0,1]')
    for k in range(8):
        g(f'v_cvt_pk_bf16_f32 {vr(vA+32+k)}, {vr(vA+2*k)}, {vr(vA+2*k+1)}')
    g(f'buffer_store_dwordx4 {vr(vA+32,4)}, {vr(vL16)}, {sr(sO,4)}, s28 offen{pol("pos")}')
    g(f'buffer_store_dwordx4 {vr(vA+36,4)}, {vr(vL16)}, {sr(sO,4)}, s28 offen offset:1024{pol("pos")}')
    stamp(g, 13)
    RF = OPT['RF']; NP = OPT['NP']; NS = 32; NB = OPT['NB']
    vOo, vOF = 5, 24
    vWF = vOF + 4*RF
    assert NP <= 10 + (256 - vWF) // 16 and NP % 2 == 0
    def wreg(st, k, n):
        sl = st % NP
        return ar(96 + 16*sl + k, n) if sl < 10 else vr(vWF + 16*(sl - 10) + k, n)
    def reads(st):
        r = RNG[st % 10]
        return [f'ds_read_b64_tr_b16 {wreg(st, 4*nt+2*jj, 2)}, {vr(vRa+2*(r>>2)+(nt&1))} offset:{(r&3)*16384+jj*2048+(nt>>1)*512}' for nt in range(4) for jj in range(2)]
    vq = [('s', 0)] * 18
    def vwait(tags):
        idx = [k for k, tg in enumerate(vq) if tg in tags]
        return len(vq) - 1 - idx[-1] if idx else None
    g.c('wo fragments move into registers; their LDS ranges are refilled behind the stores')
    g('s_waitcnt vmcnt(18)')
    g.many(reads(0))
    for st in range(NB):
        g.many(reads(st + 1))
        g('s_waitcnt lgkmcnt(8)')
        g.many(wo_loads(st + 10))
        vq += [('w', st + 10)] * 4
    g.c('---- hand-off: every O store (write-through) of every wave has completed, then one counter add per workgroup')
    g('v_mov_b32 v19, 1')
    g(f's_waitcnt vmcnt({vwait([("s", 0)])})')
    stamp(g, 13)
    g('s_barrier')
    g(f's_cmp_lg_u32 {sr(sW)}, 0')
    g('s_cbranch_scc1 L1_nosig')
    if OPT['ssig']:
        g('s_mov_b32 s100, 1')
        g(f's_atomic_add s100, {sr(sDB,2)}, {sr(sB4)}' + (' glc' if OPT['ssig'] == 2 else ''))
    else:
        g('s_mov_b64 exec, 1')
        g(f'buffer_atomic_add v19, off, {sr(sDB,4)}, {sr(sB4)} sc1')
        g('s_mov_b64 exec, -1')
    g.label('L1_nosig')
    def publish(tag):
        g(f's_cmp_lg_u32 {sr(sW)}, 0')
        g(f's_cbranch_scc1 L1_pub{tag}')
        g('s_waitcnt lgkmcnt(0)')
        g('s_cmp_lg_u32 s100, 31')
        g(f's_cbranch_scc1 L1_pub{tag}')
        g(f's_add_u32 s101, {sr(sB4)}, 128')
        g('s_mov_b32 s100, 32')
        g(f's_atomic_add s100, {sr(sDB,2)}, s101')
        g.label(f'L1_pub{tag}')
    g(f's_cmp_lt_u32 {sr(sQG)}, 3')
    g('s_cbranch_scc1 L1_work')
    if OPT['ssig'] == 2:
        publish('A')
    g('s_branch ' + ('L1_fin' if OPT['stamp'] else 'L1_done'))
    g.label('L1_work')
    for st in range(NE, 10):
        g.many(wo_loads(st))
        vq += [('w', st)] * 4
    misc = [f's_lshl_b32 s4, {sr(sW)}, 15', f'v_add_u32 {vr(vOo)}, s4, {vr(vL16)}']
    misc += [f'v_add_u32 {vr(vOo+X)}, {X*131072}, {vr(vOo)}' for X in range(1, 6)]
    sRO = list(range(24, 32))
    for k in range(8):
        misc += [f's_add_u32 s4, {sr(sRot)}, {k}', 's_and_b32 s4, s4, 7', f's_lshl_b32 {sr(sRO[k])}, s4, 10']
    misc += [f's_mov_b32 {sr(sOUT)}, s98', f's_mov_b32 {sr(sOUT+1)}, s99', f's_mov_b32 {sr(sOUT+2)}, {sr(sW9K)}']
    order = list(range(NB, NE)) + list(range(10, 10 + NB)) + list(range(NE, 10)) + list(range(10 + NB, NP))
    n = vwait([('w', order[1])])
    if n is not None:
        g(f's_waitcnt vmcnt({n})')
    g.many(reads(order[1]))
    for k, st in enumerate(order):
        g('s_waitcnt lgkmcnt(8)' if k + 1 < len(order) else 's_waitcnt lgkmcnt(0)')
        if OPT['ssig'] == 2 and k == OPT['CK']:
            publish('B')
        w = wo_loads(st + 10) if st + 10 < NS else []
        rd = reads(order[k + 2]) if k + 2 < len(order) else []
        if k == len(order) - OPT['PQ'] // 2:
            if OPT['spoll']:
                g(f's_cmp_lg_u32 {sr(sW)}, 0')
                g('s_cbranch_scc1 L1_nopoll')
                g(f's_load_dword s101, {sr(sDB,2)}, s3 glc')
                g.label('L1_nopoll')
            else:
                g(f'buffer_load_dword v19, off, {sr(sDB,4)}, s3' + (' offset:128' if OPT['ssig'] == 2 else '') + ' sc1')
                vq.append(('p', 0))
        g.many(w[:3])
        vq += [('w', st + 10)] * (1 if w else 0)
        if rd:
            n = vwait([('w', order[k + 2])])
            if n is not None:
                g(f's_waitcnt vmcnt({n})')
        for p in range(3):
            g.many(rd[3*p:3*p+3])
            g.many(misc[:2]); misc = misc[2:]
            if w:
                g(w[3 + p]); vq.append(('w', st + 10))
    g.many(misc)
    stamp(g, 5)
    g(f's_cmp_lg_u32 {sr(sW)}, 0')
    g('s_cbranch_scc1 L1_go')
    g(f's_mov_b32 {sr(sCnt)}, 0')
    if OPT['spoll']:
        g.label('L1_poll')
        g('s_waitcnt lgkmcnt(0)')
        g('s_cmp_ge_u32 s101, 32')
        g('s_cbranch_scc1 L1_go')
        g(f's_add_u32 {sr(sCnt)}, {sr(sCnt)}, 1')
        g(f's_cmp_gt_u32 {sr(sCnt)}, 400000')
        g('s_cbranch_scc1 L1_go')
        g('s_sleep 1')
        g(f's_load_dword s101, {sr(sDB,2)}, s3 glc')
        g('s_branch L1_poll')
    else:
        g(f's_waitcnt vmcnt({vwait([("p", 0)])})')
        g.label('L1_poll')
        g('v_readfirstlane_b32 s4, v19')
        g(f's_add_u32 {sr(sCnt)}, {sr(sCnt)}, 1')
        g(f's_cmp_gt_u32 {sr(sCnt)}, 400000')
        g('s_cbranch_scc1 L1_go')
        g('s_cmp_ge_u32 s4, 32')
        g('s_cbranch_scc1 L1_go')
        g(f'buffer_load_dword v19, off, {sr(sDB,4)}, s3' + (' offset:128' if OPT['ssig'] == 2 else '') + ' sc1')
        g('s_sleep 1')
        g('s_waitcnt vmcnt(0)')
        g('s_branch L1_poll')
    g.label('L1_go')
    g('s_barrier')
    stamp(g, 5)
    g.c('---- output projection: 96 x 64 tile, K split over the 4 waves, two k-steps chained per accumulator')
    NF = 6*NS
    sKo = [4, 5, 6, 7]
    def o_load(f):
        pr, X, e = f // 12, (f % 12) >> 1, f & 1
        st = 2*pr + e
        so = sKo[st & 3]
        pre = [f's_add_u32 {sr(so)}, {sr(sRO[st & 7])}, {(st & ~7)*1024}'] if X == 0 else []
        return pre + [f'buffer_load_dwordx4 {vr(vOF+4*(f % RF),4)}, {vr(vOo+X)}, {sr(sO2,4)}, {sr(so)} offen{pol("pol")}']
    for f in range(RF):
        g.many(o_load(f)); vq.append(('o', f))
    nxt = RF
    for st in range(0, NS, 2):
        rs = [x for x in (st - 2 + NP, st - 1 + NP) if st >= 2 and x < NS]
        ws = [x for x in (st - 4 + NP + 10, st - 3 + NP + 10) if st >= 4 and x < NS]
        rd = sum((reads(x) for x in rs), [])
        w = sum(([(y, x) for y in wo_loads(x)] for x in ws), [])
        for X in range(6):
            f0 = 6*st + 2*X
            need = [('o', f0 + 1)] + ([('w', x) for x in rs] if X == 0 else [])
            g(f's_waitcnt vmcnt({min(vwait(need), 63)})' + (' lgkmcnt(0)' if X == 0 else ''))
            m = 0
            for nt in range(4):
                for e in range(2):
                    d = ar(4*(4*X + nt), 4)
                    g(f'{MF} {d}, {wreg(st+e, 4*nt, 4)}, {vr(vOF+4*((f0+e) % RF),4)}, {d if (st or e) else 0}')
                    if m in (1, 5) and nxt < NF and nxt - RF < f0:
                        g.many(o_load(nxt)); vq.append(('o', nxt)); nxt += 1
                    elif rd and m < 7:
                        g(rd.pop(0)); g(rd.pop(0))
                    elif w and m < 7:
                        k = 0
                        while w and k < 2:
                            y, tg = w.pop(0); g(y); k += 1
                            if y.startswith('buffer'):
                                vq.append(('w', tg)); break
                    m += 1
        assert not w and not rd
    assert nxt == NF
    stamp(g, 5)
    g(f'v_add_u32 v9, {sr(sW4K)}, {vr(vL16)}')
    g('v_add_u32 v10, 65536, v9')
    g(f'v_bfe_u32 v11, {vr(vL16)}, 4, 4')
    g('v_mul_u32_u24 v11, 1152, v11')
    g(f'v_lshrrev_b32 v15, 9, {vr(vL16)}')
    g(f'v_bfe_u32 v16, {vr(vL16)}, 8, 1')
    g('v_lshl_add_u32 v11, v15, 4, v11')
    g('v_lshl_add_u32 v11, v16, 5, v11')
    g('s_nop 1')
    for j in range(24):
        r = j >> 2
        g(f'ds_write_b128 {"v9" if r < 4 else "v10"}, {ar(4*j,4)} offset:{(r&3)*16384+(j&3)*1024}')
    for e in range(3):
        g(f's_mul_i32 s4, {sr(sW)}, 3')
        g(f's_add_u32 s4, s4, {e}')
        g('s_lshr_b32 s5, s4, 1')
        g('s_and_b32 s4, s4, 1')
        g('s_lshl_b32 s6, s5, 14')
        g('s_lshl_b32 s7, s4, 11')
        g('s_add_u32 s6, s6, s7')
        g(f'v_add_u32 {vr(12+e)}, s6, {vr(vL16)}')
        g('s_mul_i32 s5, s5, 18432')
        g('s_lshl_b32 s4, s4, 6')
        g(f's_add_u32 {sr(45+e)}, s4, s5')
    g('s_waitcnt lgkmcnt(0)')
    g('s_barrier')
    for u in range(4):
        for j in range(6):
            g(f'ds_read_b128 {vr(24+24*u+4*j,4)}, {vr(12+(j>>1))} offset:{u*4096+(j&1)*1024}')
    g('s_waitcnt lgkmcnt(12)')
    for k in range(12):
        g(f'v_pk_add_f32 {vr(24+2*k,2)}, {vr(24+2*k,2)}, {vr(48+2*k,2)}')
    g('s_waitcnt lgkmcnt(0)')
    for k in range(12):
        g(f'v_pk_add_f32 {vr(72+2*k,2)}, {vr(72+2*k,2)}, {vr(96+2*k,2)}')
    for k in range(12):
        g(f'v_pk_add_f32 {vr(24+2*k,2)}, {vr(24+2*k,2)}, {vr(72+2*k,2)}')
    for k in range(12):
        g(f'v_cvt_pk_bf16_f32 {vr(120+k)}, {vr(24+2*k)}, {vr(24+2*k+1)}')
    g('s_nop 1')
    for e in range(3):
        g(f'v_permlane16_swap_b32 {vr(120+4*e)}, {vr(122+4*e)}')
        g(f'v_permlane16_swap_b32 {vr(121+4*e)}, {vr(123+4*e)}')
    for e in range(3):
        g(f'buffer_store_dwordx4 {vr(120+4*e,4)}, v11, {sr(sOUT,4)}, {sr(45+e)} offen{pol("pout")}')
    if OPT['stamp']:
        g('s_waitcnt vmcnt(0)')
        stamp(g, 5)
        g.label('L1_fin')
        emit_stamps(g, 36, 0)
    g.label('L1_done')
    g('s_endpgm')
    g.c('---- fallback: the stand-in was unsafe.  Scan all keys for the true row max, then redo the main pass.')
    g.label('L1_fallback')
    g(f's_mov_b32 {sr(sPass)}, 1')
    g('s_waitcnt vmcnt(0) lgkmcnt(0)')
    for X in range(5):
        g(f'v_mov_b32 {vr(vM+X)}, 0xff800000')
    g(f's_mov_b32 {sr(sOff)}, 0')
    g(f's_mov_b32 {sr(sSlot)}, 0')
    g.many(addr_update())
    g.label('L1_scan')
    g('s_barrier')
    g(f's_mov_b32 m0, {sr(sW4K)}')
    g('s_nop 0')
    for j in range(4):
        g(dma_kv('K', j, sOff))
    g(f's_add_u32 {sr(sOff)}, {sr(sOff)}, 16384')
    g('s_waitcnt vmcnt(0)')
    g('s_barrier')
    for kt in range(4):
        for i in range(4):
            g(kread(kt, i, aK))
        g('s_waitcnt lgkmcnt(0)')
        for c in range(5):
            for i in range(4):
                g(qk_mf(c, i, '0', vR + 4*c)[0])
        g('s_nop 7')
        for X in range(5):
            g(f'v_max3_f32 {vr(vM+X)}, {vr(vM+X)}, {vr(vR+4*X)}, {vr(vR+4*X+1)}')
            g(f'v_max3_f32 {vr(vM+X)}, {vr(vM+X)}, {vr(vR+4*X+2)}, {vr(vR+4*X+3)}')
    g(f's_cmp_lt_u32 {sr(sOff)}, 524288')
    g('s_cbranch_scc1 L1_scan')
    g('s_barrier')
    for u in range(PD):
        g.many(pair_const(u))
    setneg()
    for r in range(180):
        g(f'v_accvgpr_write_b32 {ar(aO+r)}, 0')
    g(f's_waitcnt vmcnt({8*(PD-1)})')
    g('s_barrier')
    for i in range(4):
        g(kread(0, i))
    g('s_waitcnt lgkmcnt(0)')
    for c in range(5):
        for i in range(4):
            g(qk_mf(c, i, '0', vR + 4*c)[0])
    g('s_nop 7')
    g('s_branch L1_main')
    g.label('L1_end')

def emit_stamps(g, sws, kidx):
    n = nstamp[0]
    assert n <= 13
    g(f's_memrealtime {sr(sRT+2, 2)}')
    g('s_waitcnt lgkmcnt(0)')
    if OPT['dbg'] >= 2:
        if OPT['dbg'] == 2:
            g(f's_sub_u32 s5, {sr(sRT+2)}, {sr(sRT)}')
        elif OPT['dbg'] in (3, 4):
            g('s_mov_b32 s22, 256')
            g('buffer_load_dword v21, off, s[20:23], 0 offset:128 sc1')
            g('s_waitcnt vmcnt(0)')
            g('v_readfirstlane_b32 s6, v21')
            g('s_nop 3')
            g('s_not_b32 s6, s6')
            g(f's_sub_u32 s5, {sr(sRT if OPT["dbg"] == 3 else sRT+2)}, s6')
            if OPT['dbg'] == 3:
                g('s_lshl_b32 s5, s5, 2')
        else:
            a, b = OPT['dbg'] // 100, OPT['dbg'] % 100
            g(f's_sub_u32 s5, {sr(sST+2*b)}, {sr(sST+2*a)}')
            g('s_lshr_b32 s5, s5, 4')
        if OPT['dbg'] != 3:
            g(f's_cmp_ge_u32 {sr(sQG)}, 3'); g('s_cselect_b32 s5, 0, s5')
        g('s_min_u32 s5, s5, 50000')
        g.label('L_spin')
        g('s_memrealtime s[6:7]')
        g('s_waitcnt lgkmcnt(0)')
        g(f's_sub_u32 s6, s6, {sr(sRT+2)}')
        g('s_cmp_lt_u32 s6, s5')
        g('s_cbranch_scc1 L_spin')
        nstamp[0] = 0
        return
    g(f's_add_u32 s8, {sr(sws)}, {STAMP_OFF + kidx*(1<<20)}')
    g(f's_addc_u32 s9, {sr(sws+1)}, 0')
    g('s_mov_b32 s10, 0x100000')
    g('s_mov_b32 s11, 0x20000')
    g('s_lshl_b32 s4, s2, 2')
    g(f's_add_u32 s4, s4, {sr(sW)}')
    g('s_lshl_b32 s4, s4, 7')
    g('s_mov_b64 exec, 1')
    g('v_mov_b32 v2, 0')
    for reg, off in [(sST+2*i, 8*i) for i in range(n)] + [(sRT, 104), (sRT+2, 112)]:
        g(f'v_mov_b32 v4, {sr(reg)}')
        g(f'v_mov_b32 v5, {sr(reg+1)}')
        g(f'buffer_store_dwordx2 v[4:5], v2, s[8:11], s4 offen offset:{off}')
        g('s_nop 1')
    if OPT['dbg']:
        g('s_mov_b32 s8, s94'); g('s_mov_b32 s9, s95'); g('s_mov_b32 s10, 64')
        g(f's_cmp_ge_u32 {sr(sQG)}, 3'); g('s_cselect_b32 s10, 0, s10')
        pairs = [(sRT, sRT+2, 1), (sST, sST+2*5, 1), (sST+2*5, sST+2*6, 1), (sST+2*5, sST+2*6, -1), (sST+2*6, sST+2*8, 1), (sST+2*8, sST+2*9, 1), (sST+2*9, sST+2*10, 1), (sST, sST+2*11, 1)]
        for k, (a, b, sg) in enumerate(pairs):
            g(f's_sub_u32 s5, {sr(b)}, {sr(a)}' if sg > 0 else f's_sub_u32 s5, {sr(a)}, {sr(b)}')
            g('v_mov_b32 v4, s5')
            g(f'buffer_atomic_umax v4, off, s[8:11], 0 offset:{32+4*k} sc1')
            g('s_nop 1')
        nstamp[0] = 0
        return
    g('s_getreg_b32 s5, hwreg(HW_REG_XCC_ID)')
    g('v_mov_b32 v4, s5')
    g('buffer_store_dword v4, v2, s[8:11], s4 offen offset:120')
    print('stamps', kidx, n, file=sys.stderr)
    nstamp[0] = 0

def kd(name, nv, acc):
    return f'''.p2align 6
.amdhsa_kernel {name}
  .amdhsa_next_free_vgpr {nv}
  .amdhsa_next_free_sgpr 102
  .amdhsa_accum_offset {acc}
  .amdhsa_group_segment_fixed_size 0
  .amdhsa_kernarg_size 64
  .amdhsa_user_sgpr_count 2
  .amdhsa_user_sgpr_kernarg_segment_ptr 1
  .amdhsa_system_sgpr_workgroup_id_x 1
  .amdhsa_float_denorm_mode_32 3
.end_amdhsa_kernel'''

def main():
    here = os.path.dirname(os.path.abspath(__file__))
    g = G()
    kernel1(g)
    out = open(here + '/header3.txt').read()
    out += '.amdgcn_target "amdgcn-amd-amdhsa--gfx950"\n.text\n'
    out += '\n'.join(g.L) + '\n'
    out += '.section .rodata,"a"\n' + kd(KN, 512, 256) + '\n'
    open(sys.argv[1], 'w').write(out)

main()
```

```python
import sys, math, struct, re, os

OPT = dict(stamp=0, force_fallback=0, k2_D=6, k2_PH=8, nodma=0, map=1, qrot=0, pd=3, qsp=4, ipf=1, RF=18, NP=20, PQ=14, NB=3, pout=0, touch=0, qcap=2, BAR=110, wt=1, wtn=3, wto=0, kw=0, vc=2, fc=5, TI=0, qp=3, zt=0, wl=64, dyn=1, n1=13, kc=1, d2=1, qvc=1, ssig=2, spoll=0, CK=2, dbg=0, rt=0,
           px=0, pwq=0, pos=2, pol=2, pwo=0, pkv=1, wopf=0)
for a in sys.argv[2:]:
    k, v = a.split('=')
    assert k in OPT, k
    OPT[k] = int(v)
POL = ['', ' nt', ' sc1', ' sc0 sc1', ' sc1 nt', ' sc0 sc1 nt', ' sc0']
pol = lambda k: POL[OPT[k]]

def f2u(x):
    return struct.unpack('<I', struct.pack('<f', x))[0]

class G:
    def __init__(self):
        self.L = []
    def __call__(self, s):
        self.L.append('    ' + s)
    def many(self, xs):
        for x in xs:
            self(x)
    def label(self, s):
        self.L.append(s + ':')
    def c(self, s):
        self.L.append('    ; ' + s)
    def raw(self, s):
        self.L.append(s)

vr = lambda b, n=1: f'v{b}' if n == 1 else f'v[{b}:{b+n-1}]'
ar = lambda b, n=1: f'a{b}' if n == 1 else f'a[{b}:{b+n-1}]'
sr = lambda b, n=1: f's{b}' if n == 1 else f's[{b}:{b+n-1}]'
MF = 'v_mfma_f32_16x16x32_bf16'
STAMP_OFF = 32 << 20
KN = 'standalone__mha_block_cached__near_ridge_kernel'

class Sched:
    vc = 1
    kc = 1
    d2 = 0
    def __init__(self, cap=2):
        self.mf = []
        self.gaps = []
        self.cap = cap
    def add(self, text, needs=()):
        self.mf.append((text, tuple(needs)))
        self.gaps.append([])
        return len(self.mf) - 1
    @staticmethod
    def cost(t):
        return 2 if t.startswith('v_exp') else (Sched.vc if t.startswith('buffer') else Sched.kc if t.startswith('ds_read_b128') else 1)
    def load(self, g):
        return sum(self.cost(t) for t, _ in self.gaps[g])
    def put(self, g, text, tag=None):
        self.gaps[g].append((text, tag))
        return g
    def place(self, text, lo, hi, tag=None, cap=None):
        cap = cap or self.cap
        hi = min(hi, len(self.mf) - 1)
        assert lo <= hi, (text, lo, hi)
        for g in range(lo, hi + 1):
            if self.load(g) + self.cost(text) <= cap and not (Sched.d2 and text.startswith('ds_') and any(t.startswith('ds_') for t, _ in self.gaps[g])):
                return self.put(g, text, tag)
        best = min(range(lo, hi + 1), key=self.load)
        return self.put(best, text, tag)
    def seq(self, texts, lo, hi, step=0):
        g = lo
        for t in texts:
            tag = None
            if isinstance(t, tuple):
                t, tag = t
            g = self.place(t, g, hi, tag) + step
        return g
    def order(self, g):
        a = [x for x in self.gaps[g] if not x[0].startswith('v_')]
        b = [x for x in self.gaps[g] if x[0].startswith('v_')]
        return a + b
    def resolve(self, pending=(), look=6, mind=5):
        n = len(self.mf)
        waits = {}
        def issued_upto(g):
            out = list(pending)
            for x in range(g):
                out += [(tag, x) for t, tag in self.order(x) if t.startswith('ds_')]
            return out
        done = 0
        fixed = {}
        for x in range(n):
            for t, _ in self.gaps[x]:
                if 'lgkmcnt(0)' in t:
                    fixed[x] = True
        for m in range(n):
            if (m - 1) in fixed:
                done = max(done, len(issued_upto(m - 1)))
            iss = issued_upto(m)
            last = -1
            for tag in self.mf[m][1]:
                idx = [k for k, (tg, _) in enumerate(iss) if tg == tag]
                if idx:
                    last = max(last, idx[-1])
            if last >= done:
                lg = iss[last][1]
                if m == 0:
                    pos = -1
                else:
                    cands = [p for p in range(m - 1, max(m - 12, lg, -1), -1) if p - lg >= mind and self.load(p) < self.cap]
                    pos = cands[0] if cands else m - 1
                    assert pos > lg, (self.mf[m], lg)
                cur = issued_upto(max(pos, 0))
                need = last + 1
                while need < len(cur) and cur[need][1] <= pos - look:
                    need += 1
                cnt = min(len(cur) - need, 15)
                done = len(cur) - cnt
                w = (f's_waitcnt lgkmcnt({cnt})', None)
                if pos < 0:
                    waits[-1] = w[0]
                else:
                    self.gaps[pos].insert(0, w)
        self.pre = waits.get(-1)
        allops = issued_upto(n)
        return [(tag, g - n) for tag, g in allops[done:]]
    def emit(self, g):
        if getattr(self, 'pre', None):
            g(self.pre)
        for m in range(len(self.mf)):
            g(self.mf[m][0])
            for t, _ in self.order(m):
                g(t)
    def loads(self):
        return ''.join(str(self.load(x)) for x in range(len(self.mf)))

sX, sWQ, sK, sV, sO = 8, 12, 16, 20, 24
sW, sW4K, sW1K = 38, 39, 56
sT0, sT1, sT2 = 40, 41, 42
sSlot, sOld, sOff, sCnt, sPass = 43, 44, 45, 46, 47
sCx, sCw, sCh = 48, 49, 50
sC = 54
sThr = 58
sB4 = 57
sHook = 55
sHook0 = 54
sRot, sQG, sNG = 59, 88, 89
sRW = [48, 49, 50, 51, 52, 53, 86, 87]
sDB = 32
vWo = [2, 3, 4, 21]
vRb = 17
RNG = [6, 7, 8, 9, 4, 1, 3, 2, 0, 5]
NE = 7
sST, sRT = 60, 90
vL16, vXvo, vW0, vW1, vKV0, vKV1 = 1, 2, 3, 4, 5, 6
vKb, vVb = 7, 9
vXa, vXc, vWa = 11, 12, 13
vKa, vVa = 11, 13
vQ = 24
vACC = 104
vNEG = 104
vP = 124
vS = 204
vT = 216
aO, aL, aONE, aK, aV = 0, 160, 180, 184, 216
QBUF, XB, SLOT = 53248, 36864, 32768
EXCH = 16384

nstamp = [0]
def stamp(g, mode=1):
    if OPT['stamp'] & mode:
        if nstamp[0] == 0:
            g(f's_memrealtime {sr(sRT, 2)}')
        g(f's_memtime {sr(sST + 2*nstamp[0], 2)}' if not OPT['rt'] else f's_memrealtime {sr(sST + 2*nstamp[0], 2)} ; s_memtime')
        nstamp[0] += 1

def dma_kv(kind, j, soff):
    srd = sK if kind == 'K' else sV
    off = f' offset:{j*1024}' if j else ''
    return f'buffer_load_dwordx4 {vr(vKV1 if j & 1 else vKV0)}, {sr(srd,4)}, {sr(soff)} offen{off}{pol("pkv")} lds'

def pair_const(u):
    slot = (u % 5) * SLOT
    out = [f's_add_u32 m0, {sr(sW4K)}, {slot}', f's_mov_b32 {sr(sT0)}, {u*16384}']
    out += [dma_kv('K', j, sT0) for j in range(4)]
    if u > 0:
        out += [f's_add_u32 m0, {sr(sW4K)}, {slot+16384}', 's_nop 0']
        out += [dma_kv('V', j, sT0) for j in range(4)]
    return out

sXC = [None, 48, 49, 50, 51, 52, 53, 86, 87]
sWC = [None, 88, 89, 59]
sW9K = 44
vXvo1 = 21
def qchunk_dma(j):
    out = []
    buf = (j % 3) * QBUF
    so = lambda r: '0' if r is None else sr(r)
    off = lambda p: f' offset:{(p&3)*1024}' if p & 3 else ''
    out.append(f's_add_u32 m0, {sr(sW4K)}, {buf + XB}')
    out.append('s_nop 0')
    for p in range(4):
        out.append(f'buffer_load_dwordx4 {vr(vW1 if p & 2 else vW0)}, {sr(sWQ,4)}, {so(sWC[p])} offen{off(p)}{pol("pwq")} lds')
    QP = OPT['qp']
    sDl = [45, 46, 47]
    if QP == 1:
        out += [f's_add_u32 {sr(sWQ)}, {sr(sWQ)}, 524288', f's_addc_u32 {sr(sWQ+1)}, {sr(sWQ+1)}, 0']
    elif j < 8:
        dl = sDl[j % QP] if not (QP == 2 and j == 7) else sDl[2]
        out += [f's_lshl_b32 {sr(sT1)}, {sr(dl)}, 12', 's_nop 0', f'v_add_u32 {vr(vW0)}, {sr(sT1)}, {vr(vW0)}', f'v_add_u32 {vr(vW1)}, {sr(sT1)}, {vr(vW1)}']
    for p in range(9):
        if p & 3 == 0:
            out.append(f's_add_u32 m0, {sr(sW9K)}, {buf + p*1024}')
            out.append('s_nop 0')
        out.append(f'buffer_load_dwordx4 {vr(vXvo1 if p & 1 else vXvo)}, {sr(sX,4)}, {so(sXC[p])} offen{off(p)}{pol("px")} lds')
    if QP == 1:
        out += [f's_add_u32 {sr(sX)}, {sr(sX)}, 128', f's_addc_u32 {sr(sX+1)}, {sr(sX+1)}, 0']
    elif j < 8:
        out += [f'v_add_u32 {vr(vXvo)}, {sr(dl)}, {vr(vXvo)}', f'v_add_u32 {vr(vXvo1)}, {sr(dl)}, {vr(vXvo1)}', 's_nop 0']
    return out

def kread(kt, i, dst=None):
    dst = aK + 16*(kt & 1) if dst is None else dst
    return f'ds_read_b128 {ar(dst+4*i,4)}, {vr(vKa+(kt>>1))} offset:{i*256+(kt&1)*4096}'
def vread(dt, a, jj):
    return f'ds_read_b64_tr_b16 {ar(aV+8*(dt&3)+4*a+2*jj,2)}, {vr(vVa+2*a+(dt&1))} offset:{16384+jj*4096+(dt>>1)*256}'
def Preg(buf, X, a):
    return vP + 40*buf + 8*X + 4*a

CHAINS = [(kt, X) for kt in range(4) for X in range(5 if kt < 2 else 4)]
PVS = [(dt, X, a) for dt in range(8) for X in range(5) for a in range(2 if X < 4 else 1)]
SUMS = [(X, a) for X in range(5) for a in range(2 if X < 4 else 1)]

def qk_mf(c, i, cinit=None, dst=None):
    kt, X = CHAINS[c]
    d = vr(vS + 4*(c % 3) if dst is None else dst, 4)
    ci = vr(vNEG + 4*X, 4) if cinit is None else cinit
    return f'{MF} {d}, {ar(aK+16*(kt&1)+4*i,4)}, {vr(vQ+16*X+4*i,4)}, {d if i else ci}', [('K', kt & 1, i)]
def pv_mf(j, buf):
    dt, X, a = PVS[j]
    o = ar(aO + 32*X + 4*dt, 4)
    return f'{MF} {o}, {ar(aV+8*(dt&3)+4*a,4)}, {vr(Preg(buf,X,a),4)}, {o}', [('V', dt & 3, a)]
def sum_mf(j, buf):
    X, a = SUMS[j]
    o = ar(aL + 4*X, 4)
    return f'{MF} {o}, {ar(aONE,4)}, {vr(Preg(buf,X,a),4)}, {o}', []
def softmax_ops(c, buf, src=None):
    kt, X = CHAINS[c]
    S = vS + 4*(c % 3) if src is None else src
    P = Preg(buf, X, kt >> 1) + 2*(kt & 1)
    ex = [f'v_exp_f32 {vr(S+r)}, {vr(S+r)}' for r in range(4)]
    cv = [f'v_cvt_pk_bf16_f32 {vr(P+k)}, {vr(S+2*k)}, {vr(S+2*k+1)}' for k in range(2)]
    return ex, cv

PD = OPT['pd']
WT = OPT['wt']
VMW = 8*(PD - 2) + (PD - 1)*WT
sTo = 100
vTo = 22
sWT = 28
def wo_touch():
    return [f'buffer_load_dword v0, {vr(vTo)}, {sr(sWT,4)}, {sr(sTo+1)} offen sc1', f's_add_u32 {sr(sTo)}, {sr(sTo)}, {4096*OPT["wl"]}',
            f's_cmp_ge_i32 {sr(sTo)}, 0', f's_cselect_b32 {sr(sWT+2)}, {4096*1152}, {sr(sWT+2)}', f's_cselect_b32 {sr(sTo+1)}, {sr(sTo)}, 0'] + \
           ([f's_cselect_b64 {sr(sWT,2)}, s[96:97], {sr(sWT,2)}'] if OPT['kw'] else [])
sDst = sOld
def slot_update():
    return [f's_add_u32 {sr(sSlot)}, {sr(sSlot)}, {SLOT}',
            f's_sub_u32 {sr(sT0)}, {sr(sSlot)}, {5*SLOT}',
            f's_min_u32 {sr(sSlot)}, {sr(sSlot)}, {sr(sT0)}']
def dst_update():
    if PD == 5:
        return [f's_add_u32 {sr(sT1)}, {sr(sSlot)}, {sr(sW4K)}']
    return [f's_add_u32 {sr(sT1)}, {sr(sSlot)}, {PD*SLOT}',
            f's_sub_u32 {sr(sT0)}, {sr(sT1)}, {5*SLOT}',
            f's_min_u32 {sr(sT1)}, {sr(sT1)}, {sr(sT0)}',
            f's_add_u32 {sr(sT1)}, {sr(sT1)}, {sr(sW4K)}']
def addr_update():
    return [f'v_add_u32 {vr(vKa)}, {sr(sSlot)}, {vr(vKb)}',
            f'v_add_u32 {vr(vVa)}, {sr(sSlot)}, {vr(vVb)}',
            f'v_add_u32 {vr(vVa+2)}, {sr(sSlot)}, {vr(vVb+1)}',
            f'v_xor_b32 {vr(vVa+1)}, 32, {vr(vVa)}',
            f'v_xor_b32 {vr(vVa+3)}, 32, {vr(vVa+2)}',
            f'v_add_u32 {vr(vKa+1)}, {sr(sSlot)}, {vr(vKb+1)}']

def wo_loads(st):
    w = [f's_add_u32 m0, {sr(sW4K)}, {RNG[st % 10]*16384}', f's_add_u32 {sr(sT2)}, {sr(sRW[st & 7])}, {(st & ~7)*36864}']
    for p in range(4):
        w.append(f'buffer_load_dwordx4 {vr(vWo[p])}, {sr(sX,4)}, {sr(sT2)} offen' + (f' offset:{p*1024}' if p else '') + f'{pol("pwo")} lds')
    return w
def vfrag(dt, a):
    return (aV + 8*dt if dt < 4 else aK + 8*(dt - 4)) + 4*a
def vread_all(dt, a, jj):
    return (f'ds_read_b64_tr_b16 {ar(vfrag(dt,a)+2*jj,2)}, {vr(vVa+2*a+(dt&1))} offset:{16384+jj*4096+(dt>>1)*256}', ('F', dt, a))

def build_stage(buf, last=False):
    s = Sched()
    for c in range(18):
        for i in range(4):
            s.add(*qk_mf(c, i))
        for j in range(4):
            s.add(*pv_mf(4*c + j, buf))
    for j in range(9):
        s.add(*sum_mf(j, buf))
    for c in range(18):
        ex, cv = softmax_ops(c, buf ^ 1)
        for r in range(4):
            s.put(8*c + 9 + 2*r, ex[r])
        s.put(8*c + 12, cv[0])
        s.put(8*c + 16, cv[1])
    BAR = OPT['BAR']
    assert s.load(BAR) == 0
    s.put(BAR, f's_waitcnt vmcnt({VMW})' if not last else f's_waitcnt vmcnt({WT + 4 + 20}) lgkmcnt(0)')
    s.put(BAR, 's_barrier')
    first = lambda dt: 8*((9*dt) >> 2) + 4 + ((9*dt) & 3)
    lastu = lambda dt: 8*((9*dt+8) >> 2) + 4 + ((9*dt+8) & 3)
    au = addr_update()
    if not last:
        s.put(0, f's_add_u32 m0, {sr(sT1)}, 16384')
    Sched.vc = OPT['vc'] if not last else 1
    Sched.kc = OPT['kc'] if not last else 1
    Sched.d2 = OPT['d2'] if not last else 0
    if not last:
        for j, gp in enumerate((8, 18, 30, 42)):
            assert s.load(gp) == 0
            s.put(gp, dma_kv('V', j, sOff))
        for j, gp in enumerate((118, 126, 134, 142)):
            assert s.load(gp) == 0
            s.put(gp, dma_kv('K', j, sOff))
        if WT:
            s.put(54, wo_touch()[0])
    gk = {}
    gk[1] = s.seq([(kread(1, i), ('K', 1, i)) for i in range(4)], 0, 20)
    gv = {}
    gv[2] = s.seq([(vread(2, a, jj), ('V', 2, a)) for a in range(2) for jj in range(2)], 0, 20)
    gs_ = s.seq(dst_update() + slot_update() if not last else [f's_mov_b32 {sr(sSlot)}, {2*SLOT}'], 1, 30)
    for kt, lo in ((2, 37), (3, 77)):
        gk[kt] = s.seq([(kread(kt, i), ('K', kt & 1, i)) for i in range(4)], lo, lo + 24, 1)
    for dt in range(3, 8):
        lo = max(first(dt) - 44, lastu(dt - 4) + 1 if dt >= 4 else 0, 0)
        gv[dt] = s.seq([(vread(dt, a, jj), ('V', dt & 3, a)) for a in range(2) for jj in range(2)], lo, min(lo + 22, BAR - 6), 1)
    if not last:
        s.place(au[0], max(gs_, gk[1]) + 1, BAR - 1)
        s.place(au[5], gk[3] + 1, 150)
    ga = s.seq(au[1:3], gv[6] + 1, BAR - 1)
    gb = s.seq(au[3:5], max(gv[7], ga) + 1, BAR + 12)
    if last:
        g = 3
        for st in range(5):
            for x in wo_loads(st):
                g = s.place(x, g, BAR - 1)
                if x.startswith('buffer'):
                    g += 2
                elif 'm0' in x:
                    g += 1
        g = BAR + 1
        for st in range(5, NE):
            for x in wo_loads(st):
                g = s.place(x, g, 150)
                if x.startswith('buffer') or 'm0' in x:
                    g += 1
        ZT = {0: [], 1: [(112, 262144), (140, 524288)], 2: [(112, 262144), (130, 524288), (148, 786432)],
              3: [(112, 294912), (130, 557056), (148, 819200)], 4: [(146, 294912), (150, 557056)],
              5: [(112, 0), (124, 262144), (136, 524288), (148, 786432)]}[OPT['zt']]
        if ZT:
            s.place(f's_mov_b32 {sr(sWT+2)}, {4096*1152}', 1, 100)
        for gp, off in ZT:
            q = s.place(f's_mov_b32 {sr(sTo+1)}, {off}', gp - 8, gp)
            s.put(gp + 1 if s.load(gp) >= 2 > s.load(gp + 1) else gp, wo_touch()[0])
        left = []
        g = max(BAR, gb) + 1
        for dt, lo in ((0, lastu(4) + 1), (1, lastu(5) + 1), (4, 109), (2, lastu(6) + 1), (5, 109), (3, lastu(7) + 1), (6, 141), (7, 141)):
            for a in range(2):
                for jj in range(2):
                    x, tag = vread_all(dt, a, jj)
                    g = max(g, lo)
                    while g < len(s.mf) and s.load(g) >= 2:
                        g += 1
                    if g < len(s.mf):
                        s.put(g, x, tag)
                    else:
                        left.append((x, tag))
        s.left = left
        return s, BAR
    s.seq([(kread(0, i), ('K', 0, i)) for i in range(4)], BAR + 1, 140, 1)
    s.seq([(vread(0, a, jj), ('V', 0, a)) for a in range(2) for jj in range(2)], max(BAR + 1, lastu(4) + 1), 146, 1)
    s.seq([(vread(1, a, jj), ('V', 1, a)) for a in range(2) for jj in range(2)], max(gb + 1, lastu(5) + 1, 128), 152, 1)
    assert WT <= 1
    s.place(f's_add_u32 {sr(sOff)}, {sr(sOff)}, 16384', 43, 100)
    g = 55
    for k in range(WT):
        wt_ = wo_touch()
        g = s.seq(wt_[1:2], g, BAR - 2) + 1
        while True:
            nn = len(wt_) - 2
            free = [x for x in range(g, g + 10) for _ in range(2 - s.load(x))][:nn]
            span = range(free[0], free[-1] + 1) if len(free) == nn else None
            if span and not any(t.startswith('s_') and not t.startswith('s_wait') for x in span for t, _ in s.gaps[x]):
                break
            g += 1
        for x, t in zip(free, wt_[2:]):
            s.put(x, t)
        g = free[-1] + 12
    s.place(f's_mov_b32 m0, {sr(sT1)}', 64, 116)
    assert s.load(150) == 0
    s.put(150, 's_waitcnt lgkmcnt(0)')
    return s, BAR

def code_prefetch(g, start, end, srd, vtmp, vdst):
    g(f's_getpc_b64 {sr(srd,2)}')
    g.label(f'Lpc_{start[:4]}')
    g(f's_mov_b32 {sr(srd+2)}, {end}-Lpc_{start[:4]}')
    g(f's_mov_b32 {sr(srd+3)}, 0x20000')
    g(f'v_lshlrev_b32 {vr(vtmp)}, 7, v0')
    g('s_bfe_u32 s7, s2, 0x10003')
    g('s_lshl_b32 s7, s7, 15')
    g(f'buffer_load_dword {vr(vdst)}, {vr(vtmp)}, {sr(srd,4)}, s7 offen')

def kernel1(g):
    g.raw(f'.globl {KN}\n.p2align 8\n.type {KN},@function')
    g.label(KN)
    g('s_cmp_ge_u32 s2, 256')
    g('s_cbranch_scc1 L1_done')
    stamp(g, 3)
    g('s_load_dwordx4 s[28:31], s[0:1], 0')
    g('s_load_dwordx4 s[32:35], s[0:1], 16')
    g('s_load_dwordx2 s[36:37], s[0:1], 56')
    g('s_load_dwordx4 s[96:99], s[0:1], 32')
    g('s_load_dwordx2 s[94:95], s[0:1], 48')
    t = lambda i: vr(vQ + i)
    g(f'v_lshrrev_b32 {t(0)}, 6, v0')
    g(f'v_and_b32 {t(1)}, 63, v0')
    g(f'v_readfirstlane_b32 {sr(sW)}, {t(0)}')
    if OPT['ipf']:
        code_prefetch(g, 'attn_kernel', 'L1_end', 24, 23, 22)
    if OPT['map'] == 0:
        g('s_and_b32 s3, s2, 7')
        g('s_lshr_b32 s4, s2, 3')
    else:
        g('s_and_b32 s3, s2, 1'); g('s_lshl_b32 s3, s3, 2'); g('s_bfe_u32 s5, s2, 0x20003'); g('s_add_u32 s3, s3, s5')
        g('s_bfe_u32 s4, s2, 0x20001'); g('s_lshl_b32 s4, s4, 3'); g('s_lshr_b32 s6, s2, 5'); g('s_add_u32 s4, s4, s6')
    for p in range(1, 9):
        g(f's_mov_b32 {sr(sXC[p])}, {p*9216 - (p&3)*1024}')
    for p in range(1, 4):
        g(f's_mov_b32 {sr(sWC[p])}, {p*31744}')
    g(f's_mul_i32 {sr(sW9K)}, {sr(sW)}, 9216')
    g(f's_lshl_b32 {sr(sW1K)}, {sr(sW)}, 10')
    g(f's_lshl_b32 {sr(sW4K)}, {sr(sW)}, 12')
    g(f'v_and_b32 {t(2)}, 3, {t(1)}')
    g(f'v_bfe_u32 {t(3)}, {t(1)}, 2, 2')
    g(f'v_lshrrev_b32 {t(4)}, 4, {t(1)}')
    g(f'v_lshlrev_b32 {t(8)}, 6, {t(4)}')
    g(f'v_lshl_add_u32 {t(8)}, {t(2)}, 4, {t(8)}')
    g(f'v_lshl_add_u32 {t(9)}, {t(3)}, 13, {t(8)}')
    g(f'v_lshl_add_u32 {vr(vW0)}, {t(0)}, 17, {t(9)}')
    g(f'v_xor_b32 {vr(vW1)}, 48, {vr(vW0)}')
    g(f'v_bfe_u32 {t(7)}, {t(1)}, 2, 3')
    g(f'v_mul_u32_u24 {t(9)}, 72, {t(0)}')
    g(f'v_add_u32 {t(9)}, {t(9)}, {t(7)}')
    g(f'v_mul_u32_u24 {t(9)}, 1152, {t(9)}')
    g(f'v_and_b32 {t(6)}, 1, {t(0)}')
    g(f'v_lshlrev_b32 {t(10)}, 1, {t(6)}')
    g(f'v_xor_b32 {t(10)}, {t(10)}, {t(2)}')
    g(f'v_lshl_add_u32 {t(9)}, {t(10)}, 4, {t(9)}')
    g(f'v_lshrrev_b32 {t(5)}, 5, {t(1)}')
    g(f'v_lshl_add_u32 {vr(vXvo)}, {t(5)}, 6, {t(9)}')
    g(f'v_xor_b32 {vr(vXvo1)}, 32, {vr(vXvo)}')
    if OPT['qp'] > 1:
        g('s_lshr_b32 s6, s2, 5'); g('s_bfe_u32 s5, s2, 0x20003'); g('s_add_u32 s5, s5, s6')
        if OPT['qp'] == 3:
            g('s_mul_i32 s6, s5, 11'); g('s_lshr_b32 s6, s6, 5'); g('s_mul_i32 s6, s6, 3'); g('s_sub_u32 s5, s5, s6')
            g('s_cmp_eq_u32 s5, 2'); g('s_cselect_b32 s45, -2, 1')
            g('s_cmp_eq_u32 s5, 1'); g('s_cselect_b32 s46, -2, 1')
            g('s_cmp_eq_u32 s5, 0'); g('s_cselect_b32 s47, 1, 4')
        else:
            g('s_and_b32 s5, s5, 1')
            g('s_cselect_b32 s45, -1, 1'); g('s_cselect_b32 s46, 3, 1'); g('s_cselect_b32 s47, 2, 1')
        for k in (45, 46, 47):
            g(f's_lshl_b32 s{k}, s{k}, 7')
        g('s_lshl_b32 s6, s5, 7'); g('s_lshl_b32 s5, s5, 19')
        g(f'v_add_u32 {vr(vXvo)}, s6, {vr(vXvo)}'); g(f'v_add_u32 {vr(vXvo1)}, s6, {vr(vXvo1)}')
        g(f'v_add_u32 {vr(vW0)}, s5, {vr(vW0)}'); g(f'v_add_u32 {vr(vW1)}, s5, {vr(vW1)}')
    g('s_mul_i32 s6, s3, 331776')
    g('s_lshl_b32 s7, s4, 8')
    g(f's_mov_b32 {sr(sX+2)}, {331776-1024 if OPT["qp"] == 1 else 331776}')
    g(f's_mov_b32 {sr(sX+3)}, 0x20000')
    g(f's_mov_b32 {sr(sWQ+2)}, {63*8192+256 if OPT["qp"] == 1 else 575*8192+256}')
    g(f's_mov_b32 {sr(sWQ+3)}, 0x20000')
    wait_at = len(g.L)
    g('s_waitcnt lgkmcnt(0)')
    stamp(g, 3)
    g(f's_add_u32 {sr(sX)}, s28, s6')
    g(f's_addc_u32 {sr(sX+1)}, s29, 0')
    g(f's_add_u32 {sr(sWQ)}, s34, s7')
    g(f's_addc_u32 {sr(sWQ+1)}, s35, 0')
    if OPT['dbg'] in (3, 4):
        g('s_mov_b32 s20, s94'); g('s_mov_b32 s21, s95'); g('s_mov_b32 s22, 256'); g('s_mov_b32 s23, 0x20000')
        g(f's_not_b32 s5, {sr(sRT)}'); g('v_mov_b32 v21, s5')
        g(f's_cmp_lg_u32 {sr(sW)}, 0'); g('s_cselect_b32 s22, 0, s22')
        g('s_mov_b64 exec, 1')
        g('buffer_atomic_umax v21, off, s[20:23], 0 offset:128 sc1')
        g('s_mov_b64 exec, -1')
    g.many(qchunk_dma(0))
    stamp(g, 2)
    weave_from = len(g.L)
    g('s_lshl_b32 s5, s3, 5')
    g('s_add_u32 s5, s5, s4')
    g('s_lshl_b32 s6, s5, 19')
    g(f's_add_u32 {sr(sK)}, s30, s6')
    g(f's_addc_u32 {sr(sK+1)}, s31, 0')
    g(f's_mov_b32 {sr(sK+2)}, 524288')
    g(f's_mov_b32 {sr(sK+3)}, 0x20000')
    g(f's_add_u32 {sr(sV)}, s32, s6')
    g(f's_addc_u32 {sr(sV+1)}, s33, 0')
    g(f's_sub_u32 {sr(sV)}, {sr(sV)}, 16384')
    g(f's_subb_u32 {sr(sV+1)}, {sr(sV+1)}, 0')
    g(f's_mov_b32 {sr(sV+2)}, {524288+16384}')
    g(f's_mov_b32 {sr(sV+3)}, 0x20000')
    g(f's_mul_i32 s5, s3, {18*131072}')
    g('s_lshl_b32 s6, s4, 12')
    g('s_add_u32 s5, s5, s6')
    g(f's_add_u32 {sr(sO)}, s36, s5')
    g(f's_addc_u32 {sr(sO+1)}, s37, 0')
    g(f's_mov_b32 {sr(sO+2)}, {17*131072+4096}')
    g(f's_mov_b32 {sr(sO+3)}, 0x20000')
    g(f'v_lshlrev_b32 {vr(vL16)}, 4, {t(1)}')
    g(f'v_lshl_add_u32 {t(9)}, {t(3)}, 8, {t(8)}')
    g(f'v_lshl_add_u32 {vr(vKV0)}, {t(0)}, 12, {t(9)}')
    g(f'v_xor_b32 {vr(vKV1)}, 48, {vr(vKV0)}')
    g(f'v_and_b32 {t(11)}, 1, {t(4)}')
    g(f'v_lshl_or_b32 {t(12)}, {t(11)}, 1, {t(5)}')
    g(f'v_and_b32 {t(13)}, 1, {t(3)}')
    g(f'v_mul_u32_u24 {t(13)}, 3, {t(13)}')
    g(f'v_xor_b32 {t(12)}, {t(12)}, {t(13)}')
    g(f'v_lshlrev_b32 {t(12)}, 4, {t(12)}')
    g(f'v_lshl_add_u32 {t(12)}, {t(2)}, 6, {t(12)}')
    g(f'v_lshl_add_u32 {t(12)}, {t(3)}, 10, {t(12)}')
    g(f'v_lshl_add_u32 {vr(vKb)}, {t(6)}, 13, {t(12)}')
    g(f'v_xor_b32 {vr(vKb+1)}, 8192, {vr(vKb)}')
    g(f'v_mul_u32_u24 {t(13)}, 3, {t(11)}')
    g(f'v_lshrrev_b32 {t(14)}, 1, {t(2)}')
    g(f'v_xor_b32 {t(13)}, {t(13)}, {t(14)}')
    g(f'v_lshlrev_b32 {t(13)}, 4, {t(13)}')
    g(f'v_and_b32 {t(14)}, 1, {t(2)}')
    g(f'v_lshl_add_u32 {t(13)}, {t(14)}, 3, {t(13)}')
    g(f'v_lshl_add_u32 {t(13)}, {t(3)}, 6, {t(13)}')
    g(f'v_lshl_add_u32 {t(14)}, {t(4)}, 10, {t(13)}')
    g(f'v_lshl_add_u32 {vr(vVb)}, {t(6)}, 13, {t(14)}')
    g(f'v_xor_b32 {vr(vVb+1)}, 8192, {vr(vVb)}')
    g(f'v_lshl_add_u32 {t(14)}, {t(4)}, 11, {t(13)}')
    g(f'v_lshl_add_u32 {t(14)}, {t(6)}, 9, {t(14)}')
    g(f'v_add_u32 {vr(vWa)}, {XB}, {t(14)}')
    g(f'v_xor_b32 {vr(vWa+1)}, 32, {vr(vWa)}')
    g(f'v_xor_b32 {vr(vWa+2)}, 512, {vr(vWa)}')
    g(f'v_xor_b32 {vr(vWa+3)}, 512, {vr(vWa+1)}')
    g(f'v_bfe_u32 {t(14)}, {t(1)}, 3, 1')
    g(f'v_lshlrev_b32 {t(15)}, 1, {t(14)}')
    g(f'v_xor_b32 {t(15)}, {t(15)}, {t(4)}')
    g(f'v_lshlrev_b32 {t(15)}, 4, {t(15)}')
    g(f'v_lshl_add_u32 {t(15)}, {t(14)}, 10, {t(15)}')
    g(f'v_and_b32 {t(14)}, 7, {t(1)}')
    g(f'v_lshl_add_u32 {t(15)}, {t(14)}, 6, {t(15)}')
    g(f'v_lshl_add_u32 {vr(vXa)}, {t(0)}, 13, {t(15)}')
    g(f'v_lshrrev_b32 {t(14)}, 1, {t(0)}')
    g(f'v_lshl_add_u32 {t(15)}, {t(14)}, 11, {t(15)}')
    g(f'v_add_u32 {vr(vXc)}, 32768, {t(15)}')
    cs = f2u(math.log2(math.e) / math.sqrt(128.0))
    g(f's_mov_b32 {sr(sC)}, {cs:#x}')
    g(f's_mov_b32 {sr(sC+1)}, {cs:#x}')
    g(f's_lshl_b32 {sr(sB4)}, s3, 2')
    g(f's_mov_b32 {sr(sThr)}, {f2u(-1.0 if OPT["force_fallback"] else 2.0**24):#x}')
    g(f'v_cmp_eq_u32 vcc, 0, {t(2)}')
    g(f'v_mov_b32 {t(14)}, 0x3f803f80')
    g('s_nop 0')
    g(f'v_cndmask_b32 {t(14)}, 0, {t(14)}, vcc')
    for r in range(4):
        g(f'v_accvgpr_write_b32 {ar(aONE+r)}, {t(14)}')
    for r in range(180):
        g(f'v_accvgpr_write_b32 {ar(aO+r)}, 0')
    g.c('---- Q projection: Q^T = wq_h^T x_b^T, 9 chunks of 64, 3-deep LDS ring')
    def xread(j, X, i):
        a = vXa if X < 4 else vXc
        off = i*512 + (X*2048 if X < 4 else 0)
        return (f'ds_read_b128 {vr(vQ+40*(j&1)+8*X+4*i,4)}, {vr(a)} offset:{off}', ('X', j & 1, X, i))
    def wread(tau, i, jj):
        return (f'ds_read_b64_tr_b16 {ar(aV+8*(tau&3)+4*i+2*jj,2)}, {vr(vWa+2*(tau>>2)+(tau&1))} offset:{i*8192+jj*1024+((tau>>1)&1)*256}', ('W', tau & 3, i))
    wr = lambda tau: [wread(tau, i, jj) for i in range(2) for jj in range(2)]
    xr = lambda j, X: [xread(j, X, i) for i in range(2)]
    Sched.vc = OPT['qvc']
    s = Sched(cap=OPT['qcap'])
    gs = {}
    def acc(X, tau):
        return vACC + 32*X + 4*tau
    for j in range(9):
        for tau in range(8):
            gs[(j, tau)] = len(s.mf)
            for X in range(5 if tau < 4 else 4):
                for i in range(2):
                    d = vr(acc(X, tau), 4)
                    s.add(f'{MF} {d}, {ar(aV+8*(tau&3)+4*i,4)}, {vr(vQ+40*(j&1)+8*X+4*i,4)}, {d if (j or i) else 0}',
                          [('W', tau & 3, i), ('X', j & 1, X, i)])
    def weave(dma, lo, hi, sp):
        gq = lo
        k = 0
        while k < len(dma):
            x = dma[k]
            if x == 's_nop 0':
                gq += 1
            elif x.startswith('s_add_u32') and k + 1 < len(dma) and dma[k+1].startswith('s_addc'):
                while s.load(gq) > 0 and gq < hi:
                    gq += 1
                s.put(gq, x); s.put(gq, dma[k+1]); k += 1
            else:
                gq = s.place(x, gq, hi)
                if x.startswith('buffer'):
                    gq += sp if not (k + 1 < len(dma) and dma[k+1].startswith('s_')) else max(sp - 2, 1)
            k += 1
        return gq
    NT_ = 2 if OPT['touch'] else 0
    dmas = []
    pre = xr(0, 0) + wr(0) + xr(0, 1) + xr(0, 2) + xr(0, 3) + xr(0, 4) + wr(1) + wr(2)
    for j in range(9):
        b0 = gs[(j, 0)]
        for tau in range(3, 8):
            lo = gs[(j, tau - 3)] + 1
            s.seq(wr(tau), lo, lo + 7)
        bar = b0 + 52
        vm = (13 + (NT_ if j == 0 else 0)) if j + 1 <= 7 else (4 if j + 1 == 8 else None)
        s.put(bar, 's_waitcnt ' + (f'vmcnt({vm}) ' if vm is not None else '') + 'lgkmcnt(0)')
        s.put(bar, 's_barrier')
        if j < 8:
            dlt = QBUF if ((j + 1) % 3) else (-2*QBUF) & 0xffffffff
            s.seq([f'v_add_u32 {vr(rg)}, {dlt:#x}, {vr(rg)}' for rg in (vXa, vWa, vWa+1, vXc, vWa+2, vWa+3)], bar - 5, bar - 1)
            gq = s.seq(xr(j+1, 0) + wr(0) + xr(j+1, 1) + xr(j+1, 2) + xr(j+1, 3) + xr(j+1, 4), bar + 1, bar + 12)
            gq = s.seq(wr(1), max(gq, gs[(j, 6)] + 1), b0 + 71)
            s.seq(wr(2), max(gq, gs[(j, 7)] + 1), b0 + 71)
        if j + 3 <= 8:
            dma = qchunk_dma(j + 3)
        elif j == 6:
            dma = pair_const(0)
        elif j == 7:
            dma = pair_const(1)
        else:
            dma = sum((pair_const(u) for u in range(2, PD)), [])
        if j < 8:
            dmas.append((dma, bar + 1, bar + 70, OPT['qsp'] if j < 6 else 7))
        else:
            lastdma = dma
    body = [x.strip() for x in g.L[weave_from:]]
    del g.L[weave_from:]
    first_acc = next(k for k, x in enumerate(body) if 'v_accvgpr_write_b32 a0,' in x)
    head, accw = body[:first_acc], [x for x in body[first_acc:] if x.startswith('v_')]
    hv = [x for x in head if x.startswith('v_') or x.startswith('s_nop')]
    hs = [x for x in head if not (x.startswith('v_') or x.startswith('s_nop'))]
    g.L[wait_at:wait_at] = ['    ' + x for x in hv]
    d1 = qchunk_dma(1)
    k1 = 0
    while d1 and (k1 < OPT['n1'] or OPT['n1'] == 13):
        x = d1.pop(0); g(x)
        k1 += x.startswith('buffer')
    if OPT['touch']:
        g.c('L2 warm-up: one touch per 128-byte line of this workgroup share of the later x / wq chunks')
        g(f's_sub_u32 s28, {sr(sX)}, 256'); g(f's_subb_u32 s29, {sr(sX+1)}, 0'); g('s_mov_b32 s30, 331776'); g('s_mov_b32 s31, 0x20000')
        g(f's_mov_b32 s32, {sr(sWQ)}'); g(f's_mov_b32 s33, {sr(sWQ+1)}'); g(f's_mov_b32 s34, {447*8192+256}'); g('s_mov_b32 s35, 0x20000')
        g('v_mul_u32_u24 v18, 1821, v0')
        g('v_lshrrev_b32 v18, 16, v18')
        g('v_mul_u32_u24 v19, 36, v18')
        g('v_sub_u32 v19, v0, v19')
        g('v_mul_u32_u24 v19, 1152, v19')
        g('v_lshl_add_u32 v19, v18, 7, v19')
        g('s_lshr_b32 s5, s2, 5'); g(f's_mul_i32 s5, s5, {36*1152}'); g('s_add_u32 s5, s5, 256')
        g('v_lshrrev_b32 v18, 1, v0')
        g('v_lshlrev_b32 v18, 15, v18')
        g('v_and_b32 v20, 1, v0')
        g('v_lshl_add_u32 v18, v20, 7, v18')
        g('s_bfe_u32 s6, s2, 0x20003'); g('s_lshl_b32 s6, s6, 13')
        g('buffer_load_dword v20, v19, s[28:31], s5 offen')
        g('buffer_load_dword v23, v18, s[32:35], s6 offen')
    assert weave(d1 + qchunk_dma(2), 0, 51, 3 if not d1 else 1) <= 52
    for d_, lo_, hi_, sp_ in dmas:
        e_ = weave(d_, lo_, hi_, sp_)
        assert e_ <= hi_ + 8, (e_, hi_)
    tile_consts = [[f's_mul_i32 {sr(sQG)}, s4, 57'], [f's_lshr_b32 {sr(sQG)}, {sr(sQG)}, 9'],
          [f's_mul_i32 s6, {sr(sQG)}, 9'], [f's_sub_u32 {sr(sNG)}, s4, s6'],
          [f's_mul_i32 {sr(sRot)}, {sr(sQG)}, 3'], [f's_add_u32 {sr(sRot)}, {sr(sRot)}, {sr(sNG)}'],
          [f's_mul_i32 {sr(sRot)}, {sr(sRot)}, {(8*256)//9 + 1}'], [f's_lshr_b32 {sr(sRot)}, {sr(sRot)}, 8'],
          [f's_lshl_b32 s5, {sr(sNG)}, 7'],
          [f's_add_u32 {sr(sX)}, s96, s5', f's_addc_u32 {sr(sX+1)}, s97, 0'],
          [f's_sub_u32 {sr(sX+2)}, {4096*1152}, s5'],
          [f's_cmp_ge_u32 {sr(sQG)}, 3', f's_cselect_b32 {sr(sX+2)}, 0, {sr(sX+2)}']]
    for k in range(8):
        tile_consts += [[f's_add_u32 s4, {sr(sRot)}, {k}'], ['s_and_b32 s4, s4, 7'], [f's_mul_i32 {sr(sRW[k])}, s4, 36864']]
    tile_consts += [['s_mul_i32 s7, s3, 3'], [f's_add_u32 s7, s7, {sr(sQG)}'], [f's_mul_i32 s4, s7, {6*131072}'],
           [f's_add_u32 {sr(sWQ)}, s36, s4', f's_addc_u32 {sr(sWQ+1)}, s37, 0'],
           [f's_mul_i32 s4, s7, {96*1152}'], [f's_add_u32 {sr(sW9K)}, s4, s5'], ['s_lshl_b32 s3, s3, 2']]
    pc = [[f's_mov_b32 {sr(sPass)}, 0'], ['s_lshr_b32 s4, s2, 3'], ['s_and_b32 s3, s2, 7']] + tile_consts + \
         [[f's_mov_b32 {sr(sWQ+2)}, {6*131072}'],
          [f's_mov_b32 {sr(sDB)}, s94'], [f's_mov_b32 {sr(sDB+1)}, s95'], [f's_mov_b32 {sr(sDB+2)}, 256'], [f's_mov_b32 {sr(sDB+3)}, 0x20000']]
    pv_ = [f'v_bfe_u32 v18, {vr(vL16)}, 6, 3', f'v_add_u32 v20, {sr(sW1K)}, v18', 'v_mul_u32_u24 v20, 1152, v20',
           f'v_lshrrev_b32 v19, 9, {vr(vL16)}', 'v_lshl_add_u32 v20, v19, 6, v20',
           'v_lshlrev_b32 v18, 6, v18', 'v_lshl_add_u32 v18, v19, 10, v18',
           f'v_bfe_u32 v19, {vr(vL16)}, 8, 1', 'v_lshlrev_b32 v19, 5, v19', 'v_add_u32 v18, v18, v19',
           f'v_and_b32 v17, 48, {vr(vL16)}', 'v_xor_b32 v19, v19, v17', f'v_add_u32 {vr(vWo[0])}, v19, v20']
    pv_ += [f'v_add_u32 {vr(vWo[p])}, {8192*p}, {vr(vWo[0])}' for p in range(1, 4)]
    pv_ += ['v_lshrrev_b32 v17, 1, v17', 'v_add_u32 v17, v17, v18', f'v_add_u32 {vr(vRb)}, {sr(sW4K)}, v17']
    stamp(g, 2)
    g(f's_waitcnt vmcnt({OPT["n1"] + NT_})')
    g('s_barrier')
    stamp(g, 3)
    if OPT['stamp'] & 2:
        for j in (1, 2, 3, 4, 6, 7, 8):
            s.put(gs[(j, 0)], f's_memtime {sr(sST + 2*nstamp[0], 2)}')
            nstamp[0] += 1
    g.many([x for x, _ in pre])
    gq = gs[(8, 0)] + 53
    while lastdma and gq < len(s.mf):
        x = lastdma.pop(0)
        s.put(gq, x)
        if x.startswith('buffer'):
            gq += 5
    s.resolve(pending=[(tag, -8) for _, tag in pre], look=5, mind=4)
    Sched.vc = 2
    grps = []
    for x in hs:
        if x.startswith('s_addc') or x.startswith('s_subb'):
            grps[-1].append(x)
        else:
            grps.append([x])
    gq = gs[(1, 0)]
    for grp in grps:
        while s.load(gq) + len(grp) > 2:
            gq += 1
        for x in grp:
            s.put(gq, x)
    assert gq < gs[(5, 0)]
    assert s.seq(accw, gs[(2, 0)], gs[(7, 0)] - 1) < gs[(7, 0)]
    gq = gs[(7, 0)]
    for grp in pc:
        while s.load(gq) + len(grp) > 2:
            gq += 1
        for x in grp:
            s.put(gq, x)
    assert gq < gs[(8, 0)] + 50
    s.seq(pv_, gs[(7, 0)], gs[(8, 0)] + 60)
    print('qproj', s.loads()[144:300], file=sys.stderr)
    s.emit(g)
    stamp(g, 7)
    g.c('---- scale by log2(e)/sqrt(128), round to bf16, exchange the shared tile')
    def conv(srcA, dst):
        for k in range(4):
            g(f'v_pk_mul_f32 {vr(srcA+2*k,2)}, {vr(srcA+2*k,2)}, {sr(sC,2)}')
        for k in range(4):
            g(f'v_cvt_pk_bf16_f32 {vr(dst+k)}, {vr(srcA+2*k)}, {vr(srcA+2*k+1)}')
    def swaps(dst):
        g(f'v_permlane16_swap_b32 {vr(dst)}, {vr(dst+2)}')
        g(f'v_permlane16_swap_b32 {vr(dst+1)}, {vr(dst+3)}')
    conv(acc(4, 0), vQ + 64)
    conv(acc(4, 2), vQ + 68)
    g(f's_lshl_b32 {sr(sT2)}, {sr(sW)}, 11')
    g(f's_add_u32 {sr(sT2)}, {sr(sT2)}, {EXCH}')
    g(f'v_add_u32 v19, {sr(sT2)}, {vr(vL16)}')
    swaps(vQ + 64); swaps(vQ + 68)
    g(f's_and_b32 {sr(sT2)}, {sr(sT2)}, {~4095 & 0xffffffff:#x}')
    g(f'v_add_u32 {vr(18)}, {sr(sT2)}, {vr(vL16)}')
    g(f'ds_write_b128 v19, {vr(vQ+64,4)}')
    g(f'ds_write_b128 v19, {vr(vQ+68,4)} offset:1024')
    g(f's_mov_b32 {sr(sSlot)}, 0')
    g.many(addr_update())
    stamp(g, 4)
    g(f's_bitcmp1_b32 {sr(sW)}, 0')
    g('s_cbranch_scc1 L1_conv_odd')
    for p in range(2):
        prev = None
        ld = list(lastdma)
        for X in range(4):
            for il in range(4):
                dst = vQ + 16*X + 4*(il ^ (2*p))
                if X == 1 and il == 0:
                    g('s_waitcnt vmcnt(13) lgkmcnt(0)')
                    g('s_barrier')
                    for kt in range(2):
                        for i in range(4):
                            g(kread(kt, i))
                    for i in range(4):
                        g(f'ds_read_b128 {vr(vQ+64+4*i,4)}, {vr(18)} offset:{i*1024}')
                if il % (4 if PD == 3 else 1) == 0:
                    while ld:
                        x = ld.pop(0); g(x)
                        if x.startswith('buffer'):
                            break
                conv(acc(X, 2*il), dst)
                if prev is not None:
                    swaps(prev)
                prev = dst
        g('s_nop 1')
        swaps(prev)
        g.many(ld)
        if p == 0:
            g('s_branch L1_conv_done')
            g.label('L1_conv_odd')
    g.label('L1_conv_done')
    vR = vT
    vM = vT + 20
    for X in range(5):
        g(f'v_mov_b32 {vr(vM+X)}, 0xff800000')
    g(f's_lshl_b32 s4, {sr(sW)}, 8')
    g('s_add_u32 s4, s4, s2')
    g('s_lshr_b32 s4, s4, 3')
    g('s_cmp_eq_u32 s4, 31')
    g(f's_cselect_b32 {sr(sHook0)}, 7, 13')
    stamp(g, 5)
    g.label('L1_main')
    g.c('entry: pair 0 visible, K fragments of key tiles 0, 1 on their way, pairs 1, 2 issued, O = l = 0, seed maxima in place.')
    g.c('The subtracted value m is the exact max over the first 16 keys this wave sees (first pass, checked at the end)')
    g.c('or the true row max (seed from the fallback scan).')
    Sched.vc = 1; Sched.kc = 1; Sched.d2 = 0
    squad = lambda c: vR + 4*c if c < 5 else (vP + 40 + 4*(c - 5) if c < 15 else vS + 4*(c - 15))
    s = Sched(cap=3)
    for c in range(18):
        for i in range(4):
            s.add(*qk_mf(c, i, '0' if c < 10 else None, squad(c)))
    init = [f's_mov_b32 {sr(sOff)}, {PD*16384}', f's_mov_b32 {sr(sCnt)}, 0', f's_mov_b32 {sr(sHook)}, {sr(sHook0)}']
    if not OPT['dyn']:
        init[2:] = [f's_mov_b32 {sr(sHook)}, 15']
    if WT or OPT['zt']:
        init += [f's_mov_b32 {sr(sTo)}, {(-(30*WT - OPT["wtn"])*4096*OPT["wl"]) & 0xffffffff:#x}',
                 f's_mov_b32 {sr(sWT)}, s96', f's_mov_b32 {sr(sWT+1)}, s97', f's_mov_b32 {sr(sWT+2)}, 0', f's_mov_b32 {sr(sWT+3)}, 0x20000',
                 f's_mov_b32 {sr(sTo+1)}, 0', f's_mul_i32 s4, {sr(sW)}, 1179648', 's_lshr_b32 s5, s2, 3', f's_mul_i32 s5, s5, {128*OPT["wl"]}',
                 's_add_u32 s4, s4, s5', f'v_lshlrev_b32 {vr(vTo)}, 3, {vr(vL16)}', f'v_add_u32 {vr(vTo)}, s4, {vr(vTo)}']
        if OPT['wl'] < 64:
            init += [f'v_cmp_gt_u32 vcc, {16*OPT["wl"]}, {vr(vL16)}', 'v_mov_b32 v23, 0x40000000', 'v_nop', f'v_cndmask_b32 {vr(vTo)}, v23, {vr(vTo)}, vcc']
    s.cap = 2
    s.seq(init + dst_update() + slot_update(), 0, 18)
    s.cap = 3
    s.seq([(kread(2, i), ('K', 0, i)) for i in range(4)], 21, 28, 1)
    s.seq([(kread(3, i), ('K', 1, i)) for i in range(4)], 41, 48, 1)
    BARP = 58
    s.put(BARP, f's_waitcnt vmcnt({8*(PD-2)}) lgkmcnt(0)')
    s.put(BARP, 's_barrier')
    s.seq(addr_update(), BARP - 8, BARP - 1, 1)
    s.seq([(kread(0, i), ('K', 0, i)) for i in range(4)] +
          [(vread(dt, a, jj), ('V', dt, a)) for dt in range(2) for a in range(2) for jj in range(2)], BARP + 1, 71, 1)
    ops = []
    def op(text, lo=0, deps=()):
        ops.append([text, lo, list(deps), None])
        return len(ops) - 1
    mdone = {}
    def score(c):
        ex, cv = softmax_ops(c, 0, squad(c))
        e = []
        for r in range(4):
            d = []
            if c < 10:
                d = [(op(f'v_sub_f32 {vr(squad(c)+r)}, {vr(squad(c)+r)}, {vr(vM+CHAINS[c][1])}', 4*c + 11, [(mdone[CHAINS[c][1]], 0)]), 0)]
            e.append(op(ex[r], 4*c + 11, d))
        op(cv[0], 0, [(e[0], 1), (e[1], 1)])
        op(cv[1], 0, [(e[2], 1), (e[3], 1)])
    for X in range(5):
        p = op(f'v_max3_f32 {vr(vM+X)}, {vr(vM+X)}, {vr(vR+4*X)}, {vr(vR+4*X+1)}', 4*X + 11)
        p = op(f'v_max3_f32 {vr(vM+X)}, {vr(vM+X)}, {vr(vR+4*X+2)}, {vr(vR+4*X+3)}', 0, [(p, 0)])
        for sw in ('v_permlane32_swap_b32', 'v_permlane16_swap_b32'):
            p = op(f'v_mov_b32 {vr(vM+5+X)}, {vr(vM+X)}', 0, [(p, 0)])
            p = op(f'{sw} {vr(vM+5+X)}, {vr(vM+X)}', 0, [(p, 2)])
            p = op(f'v_max_f32 {vr(vM+X)}, {vr(vM+X)}, {vr(vM+5+X)}', 0, [(p, 0)])
        mdone[X] = p
    negs = [op(f'v_sub_f32 {vr(vNEG+4*X+r)}, 0, {vr(vM+X)}', 0, [(mdone[X], 0)]) for X in range(5) for r in range(4)]
    for c in range(18):
        score(c)
    nm = len(s.mf)
    for gq in range(nm):
        for o in ops:
            if o[3] is None and gq >= o[1] and all(ops[d][3] is not None and gq - ops[d][3] >= k for d, k in o[2]) \
               and s.load(gq) + s.cost(o[0]) <= OPT['fc']:
                o[3] = s.put(gq, o[0])
    for k, n_ in enumerate(negs):
        assert ops[n_][3] is not None and ops[n_][3] < 40 + (k // 4)*4 - 1
    left = [o[0] for o in ops if o[3] is None]
    assert all(x.startswith('v_exp') or x.startswith('v_cvt') for x in left)
    tailops = [x for x in left if x.startswith('v_exp')] + ['s_nop 0'] + [x for x in left if x.startswith('v_cvt')]
    print('first', s.loads(), len(tailops), file=sys.stderr)
    stA, BA = build_stage(0)
    stB, BB = build_stage(1)
    if True:
        assert PD == 3
        for k in range(WT):
            s.put(BARP + 1, wo_touch()[0])
        gq = s.place(f's_mov_b32 m0, {sr(sT1)}', BARP + 1, 71, cap=7) + 1
        for j in range(4):
            gq = s.place(dma_kv('K', j, sOff), gq, 71, cap=7) + 2
    g('s_waitcnt lgkmcnt(0)')
    pend = s.resolve(pending=[], look=5, mind=4)
    s.emit(g)
    g.many(tailops)
    g('s_waitcnt lgkmcnt(0)')
    import copy
    carry = []
    for it in range(2):
        a, b = copy.deepcopy(stA), copy.deepcopy(stB)
        c1 = a.resolve(pending=carry)
        carry2 = b.resolve(pending=c1)
        if it == 1:
            assert carry2 == carry, (carry, carry2)
        carry = carry2
    print('stageA', a.loads(), file=sys.stderr)
    print('stageB', b.loads(), file=sys.stderr)
    b.place(f's_add_u32 {sr(sCnt)}, {sr(sCnt)}, 1', 112, 148)
    b.put(150, f's_cmp_lt_u32 {sr(sCnt)}, {sr(sHook)}')
    assert not any(x[0].startswith('s_') and 'cmp' not in x[0] and 'wait' not in x[0] for x in b.gaps[150] + b.gaps[151] + b.gaps[152])
    stamp(g, 5)
    g.raw('.p2align 6')
    g.label('L1_loop')
    a.emit(g)
    b.emit(g)
    g('s_cbranch_scc1 L1_loop')
    g(f's_cmp_lg_u32 {sr(sCnt)}, 15')
    g('s_cbranch_scc1 L1_hook')
    g.label('L1_last')
    g.c('---- last stage: its free load slots bring in the first wo steps')
    Sched.vc = 1
    z, _ = build_stage(0, last=True)
    c1 = z.resolve(pending=carry)
    print('stageZ', z.loads(), len(z.left), file=sys.stderr)
    z.emit(g)
    stamp(g, 13)
    g.c('---- tail: PV of the last 64 keys, tile by tile, woven with normalisation and the O stores')
    s = Sched(cap=3)
    done = {}
    def addpv(X, dts):
        for dt in dts:
            for a_ in range(2 if X < 4 else 1):
                o = ar(aO + 32*X + 4*dt, 4)
                done[(X, dt)] = s.add(f'{MF} {o}, {ar(vfrag(dt,a_),4)}, {vr(Preg(1,X,a_),4)}, {o}', [('F', dt, a_)])
    def addsum(js):
        for j in js:
            done[('l', SUMS[j][0])] = s.add(*sum_mf(j, 1))
    addsum((0, 1)); addpv(0, (0, 1)); addsum(range(2, 9)); addpv(0, range(2, 8)); addpv(4, range(8))
    for X in (1, 2, 3):
        addpv(X, range(8))
    gl = s.seq(z.left, 0, 8) if z.left else 0
    gw = 0
    sO2, sOUT = sWQ, sK
    vRa = 11
    vl = vT + 32
    LAT = 4
    RF = OPT['RF']; NP = OPT['NP']; NS = 32; NB = OPT['NB']
    vOo, vOF = 5, 24
    vWF = vOF + 4*RF
    assert NP <= 10 + (256 - vWF) // 16 and NP % 2 == 0
    def wreg(st, k, n):
        sl = st % NP
        return ar(16*sl + k, n) if sl < 10 else vr(vWF + 16*(sl - 10) + k, n)
    def reads(st):
        r = RNG[st % 10]
        return [f'ds_read_b64_tr_b16 {wreg(st, 4*nt+2*jj, 2)}, {vr(vRa+2*(r>>2)+(nt&1))} offset:{(r&3)*16384+jj*2048+(nt>>1)*512}' for nt in range(4) for jj in range(2)]
    aC = 160
    TI = OPT['TI']
    vq = []
    seq = [('S', [f's_lshl_b32 s4, {sr(sW)}, 19', f's_add_u32 s5, s4, {131072}']),
           ('S', [f's_add_u32 s6, s4, {2*131072}', f's_add_u32 s7, s4, {3*131072}']),
           (done[('l', 0)] + LAT, f'v_accvgpr_read_b32 {vr(vl)}, {ar(aL)}'),
           (0, f'v_cmp_nle_f32_e64 vcc, {vr(vl)}, {sr(sThr)}'), (0, f'v_rcp_f32 {vr(vl)}, {vr(vl)}')]
    seq += [(gl + 1, f'v_mov_b32 {vr(vRa)}, {vr(vRb)}'), (0, f'v_xor_b32 {vr(vRa+1)}, 32, {vr(vRb)}')]
    seq += [(0, f'v_add_u32 {vr(vRa+2*k+e)}, {65536*k}, {vr(vRa+e)}') for k in (1, 2) for e in range(2)]
    extra = {n: [] for n in range(18)}
    for k in range(TI):
        rd = reads(k)
        if k == 0:
            extra[1] += [f's_waitcnt vmcnt({4*(NE-TI)+2})'] + rd
        else:
            extra[4*k - 1] += rd[:4]; extra[4*k] += rd[4:]
        w = wo_loads(10 + k)
        extra[4*k + 2] = ['s_waitcnt lgkmcnt(0)'] + w[:3] + extra[4*k + 2]
        for p in range(1, 4):
            extra[4*k + 2 + p] = [w[2 + p]] + extra[4*k + 2 + p]
    def track(n):
        vq.append(('s', 0))
        if any(y.startswith('buffer') for y in extra[n]):
            vq.append(('w', 10 + (n - 2)//4))
    vA = vQ
    wr_half = lambda h: [f'ds_write_b128 {vr(19)}, {ar(aO+128+16*h+4*k,4)} offset:{k*1024}' for k in range(4)]
    mid = {0: [(done[('l', X)] + LAT, f'v_accvgpr_read_b32 {vr(vl+X)}, {ar(aL+4*X)}') for X in range(1, 5)] +
              [(0, f'v_cmp_nle_f32_e64 {d}, {vr(vl+1+X)}, {sr(sThr)}') for X, d in enumerate(('s[40:41]', 's[100:101]', 's[28:29]', 's[30:31]'))] +
              [(0, f'v_rcp_f32 {vr(vl+X)}, {vr(vl+X)}') for X in range(1, 4)] +
              [('S', ['s_or_b64 s[40:41], s[40:41], vcc', 's_or_b64 s[40:41], s[40:41], s[100:101]', 's_or_b64 s[28:29], s[28:29], s[30:31]']),
               ('S', ['s_or_b64 s[40:41], s[40:41], s[28:29]', 's_cselect_b32 s28, 1, 0']),
               (0, 'v_mov_b32 v18, s28')],
           1: [(0, f'v_add_u32 {vr(19)}, {sr(sW4K)}, {vr(vL16)}'), (0, f'v_add_u32 {vr(19)}, {SLOT}, {vr(19)}'),
               (0, f'v_lshrrev_b32 {vr(20)}, 2, {vr(vL16)}'), (0, f'v_add_u32 {vr(22)}, {sr(sW4K)}, {vr(20)}'),
               ('S', [f'ds_write_b32 {vr(22)}, {vr(vl+4)}', f'ds_write_b32 {vr(22)}, {vr(vNEG+16)} offset:256', f'ds_write_b32 {vr(22)}, v18 offset:512'])],
           3: [(done[(4, 7)] + LAT, f'v_xor_b32 {vr(22)}, 4096, {vr(22)}'),
               ('S', [f's_bitcmp1_b32 {sr(sW)}, 0', 's_cbranch_scc1 L1_wr_odd'] + wr_half(1) + ['s_branch L1_wr_done', 'L1_wr_odd:'] + wr_half(0) + ['L1_wr_done:']),
               (0, f'v_xor_b32 {vr(19)}, 4096, {vr(19)}')],
           6: [('S', ['s_waitcnt lgkmcnt(0)', 's_barrier']),
               ('S', [f'ds_read_b32 {vr(vS+u)}, {vr(20)} offset:{u*4096+512}' for u in range(4)]),
               ('S', [f'ds_read_b32 {vr(vS+4)}, {vr(22)}', f'ds_read_b32 {vr(vS+5)}, {vr(22)} offset:256'])],
           8: [('S', ['s_waitcnt lgkmcnt(0)']),
               (0, f'v_or_b32 {vr(vS)}, {vr(vS)}, {vr(vS+1)}'), (0, f'v_or3_b32 {vr(vS)}, {vr(vS)}, {vr(vS+2)}, {vr(vS+3)}'),
               (0, f'v_min_f32 {vr(vS+6)}, {vr(vS+5)}, {vr(vNEG+16)}'),
               (0, f'v_readfirstlane_b32 {sr(sT0)}, {vr(vS)}'),
               (0, f'v_sub_f32 {vr(vS+8)}, {vr(vS+6)}, {vr(vNEG+16)}'), (0, f'v_sub_f32 {vr(vS+10)}, {vr(vS+6)}, {vr(vS+5)}'),
               ('S', [f's_andn2_b32 {sr(sT0)}, {sr(sT0)}, {sr(sPass)}', 's_cbranch_scc1 L1_fallback']),
               (0, f'v_exp_f32 {vr(vS+8)}, {vr(vS+8)}'), (0, f'v_exp_f32 {vr(vS+10)}, {vr(vS+10)}'),
               ('S', [f'ds_read_b128 {vr(vA+16+4*j,4)}, {vr(19)} offset:{j*1024}' for j in range(4)])],
           9: [(0, f'v_mul_f32 {vr(vS+6)}, {vr(vS+8)}, {vr(vl+4)}'), (0, f'v_fmac_f32 {vr(vS+6)}, {vr(vS+10)}, {vr(vS+4)}'),
               (0, f'v_rcp_f32 {vr(vS+6)}, {vr(vS+6)}')],
           10: [(0, f'v_mul_f32 {vr(vS+8)}, {vr(vS+8)}, {vr(vS+6)}'), (0, f'v_mul_f32 {vr(vS+10)}, {vr(vS+10)}, {vr(vS+6)}'),
               ('S', [f's_lshr_b32 s28, {sr(sW)}, 1', 's_lshl_b32 s28, s28, 17', f's_and_b32 s29, {sr(sW)}, 1']),
               ('S', ['s_lshl_b32 s29, s29, 11', 's_add_u32 s28, s28, s29', f's_add_u32 s28, s28, {16*131072}'])]}
    nf = 0
    for X in range(4):
        for i in range(4):
            rdy = done[(X, 2*i + 1)] + LAT
            b_ = vP + 8*(nf % 4); d = vT + 4*(nf % 8)
            seq += [(rdy, f'v_accvgpr_read_b32 {vr(b_+r)}, {ar(aO+32*X+8*i+r)}') for r in range(8)]
            for q in range(0, len(extra.get(nf - 1, [])), 4):
                seq += [('S', extra[nf - 1][q:q+4])]
            seq += [('M', b_, vl + X)]
            seq += [(rdy, f'v_cvt_pk_bf16_f32 {vr(d+k)}, {vr(b_+2*k)}, {vr(b_+2*k+1)}') for k in range(4)]
            seq += [('S', [f'buffer_store_dwordx4 {vr(d,4)}, {vr(vL16)}, {sr(sO,4)}, {sr(4+X)} offen offset:{i*1024}{pol("pos")}'])]
            track(nf)
            seq += mid.get(nf, [])
            nf += 1
    rest = []
    gq = 0
    nm = len(s.mf)
    TC = 5
    def putv(lo, x):
        nonlocal gq
        gq = max(gq, lo)
        while gq < nm and s.load(gq) + s.cost(x) > TC:
            gq += 1
        if gq >= nm:
            rest.append(x)
        else:
            s.put(gq, x)
    for item in seq:
        if item[0] == 'S':
            gq += 1
            if any('s_or_b64' in y for y in item[1]):
                gq = max(gq, gw + 1)
            if gq >= nm:
                rest += item[1]
            else:
                for y in item[1]:
                    s.put(gq, y)
        elif item[0] == 'M':
            b_, rc = item[1], item[2]
            if gq >= nm:
                sel = 'op_sel_hi:[1,0]' if rc % 2 == 0 else 'op_sel:[0,1]'
                rest += [f'v_pk_mul_f32 {vr(b_+2*k,2)}, {vr(b_+2*k,2)}, {vr(rc & ~1,2)} {sel}' for k in range(4)]
            else:
                for r in range(8):
                    putv(0, f'v_mul_f32 {vr(b_+r)}, {vr(b_+r)}, {vr(rc)}')
        else:
            putv(*item)
    if OPT['stamp'] & 8:
        for gp in (12, 24, 36, 48, 60, 72):
            s.put(gp, f's_memtime {sr(sST + 2*nstamp[0], 2)}')
            nstamp[0] += 1
    s.resolve(pending=c1)
    print('tail', s.loads(), len(rest), file=sys.stderr)
    g('s_nop 0')
    s.emit(g)
    stamp(g, 8)
    g.many(rest)
    stamp(g, 8)
    g(f's_bitcmp1_b32 {sr(sW)}, 0')
    g('s_cbranch_scc1 L1_rd_odd')
    for r in range(16):
        g(f'v_accvgpr_read_b32 {vr(vA+r)}, {ar(aO+128+r)}')
    g('s_branch L1_rd_done')
    g.label('L1_rd_odd')
    for r in range(16):
        g(f'v_accvgpr_read_b32 {vr(vA+r)}, {ar(aO+144+r)}')
    g.label('L1_rd_done')
    g.many(extra[15])
    g('s_waitcnt lgkmcnt(0)')
    for k in range(8):
        g(f'v_pk_mul_f32 {vr(vA+2*k,2)}, {vr(vA+2*k,2)}, {vr(vS+8,2)} op_sel_hi:[1,0]')
    for k in range(8):
        g(f'v_pk_fma_f32 {vr(vA+2*k,2)}, {vr(vA+16+2*k,2)}, {vr(vS+10,2)}, {vr(vA+2*k,2)} op_sel_hi:[1,0,1]')
    for k in range(8):
        g(f'v_cvt_pk_bf16_f32 {vr(vA+32+k)}, {vr(vA+2*k)}, {vr(vA+2*k+1)}')
    g(f'buffer_store_dwordx4 {vr(vA+32,4)}, {vr(vL16)}, {sr(sO,4)}, s28 offen{pol("pos")}')
    g.many(extra[16]); track(16)
    g(f'buffer_store_dwordx4 {vr(vA+36,4)}, {vr(vL16)}, {sr(sO,4)}, s28 offen offset:1024{pol("pos")}')
    g.many(extra[17]); track(17)
    stamp(g, 13)
    def vwait(tags):
        idx = [k for k, tg in enumerate(vq) if tg in tags]
        return len(vq) - 1 - idx[-1] if idx else None
    g.c('wo fragments move into registers; their LDS ranges are refilled behind the stores')
    g(f's_waitcnt vmcnt({len(vq)})')
    g.many(reads(TI))
    NB = min(TI + NB, NE - 1)
    for st in range(TI, NB):
        g.many(reads(st + 1))
        g('s_waitcnt lgkmcnt(8)')
        g.many(wo_loads(st + 10))
        vq += [('w', st + 10)] * 4
    g.c('---- hand-off: every O store (write-through) of every wave has completed, then one counter add per workgroup')
    g('v_mov_b32 v19, 1')
    g(f's_waitcnt vmcnt({vwait([("s", 0)])})')
    stamp(g, 13)
    g('s_barrier')
    g(f's_cmp_lg_u32 {sr(sW)}, 0')
    g('s_cbranch_scc1 L1_nosig')
    if OPT['ssig']:
        g('s_mov_b32 s100, 1')
        g(f's_atomic_add s100, {sr(sDB,2)}, {sr(sB4)}' + (' glc' if OPT['ssig'] == 2 else ''))
    else:
        g('s_mov_b64 exec, 1')
        g(f'buffer_atomic_add v19, off, {sr(sDB,4)}, {sr(sB4)} sc1')
        g('s_mov_b64 exec, -1')
    g.label('L1_nosig')
    def publish(tag):
        g(f's_cmp_lg_u32 {sr(sW)}, 0')
        g(f's_cbranch_scc1 L1_pub{tag}')
        g('s_waitcnt lgkmcnt(0)')
        g('s_cmp_lg_u32 s100, 31')
        g(f's_cbranch_scc1 L1_pub{tag}')
        g(f's_add_u32 s101, {sr(sB4)}, 128')
        g('s_mov_b32 s100, 32')
        g(f's_atomic_add s100, {sr(sDB,2)}, s101')
        g.label(f'L1_pub{tag}')
    g(f's_cmp_lt_u32 {sr(sQG)}, 3')
    g('s_cbranch_scc1 L1_work')
    if OPT['ssig'] == 2:
        publish('A')
    g('s_branch ' + ('L1_fin' if OPT['stamp'] else 'L1_done'))
    g.label('L1_work')
    for st in range(NE, 10):
        g.many(wo_loads(st))
        vq += [('w', st)] * 4
    misc = [f's_lshl_b32 s4, {sr(sW)}, 15', f'v_add_u32 {vr(vOo)}, s4, {vr(vL16)}']
    misc += [f'v_add_u32 {vr(vOo+X)}, {X*131072}, {vr(vOo)}' for X in range(1, 6)]
    sRO = list(range(24, 32))
    for k in range(8):
        misc += [f's_add_u32 s4, {sr(sRot)}, {k}', 's_and_b32 s4, s4, 7', f's_lshl_b32 {sr(sRO[k])}, s4, 10']
    g(f's_add_u32 {sr(sOUT)}, s98, {sr(sW9K)}'); g(f's_addc_u32 {sr(sOUT+1)}, s99, 0'); g(f's_sub_u32 {sr(sOUT+2)}, {2304*1152}, {sr(sW9K)}')
    order = list(range(NB, NE)) + list(range(10, 10 + NB)) + list(range(NE, 10)) + list(range(10 + NB, NP))
    n = vwait([('w', order[1])])
    if n is not None:
        g(f's_waitcnt vmcnt({n})')
    g.many(reads(order[1]))
    for k, st in enumerate(order):
        g('s_waitcnt lgkmcnt(8)' if k + 1 < len(order) else 's_waitcnt lgkmcnt(0)')
        if OPT['ssig'] == 2 and k == OPT['CK']:
            publish('B')
        w = wo_loads(st + 10) if st + 10 < NS else []
        rd = reads(order[k + 2]) if k + 2 < len(order) else []
        if k == len(order) - OPT['PQ'] // 2:
            if OPT['spoll']:
                g(f's_cmp_lg_u32 {sr(sW)}, 0')
                g('s_cbranch_scc1 L1_nopoll')
                g(f's_load_dword s101, {sr(sDB,2)}, s3 glc')
                g.label('L1_nopoll')
            else:
                g(f'buffer_load_dword v19, off, {sr(sDB,4)}, s3' + (' offset:128' if OPT['ssig'] == 2 else '') + ' sc1')
                vq.append(('p', 0))
        g.many(w[:3])
        vq += [('w', st + 10)] * (1 if w else 0)
        if rd:
            n = vwait([('w', order[k + 2])])
            if n is not None:
                g(f's_waitcnt vmcnt({n})')
        for p in range(3):
            g.many(rd[3*p:3*p+3])
            g.many(misc[:2]); misc = misc[2:]
            if w:
                g(w[3 + p]); vq.append(('w', st + 10))
    g.many(misc)
    stamp(g, 5)
    g(f's_cmp_lg_u32 {sr(sW)}, 0')
    g('s_cbranch_scc1 L1_go')
    g(f's_mov_b32 {sr(sCnt)}, 0')
    if OPT['spoll']:
        g.label('L1_poll')
        g('s_waitcnt lgkmcnt(0)')
        g('s_cmp_ge_u32 s101, 32')
        g('s_cbranch_scc1 L1_go')
        g(f's_add_u32 {sr(sCnt)}, {sr(sCnt)}, 1')
        g(f's_cmp_gt_u32 {sr(sCnt)}, 400000')
        g('s_cbranch_scc1 L1_go')
        g('s_sleep 1')
        g(f's_load_dword s101, {sr(sDB,2)}, s3 glc')
        g('s_branch L1_poll')
    else:
        g(f's_waitcnt vmcnt({vwait([("p", 0)])})')
        g.label('L1_poll')
        g('v_readfirstlane_b32 s4, v19')
        g(f's_add_u32 {sr(sCnt)}, {sr(sCnt)}, 1')
        g(f's_cmp_gt_u32 {sr(sCnt)}, 400000')
        g('s_cbranch_scc1 L1_go')
        g('s_cmp_ge_u32 s4, 32')
        g('s_cbranch_scc1 L1_go')
        g(f'buffer_load_dword v19, off, {sr(sDB,4)}, s3' + (' offset:128' if OPT['ssig'] == 2 else '') + ' sc1')
        g('s_sleep 1')
        g('s_waitcnt vmcnt(0)')
        g('s_branch L1_poll')
    g.label('L1_go')
    g('s_barrier')
    stamp(g, 5)
    g.c('---- output projection: 96 x 64 tile, K split over the 4 waves, two k-steps chained per accumulator')
    NF = 6*NS
    sKo = [4, 5, 6, 7]
    def o_load(f):
        pr, X, e = f // 12, (f % 12) >> 1, f & 1
        st = 2*pr + e
        so = sKo[st & 3]
        pre = [f's_add_u32 {sr(so)}, {sr(sRO[st & 7])}, {(st & ~7)*1024}'] if X == 0 else []
        return pre + [f'buffer_load_dwordx4 {vr(vOF+4*(f % RF),4)}, {vr(vOo+X)}, {sr(sO2,4)}, {sr(so)} offen{pol("pol")}']
    for f in range(RF):
        g.many(o_load(f)); vq.append(('o', f))
    nxt = RF
    pw = lambda j: f'ds_write_b128 {"v20" if (j >> 2) < 4 else "v22"}, {ar(aC+4*j,4)} offset:{((j>>2)&3)*16384+(j&3)*1024}'
    g(f'v_add_u32 v20, {sr(sW4K)}, {vr(vL16)}')
    g('v_add_u32 v22, 65536, v20')
    nw = 0
    for st in range(0, NS, 2):
        rs = [x for x in (st - 2 + NP, st - 1 + NP) if st >= 2 and x < NS]
        ws = [x for x in (st - 4 + NP + 10, st - 3 + NP + 10) if st >= 4 and x < NS]
        rd = sum((reads(x) for x in rs), [])
        w = sum(([(y, x) for y in wo_loads(x)] for x in ws), [])
        for X in range(6):
            f0 = 6*st + 2*X
            need = [('o', f0 + 1)] + ([('w', x) for x in rs] if X == 0 else [])
            g(f's_waitcnt vmcnt({min(vwait(need), 63)})' + (' lgkmcnt(0)' if X == 0 else ''))
            m = 0
            for nt in range(4):
                for e in range(2):
                    d = ar(aC + 4*(4*X + nt), 4)
                    g(f'{MF} {d}, {wreg(st+e, 4*nt, 4)}, {vr(vOF+4*((f0+e) % RF),4)}, {d if (st or e) else 0}')
                    if m in (1, 5) and nxt < NF and nxt - RF < f0:
                        g.many(o_load(nxt)); vq.append(('o', nxt)); nxt += 1
                    elif st == NS - 2 and (m & 1) and nw <= 4*X + nt - 5:
                        g(pw(nw)); nw += 1
                    elif rd and m < 7:
                        g(rd.pop(0)); g(rd.pop(0))
                    elif w and m < 7:
                        k = 0
                        while w and k < 2:
                            y, tg = w.pop(0); g(y); k += 1
                            if y.startswith('buffer'):
                                vq.append(('w', tg)); break
                    m += 1
        assert not w and not rd
    assert nxt == NF
    stamp(g, 5)
    g(f'v_bfe_u32 v11, {vr(vL16)}, 4, 4')
    g('v_mul_u32_u24 v11, 1152, v11')
    g(f'v_lshrrev_b32 v15, 9, {vr(vL16)}')
    g(f'v_bfe_u32 v16, {vr(vL16)}, 8, 1')
    g('v_lshl_add_u32 v11, v15, 4, v11')
    g('v_lshl_add_u32 v11, v16, 5, v11')
    g('s_nop 1')
    for j in range(nw, 24):
        g(pw(j))
    for e in range(3):
        g(f's_mul_i32 s4, {sr(sW)}, 3')
        g(f's_add_u32 s4, s4, {e}')
        g('s_lshr_b32 s5, s4, 1')
        g('s_and_b32 s4, s4, 1')
        g('s_lshl_b32 s6, s5, 14')
        g('s_lshl_b32 s7, s4, 11')
        g('s_add_u32 s6, s6, s7')
        g(f'v_add_u32 {vr(12+e)}, s6, {vr(vL16)}')
        g('s_mul_i32 s5, s5, 18432')
        g('s_lshl_b32 s4, s4, 6')
        g(f's_add_u32 {sr(45+e)}, s4, s5')
    g('s_waitcnt lgkmcnt(0)')
    g('s_barrier')
    for u in range(4):
        for j in range(6):
            g(f'ds_read_b128 {vr(24+24*u+4*j,4)}, {vr(12+(j>>1))} offset:{u*4096+(j&1)*1024}')
    g('s_waitcnt lgkmcnt(12)')
    for k in range(12):
        g(f'v_pk_add_f32 {vr(24+2*k,2)}, {vr(24+2*k,2)}, {vr(48+2*k,2)}')
    g('s_waitcnt lgkmcnt(0)')
    for k in range(12):
        g(f'v_pk_add_f32 {vr(72+2*k,2)}, {vr(72+2*k,2)}, {vr(96+2*k,2)}')
    for k in range(12):
        g(f'v_pk_add_f32 {vr(24+2*k,2)}, {vr(24+2*k,2)}, {vr(72+2*k,2)}')
    for k in range(12):
        g(f'v_cvt_pk_bf16_f32 {vr(120+k)}, {vr(24+2*k)}, {vr(24+2*k+1)}')
    g('s_nop 1')
    for e in range(3):
        g(f'v_permlane16_swap_b32 {vr(120+4*e)}, {vr(122+4*e)}')
        g(f'v_permlane16_swap_b32 {vr(121+4*e)}, {vr(123+4*e)}')
    for e in range(3):
        g(f'buffer_store_dwordx4 {vr(120+4*e,4)}, v11, {sr(sOUT,4)}, {sr(45+e)} offen{pol("pout")}')
    if OPT['stamp']:
        g('s_waitcnt vmcnt(0)')
        stamp(g, 5)
        g.label('L1_fin')
        emit_stamps(g, 36, 0)
    g.label('L1_done')
    g('s_endpgm')
    g.c('---- one-time steps between loop iterations: the workgroup group (id mod 8) that runs slowest gets no projection tiles;')
    g.c('     the spare workgroups of the other groups take them.  Only speed depends on the outcome.')
    g.label('L1_hook')
    NV = 2*(8 + WT)
    one = lambda x: g.many(['s_mov_b64 exec, 1', x, 's_mov_b64 exec, -1'])
    g(f's_cmp_eq_u32 {sr(sCnt)}, 13')
    g('s_cbranch_scc1 L1_hook3')
    g(f's_cmp_eq_u32 {sr(sCnt)}, 14')
    g('s_cbranch_scc1 L1_hook4')
    g.c('iterations 7..10, wave 0 of one workgroup per group: draw a rank, publish it, count the publications, last one opens the gate')
    g(f's_add_u32 {sr(sHook)}, {sr(sCnt)}, 1')
    g(f's_waitcnt vmcnt({NV})')
    g(f's_cmp_eq_u32 {sr(sCnt)}, 8')
    g('s_cbranch_scc1 L1_hook8')
    g(f's_cmp_eq_u32 {sr(sCnt)}, 10')
    g('s_cbranch_scc1 L1_hook10')
    g(f's_sub_u32 s4, {sr(sCnt)}, 7')
    g('s_lshl_b32 s4, s4, 1')
    g('v_mov_b32 v18, 1')
    one(f'buffer_atomic_add v18, off, {sr(sDB,4)}, s4 offset:64 sc0 sc1')
    g('s_branch L1_loop')
    g.label('L1_hook8')
    g('s_and_b32 s4, s2, 7')
    g('s_lshl_b32 s4, s4, 2')
    g('v_add_u32 v19, 1, v18')
    one(f'buffer_store_dword v19, off, {sr(sDB,4)}, s4 offset:192 sc1')
    g('s_branch L1_loop')
    g.label('L1_hook10')
    g(f's_mov_b32 {sr(sHook)}, 13')
    g('v_readfirstlane_b32 s4, v18')
    g('v_mov_b32 v18, 1')
    g('v_mov_b32 v19, 0')
    g('s_cmp_lg_u32 s4, 7')
    g('s_cbranch_scc1 L1_loop')
    one(f'buffer_atomic_cmpswap v[18:19], off, {sr(sDB,4)}, 0 offset:224 sc1')
    g('s_branch L1_loop')
    g.label('L1_hook3')
    g(f's_mov_b32 {sr(sHook)}, 14')
    g(f'v_lshrrev_b32 v23, 2, {vr(vL16)}')
    g(f'buffer_load_dword v20, v23, {sr(sDB,4)}, 0 offen offset:192 sc1')
    g('s_branch L1_loop')
    g.label('L1_hook4')
    g(f's_mov_b32 {sr(sHook)}, 15')
    g(f's_waitcnt vmcnt({NV})')
    g('v_readlane_b32 s6, v20, 8')
    g('s_nop 0')
    g('s_cmp_lg_u32 s6, 0')
    g('s_cbranch_scc1 L1_hook5')
    g('v_mov_b32 v18, 2')
    g('v_mov_b32 v19, 0')
    one(f'buffer_atomic_cmpswap v[18:19], off, {sr(sDB,4)}, 0 offset:224 sc0 sc1')
    g('s_waitcnt vmcnt(0)')
    g(f'buffer_load_dword v20, v23, {sr(sDB,4)}, 0 offen offset:192 sc1')
    g('v_readfirstlane_b32 s6, v18')
    g('s_waitcnt vmcnt(0)')
    g.label('L1_hook5')
    g('s_cmp_lg_u32 s6, 1')
    g('s_cbranch_scc1 L1_loop')
    g('s_and_b32 s5, s2, 7')
    g('v_cmp_eq_u32 vcc, 8, v20')
    g('v_readlane_b32 s5, v20, s5')
    g('s_ff1_i32_b32 s6, vcc_lo')
    g('s_and_b32 s6, s6, 7')
    g('s_cmp_lg_u32 s5, 8')
    g('s_cbranch_scc1 L1_hook6')
    g(f's_mov_b32 {sr(sQG)}, 3')
    g(f's_mov_b32 {sr(sX+2)}, 0')
    g('s_branch L1_loop')
    g.label('L1_hook6')
    g(f's_cmp_lt_u32 {sr(sQG)}, 3')
    g('s_cbranch_scc1 L1_loop')
    g('s_sub_u32 s5, s5, 1')
    g('s_and_b32 s4, s5, 1')
    g('s_mul_i32 s4, s4, 5')
    g(f's_add_u32 s4, s4, {sr(sNG)}')
    g('s_cmp_ge_u32 s4, 9')
    g('s_cbranch_scc1 L1_loop')
    g('s_lshr_b32 s5, s5, 1')
    g('s_mul_i32 s5, s5, 9')
    g('s_add_u32 s4, s4, s5')
    g('s_min_u32 s4, s4, 27')
    g('s_mov_b32 s3, s6')
    for grp in tile_consts:
        g.many(grp)
    g('s_branch L1_loop')
    g.c('---- fallback: the stand-in was unsafe.  Scan all keys for the true row max, then redo the main pass.')
    g.label('L1_fallback')
    g(f's_mov_b32 {sr(sPass)}, 1')
    g(f's_mov_b32 {sr(sHook0)}, 15')
    g('s_waitcnt vmcnt(0) lgkmcnt(0)')
    for X in range(5):
        g(f'v_mov_b32 {vr(vM+X)}, 0xff800000')
    g(f's_mov_b32 {sr(sOff)}, 0')
    g(f's_mov_b32 {sr(sSlot)}, 0')
    g.many(addr_update())
    g.label('L1_scan')
    g('s_barrier')
    g(f's_mov_b32 m0, {sr(sW4K)}')
    g('s_nop 0')
    for j in range(4):
        g(dma_kv('K', j, sOff))
    g(f's_add_u32 {sr(sOff)}, {sr(sOff)}, 16384')
    g('s_waitcnt vmcnt(0)')
    g('s_barrier')
    for kt in range(4):
        for i in range(4):
            g(kread(kt, i, aK))
        g('s_waitcnt lgkmcnt(0)')
        for c in range(5):
            for i in range(4):
                g(qk_mf(c, i, '0', vR + 4*c)[0])
        g('s_nop 7')
        for X in range(5):
            g(f'v_max3_f32 {vr(vM+X)}, {vr(vM+X)}, {vr(vR+4*X)}, {vr(vR+4*X+1)}')
            g(f'v_max3_f32 {vr(vM+X)}, {vr(vM+X)}, {vr(vR+4*X+2)}, {vr(vR+4*X+3)}')
    g(f's_cmp_lt_u32 {sr(sOff)}, 524288')
    g('s_cbranch_scc1 L1_scan')
    g('s_barrier')
    for u in range(PD):
        g.many(pair_const(u))
    for r in range(180):
        g(f'v_accvgpr_write_b32 {ar(aO+r)}, 0')
    g(f's_waitcnt vmcnt({8*(PD-1)})')
    g('s_barrier')
    for kt in range(2):
        for i in range(4):
            g(kread(kt, i))
    g('s_branch L1_main')
    g.label('L1_end')

def emit_stamps(g, sws, kidx):
    n = nstamp[0]
    assert n <= 13
    g(f's_memrealtime {sr(sRT+2, 2)}')
    g('s_waitcnt lgkmcnt(0)')
    if OPT['dbg'] >= 2:
        if OPT['dbg'] == 2:
            g(f's_sub_u32 s5, {sr(sRT+2)}, {sr(sRT)}')
        elif OPT['dbg'] in (3, 4):
            g('s_mov_b32 s22, 256')
            g('buffer_load_dword v21, off, s[20:23], 0 offset:128 sc1')
            g('s_waitcnt vmcnt(0)')
            g('v_readfirstlane_b32 s6, v21')
            g('s_nop 3')
            g('s_not_b32 s6, s6')
            g(f's_sub_u32 s5, {sr(sRT if OPT["dbg"] == 3 else sRT+2)}, s6')
            if OPT['dbg'] == 3:
                g('s_lshl_b32 s5, s5, 2')
        else:
            a, b = OPT['dbg'] // 100, OPT['dbg'] % 100
            g(f's_sub_u32 s5, {sr(sST+2*b)}, {sr(sST+2*a)}')
            g('s_lshr_b32 s5, s5, 4')
        if OPT['dbg'] != 3:
            g(f's_cmp_ge_u32 {sr(sQG)}, 3'); g('s_cselect_b32 s5, 0, s5')
        g('s_min_u32 s5, s5, 50000')
        g.label('L_spin')
        g('s_memrealtime s[6:7]')
        g('s_waitcnt lgkmcnt(0)')
        g(f's_sub_u32 s6, s6, {sr(sRT+2)}')
        g('s_cmp_lt_u32 s6, s5')
        g('s_cbranch_scc1 L_spin')
        nstamp[0] = 0
        return
    g(f's_add_u32 s8, {sr(sws)}, {STAMP_OFF + kidx*(1<<20)}')
    g(f's_addc_u32 s9, {sr(sws+1)}, 0')
    g('s_mov_b32 s10, 0x100000')
    g('s_mov_b32 s11, 0x20000')
    g('s_lshl_b32 s4, s2, 2')
    g(f's_add_u32 s4, s4, {sr(sW)}')
    g('s_lshl_b32 s4, s4, 7')
    g('s_mov_b64 exec, 1')
    g('v_mov_b32 v2, 0')
    for reg, off in [(sST+2*i, 8*i) for i in range(n)] + [(sRT, 104), (sRT+2, 112)]:
        g(f'v_mov_b32 v4, {sr(reg)}')
        g(f'v_mov_b32 v5, {sr(reg+1)}')
        g(f'buffer_store_dwordx2 v[4:5], v2, s[8:11], s4 offen offset:{off}')
        g('s_nop 1')
    if OPT['dbg']:
        g('s_mov_b32 s8, s94'); g('s_mov_b32 s9, s95'); g('s_mov_b32 s10, 64')
        g(f's_cmp_ge_u32 {sr(sQG)}, 3'); g('s_cselect_b32 s10, 0, s10')
        pairs = [(sRT, sRT+2, 1), (sST, sST+2*5, 1), (sST+2*5, sST+2*6, 1), (sST+2*5, sST+2*6, -1), (sST+2*6, sST+2*8, 1), (sST+2*8, sST+2*9, 1), (sST+2*9, sST+2*10, 1), (sST, sST+2*11, 1)]
        for k, (a, b, sg) in enumerate(pairs):
            g(f's_sub_u32 s5, {sr(b)}, {sr(a)}' if sg > 0 else f's_sub_u32 s5, {sr(a)}, {sr(b)}')
            g('v_mov_b32 v4, s5')
            g(f'buffer_atomic_umax v4, off, s[8:11], 0 offset:{32+4*k} sc1')
            g('s_nop 1')
        nstamp[0] = 0
        return
    g('s_getreg_b32 s5, hwreg(HW_REG_XCC_ID)')
    g('s_and_b32 s5, s5, 15')
    g(f's_lshl_b32 s6, {sr(sQG)}, 8')
    g('s_or_b32 s5, s5, s6')
    g('v_mov_b32 v4, s5')
    g('buffer_store_dword v4, v2, s[8:11], s4 offen offset:120')
    print('stamps', kidx, n, file=sys.stderr)
    nstamp[0] = 0

def kd(name, nv, acc):
    return f'''.p2align 6
.amdhsa_kernel {name}
  .amdhsa_next_free_vgpr {nv}
  .amdhsa_next_free_sgpr 102
  .amdhsa_accum_offset {acc}
  .amdhsa_group_segment_fixed_size 0
  .amdhsa_kernarg_size 64
  .amdhsa_user_sgpr_count 2
  .amdhsa_user_sgpr_kernarg_segment_ptr 1
  .amdhsa_system_sgpr_workgroup_id_x 1
  .amdhsa_float_denorm_mode_32 3
.end_amdhsa_kernel'''

def main():
    here = os.path.dirname(os.path.abspath(__file__))
    g = G()
    kernel1(g)
    out = open(here + '/header3.txt').read()
    out += '.amdgcn_target "amdgcn-amd-amdhsa--gfx950"\n.text\n'
    out += '\n'.join(g.L) + '\n'
    out += '.section .rodata,"a"\n' + kd(KN, 512, 256) + '\n'
    open(sys.argv[1], 'w').write(out)

main()
```
